```python
import torch

def _softmax(x, axis=-1):
    return torch.softmax(x, dim=axis)

def _gelu(x):
    return torch.nn.functional.gelu(x, approximate='tanh')

def _silu(x):
    return torch.nn.functional.silu(x)

def _sigmoid(x):
    return torch.sigmoid(x)

def _layernorm(x, axis=-1, eps=1e-05):
    m = x.mean(dim=axis, keepdim=True)
    v = x.var(dim=axis, keepdim=True, unbiased=False)
    return (x - m) / torch.sqrt(v + eps)

def _scatter_add(tgt, idx, src, axis=0):
    return tgt.clone().index_add_(axis, idx, src)

def _segment_sum(src, seg, n):
    out = torch.zeros((n,) + src.shape[1:], dtype=src.dtype)
    return out.index_add_(0, seg, src)

def _pad(x, pw):
    flat = tuple((v for pair in reversed(pw) for v in pair))
    return torch.nn.functional.pad(x, flat)
kernel_name = 'adaLN_cond__gqa_block_cached__swiglu_ffn__decode'

def setup_inputs():

    _w = lambda a: (lambda t: t.to(torch.bfloat16) if t.is_floating_point() else t)(torch.as_tensor(a))

    def _A_setup():
        B, Sq, D = (1, 1, 640)
        Hq, Hkv, Sk, Dh = (32, 32, 8192, 128)
        assert Hq % Hkv == 0, (Hq, Hkv)
        return {'x': _w((lambda *s: torch.randn(*s, dtype=torch.bfloat16) * 0.05)(B, Sq, D)), 'k_cache': _w((lambda *s: torch.randn(*s, dtype=torch.bfloat16) * 3.2)(B, Hkv, Sk, Dh)), 'v_cache': _w((lambda *s: torch.randn(*s, dtype=torch.bfloat16) * 0.4)(B, Hkv, Sk, Dh)), 'wq': _w((lambda *s: torch.randn(*s, dtype=torch.bfloat16) * 3.2)(D, Hq * Dh) * D ** (-0.5)), 'wo': _w((lambda *s: torch.randn(*s, dtype=torch.bfloat16) * 0.4)(Hq * Dh, D) * (Hq * Dh) ** (-0.5))}
    _A_in = _A_setup()

    def _B_setup():
        B, S, D, F = (1, 1, 640, 1728)
        return {'x': _w((lambda *s: torch.randn(*s, dtype=torch.bfloat16) * 0.05)(B, S, D)), 'w_gate': _w((lambda *s: torch.randn(*s, dtype=torch.bfloat16) * 0.05)(D, F)), 'w_up': _w((lambda *s: torch.randn(*s, dtype=torch.bfloat16) * 0.05)(D, F)), 'w_down': _w((lambda *s: torch.randn(*s, dtype=torch.bfloat16) * 0.05)(F, D))}
    _B_in = _B_setup()
    return {'A_x': _A_in['x'], 'A_k_cache': _A_in['k_cache'], 'A_v_cache': _A_in['v_cache'], 'A_wq': _A_in['wq'], 'A_wo': _A_in['wo'], 'B_x': _B_in['x'], 'B_w_gate': _B_in['w_gate'], 'B_w_up': _B_in['w_up'], 'B_w_down': _B_in['w_down'], 'c': _w((lambda *s: torch.randn(*s, dtype=torch.bfloat16) * 0.1)(1, 640) * 8.0), 'w_mod': _w((lambda *s: torch.randn(*s, dtype=torch.bfloat16) * 0.1)(640, 6 * 640) * 640 ** (-0.5) * 8.0)}

def reference(A_x, A_k_cache, A_v_cache, A_wq, A_wo, B_x, B_w_gate, B_w_up, B_w_down, c, w_mod):

    def _A_ref(x, k_cache, v_cache, wq, wo):
        B, Sq, D = x.shape
        Hq, Dh = (32, 128)
        Hkv = k_cache.shape[1]
        rep = Hq // Hkv
        q = (lambda x, *d: x.permute(*d))((x @ wq).reshape(B, Sq, Hq, Dh), 0, 2, 1, 3)
        k = (lambda x, n, axis: torch.repeat_interleave(x, n, dim=axis))(k_cache, rep, axis=1)
        v = (lambda x, n, axis: torch.repeat_interleave(x, n, dim=axis))(v_cache, rep, axis=1)
        scores = torch.einsum('bhqd,bhkd->bhqk', q, k) * Dh ** (-0.5)
        p = _softmax(scores, axis=-1)
        o = torch.einsum('bhqk,bhkd->bhqd', p, v)
        return (lambda x, *d: x.permute(*d))(o, 0, 2, 1, 3).reshape(B, Sq, Hq * Dh) @ wo

    def _B_ref(x, w_gate, w_up, w_down):
        g = _silu(x @ w_gate)
        u = x @ w_up
        return g * u @ w_down
    x = A_x
    mod = (_silu(c) @ w_mod).reshape(c.shape[0], 6, 1, -1)
    sa, ca, ga, sb, cb, gb = (mod[:, 0].clone(), mod[:, 1].clone(), mod[:, 2].clone(), mod[:, 3].clone(), mod[:, 4].clone(), mod[:, 5].clone())
    h = _layernorm(x, axis=-1) * (1 + ca) + sa
    x = x + ga * _A_ref(h, A_k_cache, A_v_cache, A_wq, A_wo)
    h = _layernorm(x, axis=-1) * (1 + cb) + sb
    x = x + gb * _B_ref(h, B_w_gate, B_w_up, B_w_down)
    return x
```

```python
import re

TRANS = ("v_exp_f32", "v_log_f32", "v_rcp_f32", "v_rsq_f32", "v_sqrt_f32", "v_sin_f32", "v_cos_f32")

def _regs(tok, kind):
    tok = tok.strip()
    tok = re.sub(r"^-", "", tok)
    m = re.match(r"^abs\((.*)\)$", tok)
    if m: tok = m.group(1)
    tok = tok.strip("|")
    m = re.match(rf"^{kind}(\d+)$", tok)
    if m: return {int(m.group(1))}
    m = re.match(rf"^{kind}\[(\d+):(\d+)\]$", tok)
    if m: return set(range(int(m.group(1)), int(m.group(2)) + 1))
    if kind == "s":
        if tok == "vcc": return {106, 107}
        if tok == "vcc_lo": return {106}
        if tok == "vcc_hi": return {107}
    return set()

class Ins:
    def __init__(self, text):
        self.text = text
        t = text.split(";")[0].strip()
        parts = t.split(None, 1)
        self.op = parts[0]
        rest = parts[1] if len(parts) > 1 else ""
        ops = [o.strip() for o in rest.split(",")] if rest else []
        self.mods = ""
        if ops:
            m = re.search(r"\s(quad_perm|row_|offen|offset|sc0|sc1|nt|lds|bank_mask|bound_ctrl|op_sel|neg_|clamp|glc|idxen|wave_)", " " + rest)
            if m:
                head = (" " + rest)[:m.start()]
                self.mods = (" " + rest)[m.start():]
                ops = [o.strip() for o in head.split(",") if o.strip()]
        self.ops = ops
        op = self.op
        self.valu = op.startswith("v_") and not op.startswith("v_mfma")
        self.mfma = op.startswith("v_mfma")
        self.vmem = op.startswith(("buffer_", "global_", "flat_"))
        self.ds = op.startswith("ds_")
        self.trans = op.startswith(TRANS)
        self.dot = op.startswith("v_dot")
        self.dpp = "_dpp" in op or "quad_perm" in self.mods or "row_" in self.mods
        self.permlane = op.startswith("v_permlane")
        self.readlane = op.startswith(("v_readlane", "v_readfirstlane"))
        self.states = 1
        if op == "s_nop": self.states = int(ops[0], 0) + 1
        vw, vr, sw, sr = set(), set(), set(), set()
        R = lambda toks, k: set().union(*[_regs(x, k) for x in toks]) if toks else set()
        if self.valu or self.mfma:
            nd = 1
            if op.startswith(("v_add_co", "v_sub_co", "v_addc_co", "v_subb_co", "v_mad_u64", "v_div_scale")): nd = 2
            d, s = ops[:nd], ops[nd:]
            vw |= R(d, "v"); sw |= R(d, "s"); vr |= R(s, "v"); sr |= R(s, "s")
            if op.startswith(("v_fmac", "v_dot2c", "v_dot4c", "v_pk_fmac", "v_writelane")) or self.dpp: vr |= R(d, "v")
            if self.permlane: vw |= R(s, "v"); vr |= R(d, "v")
        elif self.vmem:
            st = "store" in op or ("atomic" in op)
            if op.startswith("buffer_"):
                if "lds" in self.mods.split(): vr |= R(ops[:1], "v"); sr |= R(ops[1:], "s")
                elif st: vr |= R(ops[:2], "v"); sr |= R(ops[2:], "s")
                elif op in ("buffer_inv", "buffer_wbl2"): pass
                else: vw |= R(ops[:1], "v"); vr |= R(ops[1:2], "v"); sr |= R(ops[2:], "s")
                self.stdata = R(ops[:1], "v") if st else set()
            else:
                if st: vr |= R(ops, "v"); sr |= R(ops, "s"); self.stdata = R(ops[1:2], "v")
                else: vw |= R(ops[:1], "v"); vr |= R(ops[1:], "v"); sr |= R(ops[1:], "s"); self.stdata = set()
            self.widestore = st and ("x3" in op or "x4" in op)
        elif self.ds:
            if op.startswith(("ds_read", "ds_bpermute", "ds_permute", "ds_swizzle")): vw |= R(ops[:1], "v"); vr |= R(ops[1:], "v")
            else: vr |= R(ops, "v")
        self.vw, self.vr, self.sw, self.sr = vw, vr, sw, sr
        if self.mfma:
            self.passes = 4 if ("16x16x32" in op or "16x16x16" in op) else (2 if "4x4x4" in op else 8)
            self.srcc = _regs(ops[3], "v"); self.srcab = R(ops[1:3], "v")

def need(p, c):
    n = 0
    if p.valu:
        if c.dpp and c.valu and (p.vw & c.vr): n = max(n, 2)
        if c.permlane and (p.vw & c.vr): n = max(n, 2)
        if c.mfma and (p.vw & c.vr): n = max(n, 2)
        if c.readlane and (p.vw & c.vr): n = max(n, 1)
        if p.trans and (c.valu or c.mfma) and (p.vw & c.vr): n = max(n, 1)
        if p.dot and (p.vw & (c.vr | c.vw)):
            same = c.op.replace("_dpp", "") == p.op.replace("_dpp", "")
            srcs_ab = set()
            if same:
                o = c.ops
                srcs_ab = _regs(o[1], "v") | _regs(o[2], "v")
            if not same or (p.vw & srcs_ab): n = max(n, 3)
        if p.sw:
            if c.vmem and (p.sw & c.sr): n = max(n, 5)
            if c.valu and (p.sw & c.sr): n = max(n, 4 if c.op.startswith(("v_readlane", "v_writelane")) else 2)
    if p.mfma:
        tab_ab = {2: 5, 4: 8, 8: 12}; tab_c = {2: 4, 4: 6, 8: 10}; war = {2: 1, 4: 3, 8: 7}
        if c.mfma:
            if p.vw & c.srcab: n = max(n, tab_ab[p.passes])
            if p.vw & c.srcc:
                if p.vw == c.srcc and p.passes == c.passes: n = max(n, 2 if p.passes == 2 else 0)
                else: n = max(n, tab_c[p.passes])
        elif (c.valu or c.vmem or c.ds) and (p.vw & (c.vr | c.vw)): n = max(n, tab_ab[p.passes])
        if c.valu and (p.srcc & c.vw): n = max(n, war[p.passes])
    if p.vmem and getattr(p, "widestore", False) and (p.stdata & c.vw): n = max(n, 2)
    return n

def worst(p):
    n = 0
    if p.valu:
        if p.vw: n = 2
        if p.dot: n = 3
        if p.sw - {106, 107}: n = 5
        elif p.sw: n = max(n, 2)
    if p.mfma: n = {2: 5, 4: 8, 8: 12}[p.passes]
    if p.vmem and getattr(p, "widestore", False): n = 2
    return n

class Asm:
    def __init__(self):
        self.lines = []
        self.hist = []
        self.nlabel = 0
        self.nops = 0
    def raw(self, s): self.lines.append(s)
    def _pad(self, n):
        while n > 0:
            k = min(n, 16)
            i = Ins(f"s_nop {k-1}")
            self.lines.append("    " + i.text); self.hist.append(i); n -= k; self.nops += 1
    def __call__(self, text):
        for t in text.split("\n"):
            t = t.strip()
            if not t: continue
            if t.startswith(";"): self.lines.append("    " + t); continue
            if t.endswith(":"): self.lines.append(t); continue
            c = Ins(t)
            isbr = c.op.startswith(("s_branch", "s_cbranch", "s_setpc"))
            if t.endswith(";nopad"):
                isbr = False; t = t[:-6].rstrip()
            dist = 0; req = 0
            for p in reversed(self.hist[-24:]):
                n = need(p, c)
                if isbr: n = max(n, worst(p) - 1)
                req = max(req, n - dist)
                dist += p.states
                if dist > 16: break
            self._pad(req)
            self.lines.append("    " + t); self.hist.append(c)
    def label(self, base="L"):
        self.nlabel += 1
        return f"{base}_{self.nlabel}"
    def text(self): return "\n".join(self.lines) + "\n"
```

```python
import sys, struct
from asmlib import Asm
NAME = "adaLN_cond__gqa_block_cached__swiglu_ffn__decode"

def f32(x): return "0x%08x" % struct.unpack("<I", struct.pack("<f", x))[0]
LOG2E = f32(1.4426950408889634)
NLOG2E = f32(-1.4426950408889634)
SCALE = f32(128 ** -0.5)

HG, MG, QG, MLG, OA, YB, GU = 0x1000, 0x2000, 0x5000, 0x9000, 0xA000, 0x2A000, 0x2F000
WS_BYTES = 0x30000
QL, MLW, OW, STL, H2L, PW, PG, PD = 0, 256, 512, 4608, 4736, 6144, 6656, 7168
LDS_BYTES = 7680
sWAVE, sX, sR, sCI, sT, sBUD = 3, 4, 5, 6, 7, 8
P_X, P_K, P_V, P_WQ, P_WO, P_WG, P_WU, P_WD, P_C, P_WM, P_OUT, P_WS = 16, 18, 20, 22, 24, 28, 30, 32, 34, 36, 38, 42
SA, SB, SW, SC, SD = 44, 48, 52, 56, 60
sWGT = 64
sEX = 72
sPERMLO, sPERMHI, sHIMASK = 74, 75, 76
STAMP0 = 78

def srd(n): return f"s[{n}:{n+3}]"
def vr(a, n): return f"v[{a}:{a+n-1}]"

class Gen:
    def __init__(self, stamps=False, budget=30000, kdepth=None):
        self.a = Asm(); self.stamps = stamps; self.budget = budget; self.kdepth = kdepth

    def mksrd(self, s, p, nbytes):
        a = self.a
        a(f"s_mov_b32 s{s}, s{p}\ns_and_b32 s{s+1}, s{p+1}, 0xffff\ns_mov_b32 s{s+2}, {nbytes}\ns_mov_b32 s{s+3}, 0x20000")

    def stamp(self, i):
        if self.stamps: self.a(f"s_memrealtime s[{STAMP0+2*i}:{STAMP0+2*i+1}]")

    def poll(self, loads, invalid, sleep=1, lds=False):
        a = self.a
        L, D = a.label("L_poll"), a.label("L_pdone")
        a(f"s_mov_b64 s[{sEX}:{sEX+1}], exec")
        a(f"{L}:")
        loads()
        a("s_waitcnt lgkmcnt(0)" if lds else "s_waitcnt vmcnt(0)")
        invalid()
        a(f"s_cbranch_vccz {D}")
        a(f"s_cmp_eq_u32 s{sBUD}, 0\ns_cbranch_scc1 {D}\ns_sub_u32 s{sBUD}, s{sBUD}, 1")
        a("s_mov_b64 exec, vcc")
        if sleep: a(f"s_sleep {sleep}")
        a(f"s_branch {L}")
        a(f"{D}:")
        a(f"s_mov_b64 exec, s[{sEX}:{sEX+1}]")

    def inv_tags(self, tagregs, tmp):
        a = self.a
        a(f"v_xor_b32 v{tmp}, s{sT}, v{tagregs[0]}")
        for t in tagregs[1:]:
            a(f"v_xor_b32 v{tmp+1}, s{sT}, v{t}\nv_or_b32 v{tmp}, v{tmp}, v{tmp+1}")
        a(f"v_cmp_ne_u32 vcc, 0, v{tmp}")

    def inv_poison(self, regs, tmp):
        a = self.a
        regs = list(regs)
        if len(regs) == 1:
            a(f"v_cmp_eq_u32 vcc, -1, v{regs[0]}"); return
        if len(regs) == 2:
            a(f"v_max_u32 v{tmp}, v{regs[0]}, v{regs[1]}"); rest = []
        else:
            a(f"v_max3_u32 v{tmp}, v{regs[0]}, v{regs[1]}, v{regs[2]}"); rest = regs[3:]
        while len(rest) >= 2:
            a(f"v_max3_u32 v{tmp}, v{tmp}, v{rest[0]}, v{rest[1]}"); rest = rest[2:]
        if rest: a(f"v_max_u32 v{tmp}, v{tmp}, v{rest[0]}")
        a(f"v_cmp_eq_u32 vcc, -1, v{tmp}")

    def reduce8(self, acc, t):
        a = self.a
        for j in range(4): a(f"v_permlane32_swap_b32 v{acc[j]}, v{acc[j+4]}")
        for j in range(4): a(f"v_add_f32 v{acc[j]}, v{acc[j]}, v{acc[j+4]}")
        for j in range(2): a(f"v_permlane16_swap_b32 v{acc[j]}, v{acc[j+2]}")
        for j in range(2): a(f"v_add_f32 v{acc[j]}, v{acc[j]}, v{acc[j+2]}")
        a(f"v_add_f32_dpp v{t}, v{acc[0]}, v{acc[0]} row_ror:8 row_mask:0xf bank_mask:0x3")
        a(f"v_add_f32_dpp v{t}, v{acc[1]}, v{acc[1]} row_ror:8 row_mask:0xf bank_mask:0xc")

    def allred_rows(self, op, regs, tmps):
        a = self.a
        for sw in ("v_permlane16_swap_b32", "v_permlane32_swap_b32"):
            for r, t in zip(regs, tmps): a(f"v_mov_b32 v{t}, v{r}")
            for r, t in zip(regs, tmps): a(f"{sw} v{t}, v{r}")
            for r, t in zip(regs, tmps): a(f"{op} v{r}, v{r}, v{t}")

    def dpp_red(self, op, regs, steps):
        a = self.a
        for s in steps:
            for r in regs: a(f"{op}_dpp v{r}, v{r}, v{r} {s} row_mask:0xf bank_mask:0xf")

    X1, X2, HM, R4, R8 = "quad_perm:[1,0,3,2]", "quad_perm:[2,3,0,1]", "row_half_mirror", "row_ror:4", "row_ror:8"

    def rbf(self, d, s):
        self.a(f"v_cvt_pk_bf16_f32 v{d}, v{s}, v{s}\nv_and_b32 v{d}, s{sHIMASK}, v{d}")

    def silu(self, d, s, t):
        a = self.a
        a(f"v_mul_f32 v{t}, {NLOG2E}, v{s}\nv_exp_f32 v{t}, v{t}\nv_add_f32 v{t}, 1.0, v{t}\nv_rcp_f32 v{t}, v{t}\nv_mul_f32 v{d}, v{s}, v{t}")

    def preperm(self, E, O, free):
        a = self.a
        P = []
        for d in range(4):
            a(f"v_perm_b32 v{free}, v{O[d]}, v{E[d]}, s{sPERMLO}")
            a(f"v_perm_b32 v{O[d]}, v{O[d]}, v{E[d]}, s{sPERMHI}")
            P += [free, O[d]]
            free = E[d]
        return P, free

    def ln_scalars(self, s1, s2, t):
        a = self.a
        a(f"v_mul_f32 v{s1}, {f32(1/640)}, v{s1}\nv_mul_f32 v{s2}, {f32(1/640)}, v{s2}")
        a(f"v_fma_f32 v{s2}, -v{s1}, v{s1}, v{s2}\nv_max_f32 v{s2}, 0, v{s2}")
        a(f"v_cvt_pk_bf16_f32 v{t}, v{s1}, v{s2}")
        a(f"v_lshlrev_b32 v{s1}, 16, v{t}\nv_and_b32 v{s2}, s{sHIMASK}, v{t}")
        a(f"v_add_f32 v{s2}, {f32(1e-5)}, v{s2}")
        self.rbf(s2, s2)
        a(f"v_sqrt_f32 v{s2}, v{s2}")
        self.rbf(s2, s2)
        a(f"v_rcp_f32 v{s2}, v{s2}")

    def bulk(self):
        a = self.a
        VO, Q, MK, A0, D, S, T, RING = 1, 2, 6, 10, 18, 22, 30, 40
        a("L_bulk:")
        self.mksrd(SA, P_K, 0x4000000); self.mksrd(SB, P_V, 0x4000000)
        a(f"s_lshl_b32 s9, s{sCI}, 18\ns_sub_u32 s10, s{sWAVE}, 4\ns_lshl_b32 s11, s10, 15\ns_add_u32 s9, s9, s11")
        a(f"v_and_b32 v{T}, 63, v0\nv_lshl_add_u32 v{VO}, v{T}, 4, s9")
        def ld(srdn, t):
            if t % 4 == 0: a(f"s_mov_b32 s12, {t*1024}")
            a(f"buffer_load_dwordx4 {vr(RING+4*t,4)}, v{VO}, {srd(srdn)}, s12 offen offset:{(t%4)*1024} nt")
        for t in range(32):
            if self.kdepth and t >= self.kdepth: a(f"s_waitcnt vmcnt({self.kdepth-1})")
            ld(SA, t)
        a(f"v_and_b32 v{T+1}, 15, v0\nv_mov_b32 v{T+2}, 0xffff\nv_mov_b32 v{T+3}, 0xffff0000")
        for i in range(4):
            a(f"v_cmp_eq_u32 vcc, {2*i}, v{T+1}\nv_cndmask_b32 v{MK+i}, 0, v{T+2}, vcc")
            a(f"v_cmp_eq_u32 vcc, {2*i+1}, v{T+1}\nv_cndmask_b32 v{MK+i}, v{MK+i}, v{T+3}, vcc")
        for i in range(4): a(f"v_mov_b32 v{D+i}, 0")
        a(f"v_lshlrev_b32 v{T+1}, 4, v{T+1}")
        a(f"s_mov_b32 s{sHIMASK}, 0xffff0000")
        a("s_barrier")
        a(f"ds_read_b128 {vr(Q,4)}, v{T+1} offset:{QL}")
        a("s_waitcnt lgkmcnt(0)")
        for u in range(8):
            a("s_waitcnt vmcnt(28)")
            for d in range(4):
                for b in range(4):
                    k = RING + 4 * (4 * u + b) + d
                    if d == 0: a(f"v_dot2_f32_bf16 v{T+b}, v{k}, v{Q}, 0")
                    else: a(f"v_dot2_f32_bf16 v{T+b}, v{k}, v{Q+d}, v{T+b}")
            for b in range(4): ld(SB, 4 * u + b)
            a(f"v_add_f32_dpp v{T+4}, v{T}, v{T} row_ror:8 row_mask:0xf bank_mask:0x3")
            a(f"v_add_f32_dpp v{T+5}, v{T+1}, v{T+1} row_ror:8 row_mask:0xf bank_mask:0x3")
            a(f"v_add_f32_dpp v{T+4}, v{T+2}, v{T+2} row_ror:8 row_mask:0xf bank_mask:0xc")
            a(f"v_add_f32_dpp v{T+5}, v{T+3}, v{T+3} row_ror:8 row_mask:0xf bank_mask:0xc")
            a(f"v_add_f32_dpp v{S+u}, v{T+4}, v{T+4} row_shl:4 row_mask:0xf bank_mask:0x5")
            a(f"v_add_f32_dpp v{S+u}, v{T+5}, v{T+5} row_shr:4 row_mask:0xf bank_mask:0xa")
        Sr = list(range(S, S + 8))
        self.dpp_red("v_add_f32", Sr, [self.X2, self.X1])
        for u in range(0, 8, 2): a(f"v_cvt_pk_bf16_f32 v{T+u//2}, v{S+u}, v{S+u+1}")
        for u in range(0, 8, 2): a(f"v_lshlrev_b32 v{S+u}, 16, v{T+u//2}\nv_and_b32 v{S+u+1}, s{sHIMASK}, v{T+u//2}")
        for u in range(8): a(f"v_mul_f32 v{S+u}, {SCALE}, v{S+u}")
        for u in range(0, 8, 2): a(f"v_cvt_pk_bf16_f32 v{T+u//2}, v{S+u}, v{S+u+1}")
        for u in range(0, 8, 2): a(f"v_lshlrev_b32 v{S+u}, 16, v{T+u//2}\nv_and_b32 v{S+u+1}, s{sHIMASK}, v{T+u//2}")
        M, Ls = T + 4, T + 5
        a(f"v_max3_f32 v{M}, v{S}, v{S+1}, v{S+2}\nv_max3_f32 v{T}, v{S+3}, v{S+4}, v{S+5}\nv_max3_f32 v{M}, v{M}, v{S+6}, v{S+7}\nv_max_f32 v{M}, v{M}, v{T}")
        self.dpp_red("v_max_f32", [M], [self.R4, self.R8])
        self.allred_rows("v_max_f32", [M], [T])
        for u in range(8): a(f"v_sub_f32 v{S+u}, v{S+u}, v{M}")
        for u in range(8): a(f"v_mul_f32 v{S+u}, {LOG2E}, v{S+u}")
        for u in range(8): a(f"v_exp_f32 v{S+u}, v{S+u}")
        a(f"v_add_f32 v{Ls}, v{S}, v{S+1}")
        for u in range(2, 8): a(f"v_add_f32 v{Ls}, v{Ls}, v{S+u}")
        for u in range(8): a(f"v_cvt_pk_bf16_f32 v{S+u}, v{S+u}, v{S+u}")
        self.dpp_red("v_add_f32", [Ls], [self.R4, self.R8])
        self.allred_rows("v_add_f32", [Ls], [T])
        a(f"v_min_u32 v{M}, 0xfffffffe, v{M}")
        a(f"s_lshl_b32 s11, s10, 3\nv_mov_b32 v{T}, s11")
        a("s_mov_b64 exec, 1")
        a(f"ds_write_b64 v{T}, {vr(M,2)} offset:{MLW}")
        a("s_mov_b64 exec, -1")
        for t in range(32):
            A = A0 + 4 * (t % 2)
            for i in range(4):
                a(f"v_and_b32_dpp v{A+i}, v{S+t//4}, v{MK+i} row_newbcast:{4*(t%4)} row_mask:0xf bank_mask:0xf")
            a(f"s_waitcnt vmcnt({31-t})")
            a(f"v_mfma_f32_16x16x32_bf16 {vr(D,4)}, {vr(A,4)}, {vr(RING+4*t,4)}, {vr(D,4)}")
        a(f"v_and_b32 v{T}, 15, v0\nv_lshlrev_b32 v{T}, 5, v{T}\nv_and_b32 v{T+1}, 16, v0\nv_add_u32 v{T}, v{T}, v{T+1}")
        a(f"s_lshl_b32 s11, s10, 9\nv_add_u32 v{T}, s11, v{T}")
        a("s_mov_b32 exec_hi, 0")
        a(f"ds_write_b128 v{T}, {vr(D,4)} offset:{OW}")
        a("s_waitcnt lgkmcnt(0)")
        a("s_barrier")
        a("s_endpgm")

    def head_loads(self, srdn, stride, VO, W):
        a = self.a
        for jj in range(10):
            for par in range(2):
                a(f"s_mov_b32 s12, {jj*64*stride + par*stride}")
                a(f"buffer_load_dwordx4 {vr(W+8*jj+4*par,4)}, v{VO}, {srd(srdn)}, s12 offen nt")

    def publish8(self, R, T, off_sgpr, nblk):
        a = self.a
        a(f"v_mov_b32_dpp v{T}, v{R} row_ror:8 row_mask:0xf bank_mask:0xf")
        a(f"v_cvt_pk_bf16_f32 v{T+2}, v{R}, v{T}\nv_mov_b32 v{T+3}, s{sT}")
        a(f"v_and_b32 v{T}, 1, v1\nv_lshlrev_b32 v{T}, 5, v{T}\nv_lshrrev_b32 v{T+1}, 4, v1\nv_lshl_add_u32 v{T}, v{T+1}, 3, v{T}")
        m = 0x00030003 if nblk == 2 else 0x00010001
        a(f"s_mov_b32 exec_lo, {m}\ns_mov_b32 exec_hi, {m}")
        a(f"buffer_store_dwordx2 {vr(T+2,2)}, v{T}, {srd(SW)}, s{off_sgpr} offen sc1")
        a("s_mov_b64 exec, -1")

    def h0(self):
        a = self.a
        VO, T, ACC, XS, CA, W = 2, 4, 12, 20, 28, 40
        a("L_h0:")
        a(f"s_cmp_ge_u32 s{sR}, 30\ns_cbranch_scc1 L_hjoin")
        self.mksrd(SA, P_WM, 640 * 7680); self.mksrd(SB, P_C, 1280); self.mksrd(SC, P_X, 1280)
        a(f"s_mul_i32 s9, s{sX}, 10\ns_add_u32 s9, s9, s{sR}")
        a(f"s_mul_i32 s10, s{sX}, 20\ns_add_u32 s10, s10, s{sR}\ns_sub_u32 s10, s10, 10")
        a(f"s_lshl_b32 s13, s9, 4\ns_lshl_b32 s11, s10, 5\ns_add_u32 s11, s11, 2560")
        a(f"s_lshl_b32 s15, s9, 5\ns_add_u32 s15, s15, {HG}\ns_lshl_b32 s12, s10, 6\ns_add_u32 s12, s12, {MG}")
        a(f"s_cmp_lt_u32 s{sR}, 10\ns_cselect_b32 s13, s13, s11\ns_cselect_b32 s15, s15, s12\ns_mov_b32 s14, 1280\ns_cselect_b32 s14, s14, 16")
        a(f"v_lshrrev_b32 v{T}, 1, v1\nv_and_b32 v{T+1}, 1, v1")
        a(f"v_mul_u32_u24 v{VO}, 15360, v{T}\nv_mul_u32_u24 v{T+1}, s14, v{T+1}\nv_add3_u32 v{VO}, v{VO}, v{T+1}, s13")
        a(f"v_lshlrev_b32 v{T}, 2, v{T}\nv_lshlrev_b32 v{T+1}, 2, v1")
        for jj in range(10): a(f"buffer_load_dword v{CA+jj}, v{T}, {srd(SB)}, 0 offen offset:{128*jj}")
        for i in range(5): a(f"buffer_load_dword v{XS+i}, v{T+1}, {srd(SC)}, 0 offen offset:{256*i}")
        a(f"v_lshrrev_b32 v{T+2}, 3, v1\nv_lshlrev_b32 v{T+2}, 1, v{T+2}\ns_lshl_b32 s11, s9, 4")
        a(f"buffer_load_ushort v{XS+5}, v{T+2}, {srd(SC)}, s11 offen")
        self.head_loads(SA, 7680, VO, W)
        a("s_waitcnt vmcnt(26)")
        for jj in range(10):
            a(f"v_lshlrev_b32 v{T}, 16, v{CA+jj}\nv_and_b32 v{T+1}, s{sHIMASK}, v{CA+jj}")
            self.silu(T, T, T + 2); self.silu(T + 1, T + 1, T + 3)
            a(f"v_cvt_pk_bf16_f32 v{CA+jj}, v{T}, v{T+1}")
        a("s_waitcnt vmcnt(20)")
        S1, S2 = XS + 6, XS + 7
        a(f"v_mov_b32 v{S1}, 0\nv_mov_b32 v{S2}, 0")
        for i in range(5):
            a(f"v_lshlrev_b32 v{T}, 16, v{XS+i}\nv_and_b32 v{T+1}, s{sHIMASK}, v{XS+i}")
            a(f"v_add_f32 v{S1}, v{S1}, v{T}\nv_fmac_f32 v{S2}, v{T}, v{T}\nv_add_f32 v{S1}, v{S1}, v{T+1}\nv_fmac_f32 v{S2}, v{T+1}, v{T+1}")
        self.dpp_red("v_add_f32", [S1, S2], [self.X1, self.X2, self.R4, self.R8])
        self.allred_rows("v_add_f32", [S1, S2], [T, T + 1])
        self.ln_scalars(S1, S2, T)
        N = XS + 5
        a(f"v_lshlrev_b32 v{N}, 16, v{N}\nv_sub_f32 v{N}, v{N}, v{S1}")
        self.rbf(N, N)
        a(f"v_mul_f32 v{N}, v{N}, v{S2}")
        self.rbf(N, N)
        for j in range(8): a(f"v_mov_b32 v{ACC+j}, 0")
        free = 3
        for jj in range(10):
            a(f"s_waitcnt vmcnt({18-2*jj})")
            E = list(range(W + 8 * jj, W + 8 * jj + 4)); O = list(range(W + 8 * jj + 4, W + 8 * jj + 8))
            P, free = self.preperm(E, O, free)
            for j in range(8): a(f"v_dot2c_f32_bf16 v{ACC+j}, v{P[j]}, v{CA+jj}")
        R = T + 4
        self.reduce8(list(range(ACC, ACC + 8)), R)
        a(f"v_add_f32_dpp v{R}, v{R}, v{R} row_shl:4 row_mask:0xf bank_mask:0x5")
        self.dpp_red("v_add_f32", [R], [self.X2])
        a("s_waitcnt lgkmcnt(0)")
        a(f"s_mul_i32 s{sT}, s{sT}, 1664525\ns_add_u32 s{sT}, s{sT}, 1013904223")
        a(f"s_cmp_lt_u32 s{sR}, 10\ns_cbranch_scc1 L_h0_h")
        self.publish8(R, T, 15, 2)
        self.stamp(1)
        a("s_branch L_hjoin2")
        a("L_h0_h:")
        self.rbf(R, R)
        a(f"v_mov_b32_dpp v{T}, v{R} {self.X1} row_mask:0xf bank_mask:0xf")
        a(f"v_add_f32 v{T}, 1.0, v{T}")
        self.rbf(T, T)
        a(f"v_mul_f32 v{T}, v{N}, v{T}")
        self.rbf(T, T)
        a(f"v_add_f32 v{R}, v{T}, v{R}")
        self.publish8(R, T, 15, 1)
        self.stamp(1)
        a("s_branch L_hjoin2")

    def h1(self):
        a = self.a
        VO, T, ACC, HP, W = 2, 4, 12, 20, 40
        a("L_h1:")
        self.mksrd(SA, P_WQ, 640 * 8192)
        a(f"s_lshl_b32 s13, s{sCI}, 5")
        a(f"v_lshrrev_b32 v{T}, 1, v1\nv_and_b32 v{T+1}, 1, v1")
        a(f"v_lshlrev_b32 v{VO}, 14, v{T}\nv_lshlrev_b32 v{T+1}, 4, v{T+1}\nv_add3_u32 v{VO}, v{VO}, v{T+1}, s13")
        self.head_loads(SA, 8192, VO, W)
        a(f"v_lshlrev_b32 v{VO}, 3, v{T}")
        free = 3
        PP = []
        for jj in range(10):
            a(f"s_waitcnt vmcnt({18-2*jj})")
            E = list(range(W + 8 * jj, W + 8 * jj + 4)); O = list(range(W + 8 * jj + 4, W + 8 * jj + 8))
            P, free = self.preperm(E, O, free)
            PP.append(P)
        for j in range(8): a(f"v_mov_b32 v{ACC+j}, 0")
        a("s_waitcnt lgkmcnt(0)")
        a(f"s_mul_i32 s{sT}, s{sT}, 1664525\ns_add_u32 s{sT}, s{sT}, 1013904223")
        a(f"s_mov_b32 s12, {HG}")
        def loads():
            for jj in range(10): a(f"buffer_load_dwordx2 {vr(HP+2*jj,2)}, v{VO}, {srd(SW)}, s12 offen offset:{256*jj} sc1")
        self.poll(loads, lambda: self.inv_tags([HP + 2 * jj + 1 for jj in range(10)], T))
        self.stamp(2)
        for jj in range(10):
            for j in range(8): a(f"v_dot2c_f32_bf16 v{ACC+j}, v{PP[jj][j]}, v{HP+2*jj}")
        R = T + 4
        self.reduce8(list(range(ACC, ACC + 8)), R)
        a(f"v_add_f32_dpp v{R}, v{R}, v{R} row_shl:4 row_mask:0xf bank_mask:0x5")
        self.dpp_red("v_add_f32", [R], [self.X2])
        a(f"s_lshl_b32 s15, s{sCI}, 6\ns_add_u32 s15, s15, {QG}")
        self.publish8(R, T, 15, 2)
        a(f"s_lshr_b32 s15, s{sCI}, 3\ns_lshl_b32 s15, s15, 9\ns_add_u32 s15, s15, {QG}")
        a(f"v_lshlrev_b32 v{VO}, 3, v1")
        self.poll(lambda: a(f"buffer_load_dwordx2 {vr(HP,2)}, v{VO}, {srd(SW)}, s15 offen sc1"), lambda: self.inv_tags([HP + 1], T))
        a(f"v_lshlrev_b32 v{VO}, 2, v1")
        a(f"ds_write_b32 v{VO}, v{HP} offset:{QL}")
        self.stamp(3)
        a("s_waitcnt lgkmcnt(0)")
        a("s_branch L_hjoin2")

    def h2(self):
        a = self.a
        a("L_h2:")
        a("v_mov_b32 v4, -1\nv_mov_b32 v5, -1\nv_lshlrev_b32 v2, 3, v1\nv_lshlrev_b32 v3, 2, v1")
        a(f"s_lshl_b32 s12, s{sCI}, 9\ns_add_u32 s12, s12, {OA}")
        a(f"buffer_store_dwordx2 v[4:5], v2, {srd(SW)}, s12 offen sc1")
        a("s_mov_b64 exec, 0xffff")
        a(f"ds_write_b32 v3, v4 offset:{MLW}")
        a("s_mov_b64 exec, -1")
        a(f"s_cmp_ge_u32 s{sR}, 20\ns_cbranch_scc1 L_h2_gu")
        a(f"s_mul_i32 s12, s{sX}, 2560\ns_lshl_b32 s13, s{sR}, 7\ns_add_u32 s12, s12, s13\ns_add_u32 s12, s12, {YB}")
        a("s_mov_b32 exec_hi, 0")
        a(f"buffer_store_dword v4, v3, {srd(SW)}, s12 offen sc1")
        a("s_mov_b64 exec, -1")
        a("s_branch L_h2_end")
        a("L_h2_gu:")
        a(f"s_cmp_ge_u32 s{sR}, 27\ns_cbranch_scc1 L_h2_end")
        a(f"s_mul_i32 s12, s{sX}, 7\ns_add_u32 s12, s12, s{sR}\ns_sub_u32 s12, s12, 20")
        a(f"s_cmp_ge_u32 s12, 54\ns_cbranch_scc1 L_h2_end")
        a(f"s_lshl_b32 s12, s12, 6\ns_add_u32 s12, s12, {GU}")
        a("s_mov_b64 exec, 0xffff")
        a(f"buffer_store_dword v4, v3, {srd(SW)}, s12 offen sc1")
        a("s_mov_b64 exec, -1")
        a("L_h2_end:")
        a("s_waitcnt vmcnt(0)")
        a("s_branch L_hjoin")

    def tail(self):
        a = self.a
        T = 2
        GA, SBv, CB1, XV = 20, 24, 28, 32
        W = 40
        G = 120
        ACC = 152
        FREE = 160
        sROLE, sIDX, sJ = 9, 10, 11
        a("L_hjoin:")
        a("s_waitcnt lgkmcnt(0)")
        a(f"s_mul_i32 s{sT}, s{sT}, 1664525\ns_add_u32 s{sT}, s{sT}, 1013904223")
        a("L_hjoin2:")
        a("s_barrier")
        self.mksrd(SC, P_X, 1280)
        a(f"s_mul_i32 s{sIDX}, s{sX}, 7\ns_add_u32 s{sIDX}, s{sIDX}, s{sR}\ns_sub_u32 s{sIDX}, s{sIDX}, 20")
        a(f"s_mul_i32 s{sJ}, s{sX}, 10\ns_add_u32 s{sJ}, s{sJ}, s{sR}")
        a(f"s_mov_b32 s{sROLE}, 1\ns_cmp_lt_u32 s{sR}, 20\ns_cbranch_scc1 L_pre_wo")
        a(f"s_mov_b32 s{sROLE}, 0\ns_cmp_ge_u32 s{sR}, 27\ns_cbranch_scc1 L_pre_done\ns_cmp_ge_u32 s{sIDX}, 54\ns_cbranch_scc1 L_pre_done")
        a(f"s_mov_b32 s{sROLE}, 2")
        a(f"s_cmp_eq_u32 s{sWAVE}, 3\ns_cbranch_scc1 L_pre_done")
        a(f"v_cmp_gt_u32 vcc, 160, v0\ns_mov_b64 exec, vcc")
        a(f"v_lshlrev_b32 v{T}, 4, v0\nv_lshlrev_b32 v{T+1}, 3, v0")
        a(f"buffer_load_dwordx2 {vr(G+12,2)}, v{T+1}, {srd(SC)}, 0 offen")
        a(f"s_mov_b32 s12, {MG}\ns_mov_b32 s13, {MG+5120}")
        def loads():
            a(f"buffer_load_dwordx4 {vr(G,4)}, v{T}, {srd(SW)}, s12 offen sc1")
            a(f"buffer_load_dwordx4 {vr(G+4,4)}, v{T}, {srd(SW)}, s12 offen offset:2560 sc1")
            a(f"buffer_load_dwordx4 {vr(G+8,4)}, v{T}, {srd(SW)}, s13 offen sc1")
        self.poll(loads, lambda: self.inv_tags([G + 1, G + 3, G + 5, G + 7, G + 9, G + 11], T + 2))
        for dst, src in ((GA, (G, G + 2)), (SBv, (G + 4, G + 6)), (CB1, (G + 8, G + 10)), (XV, (G + 12, G + 13))):
            for h in range(2):
                a(f"v_lshlrev_b32 v{dst+2*h}, 16, v{src[h]}\nv_and_b32 v{dst+2*h+1}, s{sHIMASK}, v{src[h]}")
        for i in range(4): a(f"v_add_f32 v{CB1+i}, 1.0, v{CB1+i}")
        for i in range(4): self.rbf(CB1 + i, CB1 + i)
        a("s_mov_b64 exec, -1")
        a("s_branch L_pre_done")
        a("L_pre_wo:")
        a(f"s_cmp_ge_u32 s{sR}, 10\ns_cbranch_scc1 L_pre_done\ns_cmp_lg_u32 s{sWAVE}, 0\ns_cbranch_scc1 L_pre_done")
        a(f"v_and_b32 v{T+1}, 7, v1\nv_lshrrev_b32 v{T}, 1, v{T+1}\nv_lshlrev_b32 v{T}, 3, v{T}\nv_lshlrev_b32 v{T+1}, 1, v{T+1}")
        a(f"s_lshl_b32 s14, s{sJ}, 4\ns_lshl_b32 s12, s{sJ}, 5\ns_add_u32 s12, s12, {MG}\ns_add_u32 s13, s12, {3*2560}")
        a(f"buffer_load_ushort v{XV}, v{T+1}, {srd(SC)}, s14 offen")
        def loads():
            a(f"buffer_load_dwordx2 {vr(G,2)}, v{T}, {srd(SW)}, s12 offen sc1")
            a(f"buffer_load_dwordx2 {vr(G+2,2)}, v{T}, {srd(SW)}, s13 offen sc1")
        self.poll(loads, lambda: self.inv_tags([G + 1, G + 3], T + 2))
        a(f"v_and_b32 v{T}, 1, v1\nv_cmp_eq_u32 vcc, 1, v{T}")
        for dst, src in ((GA, G), (SBv, G + 2)):
            a(f"v_lshlrev_b32 v{T}, 16, v{src}\nv_and_b32 v{T+1}, s{sHIMASK}, v{src}\nv_cndmask_b32 v{dst}, v{T}, v{T+1}, vcc")
        a(f"v_lshlrev_b32 v{XV}, 16, v{XV}")
        a("L_pre_done:")
        MW, LW = G, G + 1
        a(f"v_and_b32 v{T}, 7, v1\nv_lshlrev_b32 v{T+1}, 3, v{T}")
        self.poll(lambda: a(f"ds_read_b64 {vr(MW,2)}, v{T+1} offset:{MLW}"), lambda: self.inv_poison([MW], T + 2), sleep=4, lds=True)
        self.stamp(4)
        OCT = [self.X1, self.X2, self.HM]
        PB = G + 4
        a(f"v_mov_b32 v{PB}, v{MW}")
        self.dpp_red("v_max_f32", [PB], OCT)
        a(f"v_sub_f32 v{T+2}, v{MW}, v{PB}\nv_mul_f32 v{T+2}, {LOG2E}, v{T+2}\nv_exp_f32 v{T+2}, v{T+2}\nv_mul_f32 v{PB+2}, v{T+2}, v{LW}")
        self.dpp_red("v_add_f32", [PB + 2], OCT)
        a(f"v_mov_b32 v{PB+1}, s{sT}\nv_mov_b32 v{PB+3}, s{sT}")
        a(f"s_cmp_lg_u32 s{sWAVE}, 0\ns_cbranch_scc1 L_ml_nopub")
        a(f"s_lshl_b32 s12, s{sCI}, 4\ns_add_u32 s12, s12, {MLG}\nv_mov_b32 v{T+2}, 0")
        a("s_mov_b64 exec, 1")
        a(f"buffer_store_dwordx4 {vr(PB,4)}, v{T+2}, {srd(SW)}, s12 offen sc1")
        a("s_mov_b64 exec, -1")
        a("L_ml_nopub:")
        HQ, FL = G + 8, G + 12
        a(f"v_lshlrev_b32 v{T+1}, 4, v{T}\nv_lshlrev_b32 v{T+4}, 4, v0")
        a(f"s_lshr_b32 s12, s{sCI}, 3\ns_lshl_b32 s12, s12, 7\ns_add_u32 s12, s12, {MLG}\ns_mov_b32 s13, {MLG}")
        def loads():
            a(f"buffer_load_dwordx4 {vr(HQ,4)}, v{T+1}, {srd(SW)}, s12 offen sc1")
            a(f"buffer_load_dword v{FL}, v{T+4}, {srd(SW)}, s13 offen offset:4 sc1")
        self.poll(loads, lambda: self.inv_tags([HQ + 1, HQ + 3, FL], T + 2), sleep=4)
        self.stamp(5)
        a(f"v_mov_b32 v{PB}, v{HQ}")
        self.dpp_red("v_max_f32", [PB], OCT)
        a(f"v_sub_f32 v{T+2}, v{HQ}, v{PB}\nv_mul_f32 v{T+2}, {LOG2E}, v{T+2}\nv_exp_f32 v{T+2}, v{T+2}\nv_mul_f32 v{PB+2}, v{T+2}, v{HQ+2}")
        self.dpp_red("v_add_f32", [PB + 2], OCT)
        a(f"v_rcp_f32 v{PB+2}, v{PB+2}")
        a(f"v_sub_f32 v{T+2}, v{MW}, v{PB}\nv_mul_f32 v{T+2}, {LOG2E}, v{T+2}\nv_exp_f32 v{T+2}, v{T+2}\nv_mul_f32 v{T+2}, v{T+2}, v{PB+2}")
        for w in range(8): a(f"v_readlane_b32 s{sWGT+w}, v{T+2}, {w}")
        a(f"s_cmp_eq_u32 s{sROLE}, 0\ns_cbranch_scc1 L_w_done\ns_cmp_eq_u32 s{sROLE}, 2\ns_cbranch_scc1 L_w_gu")
        self.mksrd(SA, P_WO, 4096 * 1280)
        a(f"s_mul_i32 s12, s{sX}, {512*1280}\ns_lshl_b32 s13, s{sR}, 6\ns_add_u32 s12, s12, s13\ns_add_u32 s13, s12, 5120")
        a(f"v_lshrrev_b32 v{T}, 2, v0\nv_mul_u32_u24 v{T}, 10240, v{T}\nv_and_b32 v{T+1}, 3, v0\nv_lshl_add_u32 v{T}, v{T+1}, 4, v{T}")
        for i in range(8): a(f"buffer_load_dwordx4 {vr(W+4*i,4)}, v{T}, {srd(SA)}, s{12+i//4} offen offset:{1280*(i%4)} nt")
        a(f"s_cmp_ge_u32 s{sR}, 10\ns_cbranch_scc1 L_w_done")
        self.mksrd(SB, P_WD, 1728 * 1280)
        a(f"s_lshl_b32 s12, s{sJ}, 4\ns_add_u32 s13, s12, 5120\nv_mul_u32_u24 v{T}, 10240, v0")
        for i in range(8): a(f"buffer_load_dwordx4 {vr(W+32+4*i,4)}, v{T}, {srd(SB)}, s{12+i//4} offen offset:{1280*(i%4)} nt")
        a("s_branch L_w_done")
        a("L_w_gu:")
        a(f"s_cmp_lt_u32 s{sWAVE}, 2\ns_cselect_b32 s14, s{P_WG}, s{P_WU}\ns_cselect_b32 s15, s{P_WG+1}, s{P_WU+1}")
        self.mksrd(SA, 14, 640 * 3456)
        a(f"v_bfe_u32 v{T+2}, v0, 2, 5\nv_and_b32 v{T+1}, 3, v0\nv_lshlrev_b32 v{T+1}, 4, v{T+1}\ns_lshl_b32 s13, s{sIDX}, 6\nv_add_u32 v{T+1}, s13, v{T+1}")
        a(f"v_mul_u32_u24 v{T}, {8*3456}, v{T+2}\nv_add_u32 v{T}, v{T}, v{T+1}")
        a(f"v_mul_u32_u24 v{T+3}, {4*3456}, v{T+2}\nv_add_u32 v{T+3}, v{T+3}, v{T+1}")
        rows = [(T, i) for i in range(8)] + [(T, 256 + i) for i in range(8)] + [(T + 3, 512 + i) for i in range(4)]
        for i, (vo, r) in enumerate(rows):
            if i % 2 == 0: a(f"s_mov_b32 s12, {r*3456}")
            a(f"buffer_load_dwordx4 {vr(W+4*i,4)}, v{vo}, {srd(SA)}, s12 offen offset:{3456*(i%2)} nt")
        a("L_w_done:")
        a(f"v_lshlrev_b32 v{T}, 2, v0")
        a(f"s_lshl_b32 s12, s{sCI}, 9\ns_add_u32 s12, s12, {OA}")
        a("s_barrier")
        self.stamp(6)
        a(f"s_cmp_ge_u32 s{sWAVE}, 2\ns_cbranch_scc1 L_oa_done")
        for w in range(8): a(f"ds_read_b32 v{G+w}, v{T} offset:{OW+512*w}")
        for w in range(8):
            a(f"s_waitcnt lgkmcnt({7-w})" if not self.stamps else "s_waitcnt lgkmcnt(0)")
            if w == 0: a(f"v_mul_f32 v{T+1}, s{sWGT}, v{G}")
            else: a(f"v_fmac_f32 v{T+1}, s{sWGT+w}, v{G+w}")
        a(f"v_min_u32 v{T+1}, 0xfffffffe, v{T+1}")
        a(f"buffer_store_dword v{T+1}, v{T}, {srd(SW)}, s12 offen sc1")
        self.stamp(7)
        a("L_oa_done:")
        a(f"s_cmp_eq_u32 s{sROLE}, 0\ns_cbranch_scc1 L_fin\ns_cmp_eq_u32 s{sROLE}, 2\ns_cbranch_scc1 L_gu")
        acc = list(range(ACC, ACC + 8))
        def part_write(R, base):
            a(f"s_mov_b32 exec_lo, 0x0f0f0f0f\ns_mov_b32 exec_hi, 0x0f0f0f0f")
            a(f"ds_write_b32 v{T+6}, v{R} offset:{base}")
            a("s_mov_b64 exec, -1")
        def part_addr():
            a(f"v_and_b32 v{T+6}, 3, v1\nv_lshlrev_b32 v{T+6}, 7, v{T+6}\nv_lshrrev_b32 v{T+7}, 3, v1\nv_lshl_add_u32 v{T+6}, v{T+7}, 4, v{T+6}")
            a(f"s_lshl_b32 s14, s{sWAVE}, 2\nv_add_u32 v{T+6}, s14, v{T+6}\nv_lshlrev_b32 v{T+7}, 4, v1")
        a("s_waitcnt vmcnt(0)")
        free = FREE; PW_ = []; PD_ = []
        for p in range(4):
            P, free = self.preperm(list(range(W + 8 * p, W + 8 * p + 4)), list(range(W + 8 * p + 4, W + 8 * p + 8)), free); PW_.append(P)
        for p in range(4):
            P, free = self.preperm(list(range(W + 32 + 8 * p, W + 32 + 8 * p + 4)), list(range(W + 32 + 8 * p + 4, W + 32 + 8 * p + 8)), free); PD_.append(P)
        part_addr()
        for j in range(8): a(f"v_mov_b32 v{ACC+j}, 0")
        a(f"v_and_b32 v{T}, 3, v0\nv_lshlrev_b32 v{T}, 10, v{T}\nv_bfe_u32 v{T+1}, v0, 2, 4\nv_lshl_add_u32 v{T}, v{T+1}, 5, v{T}")
        a(f"s_lshl_b32 s12, s{sX}, 14\ns_lshl_b32 s13, s{sWAVE}, 12\ns_add_u32 s12, s12, s13\ns_add_u32 s12, s12, {OA}")
        a(f"s_mul_i32 s15, s{sX}, 2560\ns_lshl_b32 s13, s{sR}, 7\ns_add_u32 s15, s15, s13\ns_add_u32 s15, s15, {YB}")
        def loads():
            for i, off in enumerate((0, 16, 512, 528)):
                a(f"buffer_load_dwordx4 {vr(G+4*i,4)}, v{T}, {srd(SW)}, s12 offen offset:{off} sc1")
        self.poll(loads, lambda: self.inv_poison(range(G, G + 16), T + 2))
        self.stamp(8)
        for i in range(8): a(f"v_add_f32 v{G+i}, v{G+i}, v{G+8+i}")
        self.dpp_red("v_add_f32", range(G, G + 8), [self.X1, self.X2])
        for p in range(4): a(f"v_cvt_pk_bf16_f32 v{G+8+p}, v{G+2*p}, v{G+2*p+1}")
        for p in range(4):
            for j in range(8): a(f"v_dot2c_f32_bf16 v{ACC+j}, v{PW_[p][j]}, v{G+8+p}")
        R = T + 4
        self.reduce8(acc, R)
        a(f"v_add_f32_dpp v{R}, v{R}, v{R} row_shl:4 row_mask:0xf bank_mask:0x5")
        part_write(R, PW)
        a("s_waitcnt lgkmcnt(0)\ns_barrier")
        a(f"s_cmp_lg_u32 s{sWAVE}, 0\ns_cbranch_scc1 L_wo_done")
        a("s_mov_b32 exec_hi, 0")
        a(f"ds_read_b128 {vr(G,4)}, v{T+7} offset:{PW}\nv_lshlrev_b32 v{T}, 2, v1\ns_waitcnt lgkmcnt(0)")
        a(f"v_add_f32 v{G}, v{G}, v{G+1}\nv_add_f32 v{G+2}, v{G+2}, v{G+3}\nv_add_f32 v{G}, v{G}, v{G+2}\nv_min_u32 v{G}, 0xfffffffe, v{G}")
        a(f"buffer_store_dword v{G}, v{T}, {srd(SW)}, s15 offen sc1")
        a("s_mov_b64 exec, -1")
        self.stamp(9)
        a("L_wo_done:")
        a(f"s_cmp_ge_u32 s{sR}, 10\ns_cbranch_scc1 L_fin")
        for j in range(8): a(f"v_mov_b32 v{ACC+j}, 0")
        a(f"s_cmp_lg_u32 s{sWAVE}, 0\ns_cbranch_scc1 L_dn_x1done")
        a(f"v_lshrrev_b32 v{T}, 3, v1\nv_mul_u32_u24 v{T}, 2560, v{T}\nv_and_b32 v{T+1}, 7, v1\nv_lshl_add_u32 v{T}, v{T+1}, 2, v{T}")
        a(f"s_lshl_b32 s12, s{sJ}, 5\ns_add_u32 s12, s12, {YB}")
        self.poll(lambda: a(f"buffer_load_dword v{G}, v{T}, {srd(SW)}, s12 offen sc1"), lambda: self.inv_poison([G], T + 2))
        self.dpp_red("v_add_f32", [G], [self.R8])
        self.allred_rows("v_add_f32", [G], [T])
        self.rbf(G, G)
        a(f"v_mul_f32 v{G}, v{GA}, v{G}")
        self.rbf(G, G)
        a(f"v_add_f32 v{XV}, v{XV}, v{G}")
        self.rbf(XV, XV)
        self.mksrd(SD, P_OUT, 1280)
        a("L_dn_x1done:")
        for i in range(4): a(f"v_mov_b32 v{G+i}, 0")
        a(f"v_lshlrev_b32 v{T}, 4, v0\ns_mov_b32 s12, {GU}")
        a(f"v_lshrrev_b32 v{T+6}, 3, v1\nv_lshlrev_b32 v{T+6}, 4, v{T+6}\nv_add_u32 v{T+6}, s14, v{T+6}")
        a(f"v_cmp_gt_u32 vcc, 216, v0\ns_mov_b64 exec, vcc")
        self.poll(lambda: a(f"buffer_load_dwordx4 {vr(G,4)}, v{T}, {srd(SW)}, s12 offen sc1"), lambda: self.inv_poison(range(G, G + 4), T + 2))
        a("s_mov_b64 exec, -1")
        self.stamp(10)
        for p in range(4):
            for j in range(8): a(f"v_dot2c_f32_bf16 v{ACC+j}, v{PD_[p][j]}, v{G+p}")
        self.reduce8(acc, R)
        self.dpp_red("v_add_f32", [R], OCT)
        a(f"s_mov_b32 exec_lo, 0x01010101\ns_mov_b32 exec_hi, 0x01010101")
        a(f"ds_write_b32 v{T+6}, v{R} offset:{PD}")
        a("s_mov_b64 exec, -1")
        a("s_waitcnt lgkmcnt(0)\ns_barrier")
        a(f"s_cmp_lg_u32 s{sWAVE}, 0\ns_cbranch_scc1 L_fin")
        self.mksrd(SD, P_OUT, 1280)
        a("s_mov_b64 exec, 0xff")
        a(f"ds_read_b128 {vr(G,4)}, v{T+7} offset:{PD}\nv_lshlrev_b32 v{T}, 1, v1\ns_lshl_b32 s12, s{sJ}, 4\ns_waitcnt lgkmcnt(0)")
        a(f"v_add_f32 v{G}, v{G}, v{G+1}\nv_add_f32 v{G+2}, v{G+2}, v{G+3}\nv_add_f32 v{G}, v{G}, v{G+2}")
        self.rbf(G, G)
        a(f"v_mul_f32 v{G}, v{SBv}, v{G}")
        self.rbf(G, G)
        a(f"v_add_f32 v{G}, v{XV}, v{G}\nv_cvt_pk_bf16_f32 v{G}, v{G}, v{G}")
        a(f"buffer_store_short v{G}, v{T}, {srd(SD)}, s12 offen")
        a(f"s_cmp_lg_u32 s2, 0\ns_cbranch_scc1 L_fin")
        a("s_mov_b64 exec, 1")
        a(f"v_mov_b32 v{G+1}, s{sT}\nv_mov_b32 v{T}, 0")
        a(f"buffer_store_dword v{G+1}, v{T}, {srd(SW)}, 0 offen sc1")
        a("s_branch L_fin")
        a("L_gu:")
        a("s_waitcnt vmcnt(0)")
        free = FREE; PG_ = []
        for p in range(10):
            P, free = self.preperm(list(range(W + 8 * p, W + 8 * p + 4)), list(range(W + 8 * p + 4, W + 8 * p + 8)), free); PG_.append(P)
        part_addr()
        for j in range(8): a(f"v_mov_b32 v{ACC+j}, 0")
        S1, S2 = T + 8, T + 9
        a(f"v_mov_b32 v{S1}, 0\nv_mov_b32 v{S2}, 0")
        a(f"v_bfe_u32 v{T+10}, v0, 2, 5\nv_lshlrev_b32 v{T+11}, 3, v{T+10}\nv_lshlrev_b32 v{T+10}, 4, v{T+10}")
        a(f"v_lshlrev_b32 v{T+12}, 3, v0\ns_lshl_b32 s13, s{sWAVE}, 3\nv_mov_b32 v{T+13}, s13\nv_mov_b32 v{T+14}, 0")
        a(f"s_lshl_b32 s15, s{sIDX}, 6\ns_add_u32 s15, s15, {GU}")
        a(f"s_cmp_eq_u32 s{sWAVE}, 3\ns_cbranch_scc1 L_gu_s1done")
        a(f"v_lshlrev_b32 v{T}, 4, v0")
        for g in range(4): a(f"s_mov_b32 s{sWGT+g}, {YB+5120*g}")
        a(f"v_cmp_gt_u32 vcc, 160, v0\ns_mov_b64 exec, vcc")
        def loads():
            for g in range(8):
                a(f"buffer_load_dwordx4 {vr(G+4*g,4)}, v{T}, {srd(SW)}, s{sWGT+g//2} offen offset:{2560*(g%2)} sc1")
        self.poll(loads, lambda: self.inv_poison(range(G, G + 32), T + 2))
        self.stamp(8)
        for n in (16, 8, 4):
            for i in range(n): a(f"v_add_f32 v{G+i}, v{G+i}, v{G+n+i}")
        def rbf4(r):
            a(f"v_cvt_pk_bf16_f32 v{T+2}, v{r}, v{r+1}\nv_cvt_pk_bf16_f32 v{T+3}, v{r+2}, v{r+3}")
            a(f"v_lshlrev_b32 v{r}, 16, v{T+2}\nv_and_b32 v{r+1}, s{sHIMASK}, v{T+2}\nv_lshlrev_b32 v{r+2}, 16, v{T+3}\nv_and_b32 v{r+3}, s{sHIMASK}, v{T+3}")
        rbf4(G)
        for i in range(4): a(f"v_mul_f32 v{G+i}, v{GA+i}, v{G+i}")
        rbf4(G)
        for i in range(4): a(f"v_add_f32 v{G+i}, v{XV+i}, v{G+i}")
        rbf4(G)
        for i in range(4): a(f"v_add_f32 v{S1}, v{S1}, v{G+i}\nv_fmac_f32 v{S2}, v{G+i}, v{G+i}")
        a("s_mov_b64 exec, -1")
        self.dpp_red("v_add_f32", [S1, S2], [self.X1, self.X2, self.R4, self.R8])
        self.allred_rows("v_add_f32", [S1, S2], [T + 2, T + 3])
        a("s_mov_b64 exec, 1")
        a(f"ds_write_b64 v{T+13}, {vr(S1,2)} offset:{STL}")
        a("s_mov_b64 exec, -1")
        a("L_gu_s1done:")
        a("s_waitcnt lgkmcnt(0)\ns_barrier")
        a(f"s_cmp_eq_u32 s{sWAVE}, 3\ns_cbranch_scc1 L_gu_s2done")
        a(f"ds_read_b128 {vr(G+4,4)}, v{T+14} offset:{STL}\nds_read_b64 {vr(G+8,2)}, v{T+14} offset:{STL+16}\ns_waitcnt lgkmcnt(0)")
        a(f"v_add_f32 v{S1}, v{G+4}, v{G+6}\nv_add_f32 v{S2}, v{G+5}, v{G+7}\nv_add_f32 v{S1}, v{S1}, v{G+8}\nv_add_f32 v{S2}, v{S2}, v{G+9}")
        self.ln_scalars(S1, S2, T + 2)
        for i in range(4): a(f"v_sub_f32 v{G+i}, v{G+i}, v{S1}")
        rbf4(G)
        for i in range(4): a(f"v_mul_f32 v{G+i}, v{G+i}, v{S2}")
        rbf4(G)
        for i in range(4): a(f"v_mul_f32 v{G+i}, v{G+i}, v{CB1+i}")
        rbf4(G)
        for i in range(4): a(f"v_add_f32 v{G+i}, v{G+i}, v{SBv+i}")
        a(f"v_cvt_pk_bf16_f32 v{T+2}, v{G}, v{G+1}\nv_cvt_pk_bf16_f32 v{T+3}, v{G+2}, v{G+3}")
        a(f"v_cmp_gt_u32 vcc, 160, v0\ns_mov_b64 exec, vcc")
        a(f"ds_write_b64 v{T+12}, {vr(T+2,2)} offset:{H2L}")
        a("s_mov_b64 exec, -1")
        a("L_gu_s2done:")
        a("s_waitcnt lgkmcnt(0)\ns_barrier")
        a(f"ds_read_b128 {vr(G,4)}, v{T+10} offset:{H2L}\nds_read_b128 {vr(G+4,4)}, v{T+10} offset:{H2L+512}\nds_read_b64 {vr(G+8,2)}, v{T+11} offset:{H2L+1024}")
        for p in range(10):
            if p in (0, 4, 8): a(f"s_waitcnt lgkmcnt({2 - p//4})" if not self.stamps else "s_waitcnt lgkmcnt(0)")
            for j in range(8): a(f"v_dot2c_f32_bf16 v{ACC+j}, v{PG_[p][j]}, v{G+p}")
        self.reduce8(acc, R)
        a(f"v_add_f32_dpp v{R}, v{R}, v{R} row_shl:4 row_mask:0xf bank_mask:0x5")
        part_write(R, PG)
        a("s_waitcnt lgkmcnt(0)\ns_barrier")
        a(f"s_cmp_lg_u32 s{sWAVE}, 0\ns_cbranch_scc1 L_fin")
        a("s_mov_b32 exec_hi, 0")
        a(f"ds_read_b128 {vr(G,4)}, v{T+7} offset:{PG}\nv_lshlrev_b32 v{T}, 1, v1\ns_waitcnt lgkmcnt(0)")
        a(f"v_add_f32 v{G}, v{G}, v{G+1}\nv_add_f32 v{G+2}, v{G+2}, v{G+3}")
        a(f"v_cvt_pk_bf16_f32 v{G}, v{G}, v{G+2}\nv_and_b32 v{G+2}, s{sHIMASK}, v{G}\nv_lshlrev_b32 v{G}, 16, v{G}")
        self.silu(G, G, G + 1)
        self.rbf(G, G)
        a(f"v_mul_f32 v{G}, v{G}, v{G+2}")
        a(f"v_mov_b32_dpp v{G+1}, v{G} {self.X1} row_mask:0xf bank_mask:0xf")
        a(f"v_cvt_pk_bf16_f32 v{G}, v{G}, v{G+1}\nv_min_u32 v{G}, 0xfffffffe, v{G}")
        a("s_mov_b32 exec_lo, 0x55555555")
        a(f"buffer_store_dword v{G}, v{T}, {srd(SW)}, s15 offen sc1")
        self.stamp(9)
        a("L_fin:")
        if self.stamps:
            self.stamp(11)
            a(f"s_cmp_ge_u32 s{sWAVE}, 2\ns_cbranch_scc1 L_end")
            a("s_waitcnt lgkmcnt(0)\ns_mov_b64 exec, 1")
            a(f"s_add_u32 s12, s{P_WS}, 0x8000000\ns_addc_u32 s13, s{P_WS+1}, 0")
            a(f"s_mul_i32 s14, s2, 192\ns_mul_i32 s15, s{sWAVE}, 96\ns_add_u32 s14, s14, s15\nv_mov_b32 v2, s14")
            for i in range(12):
                a(f"v_mov_b32 v4, s{STAMP0+2*i}\nv_mov_b32 v5, s{STAMP0+2*i+1}\nglobal_store_dwordx2 v2, v[4:5], s[12:13] offset:{8*i}\ns_nop 1")
        a("L_end:")
        a("s_endpgm")

    def build(self):
        a = self.a
        a.raw(f"; @launch grid=(256,1,1) block=(768,1,1) lds={LDS_BYTES}")
        a.raw('.amdgcn_target "amdgcn-amd-amdhsa--gfx950"')
        a.raw(f".text\n.globl {NAME}_kernel\n.p2align 8\n.type {NAME}_kernel,@function\n{NAME}_kernel:")
        if self.stamps:
            for i in range(2, 24): a(f"s_mov_b32 s{STAMP0+i}, 0")
        self.stamp(0)
        a("s_cmp_ge_u32 s2, 256\ns_cbranch_scc1 L_end")
        a("s_load_dwordx16 s[16:31], s[0:1], 0\ns_load_dwordx8 s[32:39], s[0:1], 64\ns_load_dwordx4 s[40:43], s[0:1], 96")
        a(f"v_lshrrev_b32 v1, 6, v0\nv_readfirstlane_b32 s{sWAVE}, v1\nv_and_b32 v1, 63, v0")
        a(f"s_and_b32 s{sX}, s2, 7\ns_lshr_b32 s{sR}, s2, 3\ns_lshl_b32 s{sCI}, s{sX}, 5\ns_add_u32 s{sCI}, s{sCI}, s{sR}")
        a("s_waitcnt lgkmcnt(0)")
        a(f"s_cmp_ge_u32 s{sWAVE}, 4\ns_cbranch_scc1 L_bulk")
        a("s_setprio 3")
        a(f"s_load_dword s{sT}, s[{P_WS}:{P_WS+1}], 0")
        self.mksrd(SW, P_WS, WS_BYTES)
        a(f"s_mov_b32 s{sBUD}, {self.budget}\ns_mov_b32 s{sPERMLO}, 0x05040100\ns_mov_b32 s{sPERMHI}, 0x07060302\ns_mov_b32 s{sHIMASK}, 0xffff0000")
        a(f"s_cmp_eq_u32 s{sWAVE}, 0\ns_cbranch_scc1 L_h0\ns_cmp_eq_u32 s{sWAVE}, 1\ns_cbranch_scc1 L_h1\ns_cmp_eq_u32 s{sWAVE}, 2\ns_cbranch_scc1 L_h2\ns_branch L_hjoin")
        self.bulk(); self.h0(); self.h1(); self.h2(); self.tail()
        a.raw('.section .rodata,"a"\n.p2align 6')
        a.raw(f".amdhsa_kernel {NAME}_kernel")
        a.raw("  .amdhsa_next_free_vgpr 168\n  .amdhsa_next_free_sgpr 102\n  .amdhsa_accum_offset 168\n  .amdhsa_group_segment_fixed_size 0")
        a.raw("  .amdhsa_kernarg_size 112\n  .amdhsa_user_sgpr_count 2\n  .amdhsa_user_sgpr_kernarg_segment_ptr 1\n  .amdhsa_system_sgpr_workgroup_id_x 1")
        a.raw("  .amdhsa_float_denorm_mode_32 3")
        a.raw(".end_amdhsa_kernel")
        return a.text()

if __name__ == "__main__":
    open("k1.s", "w").write(Gen().build())
    open("k1_st.s", "w").write(Gen(stamps=True).build())
```

```python
import sys, struct
from asmlib import Asm
NAME = "adaLN_cond__gqa_block_cached__swiglu_ffn__decode"

def f32(x): return "0x%08x" % struct.unpack("<I", struct.pack("<f", x))[0]
LOG2E = f32(1.4426950408889634)
NLOG2E = f32(-1.4426950408889634)
SCALE = f32(128 ** -0.5)

PZ, MP, QP = 0x4000, 0x40000, 0x80000
YB = PZ
GUP = PZ + 3 * 16384
OA = PZ + 4 * 16384; REC = 640
MG = OA + 256 * REC
SG = MG + 5120
RC = SG + 128
assert RC + 2048 <= PZ + 240 * 1024 and MG % 128 == 0
WS_BYTES = 0xC0000
PG1 = 416
TK = 376
XG = 448
QL, MLW, ISS, F0L, CNT, DONE, SEL, ROL, OW = 0, 256, 384, 344, 356, 360, 364, 368, 512
STL, PW = 4608, 4736
MGL = 10880
VL = 16000
sWAVE, sX, sR, sCI, sT, sBUD, sTW = 3, 4, 5, 6, 7, 8, 10
P_X, P_K, P_V, P_WQ, P_WO, P_WG, P_WU, P_WD, P_C, P_WM, P_OUT, P_WS = 16, 18, 20, 22, 24, 28, 30, 32, 34, 36, 38, 42
sROLE, sTY, sRA, sRB = 26, 27, 40, 41
SA, SB, SW, SC = 44, 48, 52, 56
sWOFF, sWSTR, sFULL = 60, 61, 62
sWGT = 64
sEX = 72
sPERMLO, sPERMHI, sHIMASK, sWJMP = 74, 75, 76, 77
STAMP0 = 78
FULL = f"s[{sFULL}:{sFULL+1}]"

def srd(n): return f"s[{n}:{n+3}]"
def vr(a, n): return f"v[{a}:{a+n-1}]"

def role_table(mode, GW):
    B = lambda x, r: 8 * r + x
    even = [B(x, r) for r in range(32) for x in (0, 2, 4, 6)]
    odd = [B(x, r) for r in range(32) for x in (1, 3, 5, 7)]
    wo = [(1, k, g) for g in range(GW) for k in range(10)]
    gu = [(2, k, 0) for k in range(54)]
    role = {}
    if mode == 0: order = list(range(256)); dnx = list(range(8))
    elif mode == 1: order = even + odd; dnx = [1, 3, 5, 7]
    elif mode == 2: order = even + odd; dnx = [1, 3, 5, 7]
    elif mode == 3: order = even + odd; dnx = [0, 2, 4, 6]
    elif mode == 4: order = even + odd; dnx = [0, 2, 4, 6]
    SPEC = {8: ((0, 2), (1, 3), ((0, 2), (4, 6))),
            9: ((1, 3), (0, 2), ((4, 6), (0, 2), (1, 3))),
            10: ((4, 6), (1, 3), ((0, 2), (4, 6))),
            11: ((1, 3), (4, 6), ((0, 2), (4, 6), (1, 3))),
            12: ((0, 2, 4, 6), (1, 3), ((0, 2, 4, 6),)),
            13: ((0, 1, 2, 3), (0, 1, 2, 3), ((4, 6), (0, 2), (1, 3))),
            14: ((0, 2), (1, 3, 5), ((4, 6), (0, 2)))}
    if mode in SPEC:
        dnx = list(SPEC[mode][0])
        A = lambda xs: [B(x, r) for r in range(32) for x in xs]
        for b, rl in zip(A(SPEC[mode][1]), gu): role[b] = rl
        gu = []
        order = sum([A(xs) for xs in SPEC[mode][2]], [])
    if mode == 30:
        dnx = list(range(8)); order = list(range(256))
    if mode == 6:
        dnx = [0, 2]
        A = lambda xs: [B(x, r) for r in range(32) for x in xs]
        for b, rl in zip(A((1, 3)), gu): role[b] = rl
        gu = []
        order = A((4, 6)) + A((0, 2)) + A((5, 7))
    if mode == 7:
        dnx = [4, 6]
        A = lambda xs: [B(x, r) for r in range(32) for x in xs]
        for b, rl in zip(A((5, 7)), gu): role[b] = rl
        gu = []
        order = A((0, 2)) + A((4, 6)) + A((1, 3))
    for k in range(40):
        x = dnx[(k // 4) % len(dnx)]; r = 31 - (k % 4) - 4 * ((k // 4) // len(dnx))
        role[B(x, r)] = (3, k, 0)
    free = [b for b in order if b not in role]
    for b, rl in zip(free, (wo + gu) if mode not in (2, 4) else (gu + wo)): role[b] = rl
    assert len(role) == 40 + 54 + 10 * GW
    mg = {B(k % 8, 30 + (k // 8) % 2) if k < 16 else B(k % 8, 29): k for k in range(20)}
    t = []
    for b in range(256):
        ty, a_, b_ = role.get(b, (0, 0, 0))
        t.append(ty | (a_ << 8) | (b_ << 16) | (mg.get(b, 255) << 24))
    return t

def order_table(omode, sh=1):
    wo = [(1, k, g) for g in range(8) for k in range(10)]
    gu = [(2, k, 0) for k in range(54)]; dn = [(3, k, 0) for k in range(40)]
    if omode == 0: s0, s1 = dn + gu, wo
    elif omode == 1: s0, s1 = gu + dn, wo
    elif omode == 2: s0, s1 = wo[:16] + dn + gu, wo[16:]
    elif omode == 3: s0, s1 = wo[:16] + gu + dn, wo[16:]
    elif omode == 5: s0, s1 = gu, wo
    elif omode == 6: s0, s1 = wo[:16] + gu, wo[16:]
    elif omode == 7: s0, s1 = wo[:8] + gu, wo[8:]
    elif omode == 8: s0, s1 = gu + wo[:10], wo[10:]
    elif omode == 4:
        s0 = [x for p in zip(dn, gu) for x in p] + gu[40:]; s1 = wo
    t = []
    for s in (s0, s1):
        s = s + [(0, 0, 0)] * (128 - len(s))
        s = [x for k in range(sh) for x in s[k::sh]]
        t += [ty | (a << 8) | (b << 16) for ty, a, b in s]
    return t

HEADER = """
Fused adaLN + decode attention + SwiGLU FFN, ONE persistent launch (hand-written generator: work/gen10.py + asmlib.py).
256 workgroups (one per CU) x 12 waves: waves 4-11 stream K/V (1024 keys per workgroup), waves 0-3 are helpers.
 head : silu(c)@w_mod and h@wq as 80x128 K-split tiles (masked-A MFMA), exchanged through d_ws as {value,tag} granules;
        tag = LCG(epoch word found in d_ws), only used to tell this launch's hand-offs from an earlier launch's.
 main : QK via v_dot2 + DPP, per-wave true-max softmax, PV via masked-A MFMA; part of V is prefetched to LDS until q arrives.
 tail : split-softmax combine + wo, LayerNorm (folded into the GEMV) + gate/up, down + residual; hand-off slots are poisoned
        at the start of the launch (ordered by the q dependency chain), so every dword validates itself.
        wo / gate-up tiles go to the workgroups that finish their scores first (arrival counter); placement affects speed only.
 every spin is bounded.
"""

WREG = 40 + 4 * 14

class Gen:
    def __init__(self, stamps=0, budget=30000, D=4, NL=18, roles=6, dbg=0, pre1=0, pre2=0, DO=0, GW=8, WCH=8, dry=1, ps=0, extra=0, early=4, pad=-1, pick=-1, tlb=0, rot=1, l2pre=0, eb=0, wback=0, wgu=0, gdone=0, near=1, opol=0, gx=0, amap=1, ov=1, lin=1, jit=0, wsync=0, TD=0, prio=0, dsel=0, dynr=1, omode=6, trig=0, dback=-1, dper=1, dpol=0, din=8, dnd=0, dynm=0, P1=16, msides=1, sh=2):
        self.a = Asm(); self.stamps = stamps; self.budget = budget; self.D = D; self.NL = NL; self.DO = DO
        self.roles = roles; self.dbg = dbg; self.pre1 = pre1; self.pre2 = pre2; self.GW = GW; self.WCH = WCH; self.dry = dry; self.ps = ps; self.extra = extra; self.early = early; self.tlb = tlb; self.sh = sh; self.dynm = dynm; self.P1 = P1; self.msides = msides; self.din = din; self.dnd = dnd; self.dback = dback; self.dper = dper; self.dpol = ' nt' if dpol else ''; self.dynr = dynr; self.omode = omode; self.trig = trig; self.dsel = dsel; self.wsync = wsync; self.TD = TD; self.prio = prio; self.jit = jit; self.near_x = (4, 5, 6, 7) if roles == 7 else (0, 1, 2, 3); self.lin = lin; self.ov = ov; self.amap = amap; self.gx = gx; self.opol = ['', ' sc1', ' sc0 sc1', ' nt'][opol]; self.near = near; self.gdone = gdone; self.wback = wback; self.wgu = wgu; self.eb = eb; self.l2pre = l2pre; self.rot = rot; self.pad = pad; self.pick = pick

    def mksrd(self, s, p, nbytes):
        self.a(f"s_mov_b32 s{s}, s{p}\ns_and_b32 s{s+1}, s{p+1}, 0xffff\ns_mov_b32 s{s+2}, {nbytes}\ns_mov_b32 s{s+3}, 0x20000")

    def stamp(self, i, prog=False):
        if self.stamps == 5 and not prog and i != 0: return
        if prog and self.stamps != 5: return
        if self.stamps: self.a(f"s_memrealtime s[{STAMP0+2*i}:{STAMP0+2*i+1}]")

    def poll(self, loads, invalid, sleep=1, lds=False, tail=False):
        a = self.a
        L, D = a.label("L_poll"), a.label("L_pdone")
        a(f"s_mov_b64 s[{sEX}:{sEX+1}], exec")
        if tail: a(f"s_cbranch_execz {D}")
        a(f"{L}:")
        loads()
        a("s_waitcnt lgkmcnt(0)" if lds else "s_waitcnt vmcnt(0)")
        invalid()
        a(f"s_cbranch_vccz {D} ;nopad")
        a(f"s_cmp_eq_u32 s{sBUD}, 0\ns_cbranch_scc1 {D}\ns_sub_u32 s{sBUD}, s{sBUD}, 1")
        a("s_mov_b64 exec, vcc")
        if sleep: a(f"s_sleep {sleep}")
        a(f"s_branch {L}")
        a(f"{D}:")
        a(f"s_mov_b64 exec, s[{sEX}:{sEX+1}]")

    def poll_pre(self, loads, nloads, pre, invalid, sleep=0, narrow=None, prog=False):
        a = self.a
        L, W, D, S = a.label("L_poll"), a.label("L_pw"), a.label("L_pdone"), a.label("L_ps")
        if narrow: narrow()
        a(f"s_mov_b64 s[{sEX}:{sEX+1}], exec")
        a(f"s_cbranch_execz {S}")
        loads()
        a((f"s_waitcnt vmcnt({nloads})\n" if not prog else "") + f"s_branch {S}2")
        a(f"{S}:")
        a("s_waitcnt vmcnt(0)")
        a(f"{S}2:")
        if narrow: self.unmask()
        pre()
        a(f"s_mov_b64 exec, s[{sEX}:{sEX+1}]")
        a(f"s_cbranch_execz {D}\ns_branch {W}")
        a(f"{L}:")
        loads()
        a(f"{W}:")
        a("s_waitcnt vmcnt(0)")
        invalid()
        a(f"s_cbranch_vccz {D} ;nopad")
        a(f"s_cmp_eq_u32 s{sBUD}, 0\ns_cbranch_scc1 {D}\ns_sub_u32 s{sBUD}, s{sBUD}, 1")
        a("s_mov_b64 exec, vcc")
        if sleep: a(f"s_sleep {sleep}")
        a(f"s_branch {L}")
        a(f"{D}:")
        self.unmask()

    def lds_wait(self, off, n, T, sleep=4):
        a = self.a
        a(f"v_and_b32 v{T}, {n-1}, v1\nv_lshlrev_b32 v{T}, 2, v{T}")
        self.poll(lambda: a(f"ds_read_b32 v{T+1}, v{T} offset:{off}"), lambda: self.inv_poison([T + 1], T + 2), sleep=sleep, lds=True)

    def inv_tags(self, tagregs, tmp):
        a = self.a
        a(f"v_xor_b32 v{tmp}, s{sT}, v{tagregs[0]}")
        for t in tagregs[1:]:
            a(f"v_xor_b32 v{tmp+1}, s{sT}, v{t}\nv_or_b32 v{tmp}, v{tmp}, v{tmp+1}")
        a(f"v_cmp_ne_u32 vcc, 0, v{tmp}")

    def inv_poison(self, regs, tmp):
        a = self.a
        regs = list(regs)
        if len(regs) == 1:
            a(f"v_cmp_eq_u32 vcc, -1, v{regs[0]}"); return
        if len(regs) == 2:
            a(f"v_max_u32 v{tmp}, v{regs[0]}, v{regs[1]}"); rest = []
        else:
            a(f"v_max3_u32 v{tmp}, v{regs[0]}, v{regs[1]}, v{regs[2]}"); rest = regs[3:]
        while len(rest) >= 2:
            a(f"v_max3_u32 v{tmp}, v{tmp}, v{rest[0]}, v{rest[1]}"); rest = rest[2:]
        if rest: a(f"v_max_u32 v{tmp}, v{tmp}, v{rest[0]}")
        a(f"v_cmp_eq_u32 vcc, -1, v{tmp}")

    def reduce8(self, acc, t):
        a = self.a
        for j in range(4): a(f"v_permlane32_swap_b32 v{acc[j]}, v{acc[j+4]}")
        for j in range(4): a(f"v_add_f32 v{acc[j]}, v{acc[j]}, v{acc[j+4]}")
        for j in range(2): a(f"v_permlane16_swap_b32 v{acc[j]}, v{acc[j+2]}")
        for j in range(2): a(f"v_add_f32 v{acc[j]}, v{acc[j]}, v{acc[j+2]}")
        a(f"v_add_f32_dpp v{t}, v{acc[0]}, v{acc[0]} row_ror:8 row_mask:0xf bank_mask:0x3")
        a(f"v_add_f32_dpp v{t}, v{acc[1]}, v{acc[1]} row_ror:8 row_mask:0xf bank_mask:0xc")

    def allred_rows(self, op, regs, tmps):
        a = self.a
        for sw in ("v_permlane16_swap_b32", "v_permlane32_swap_b32"):
            for r, t in zip(regs, tmps): a(f"v_mov_b32 v{t}, v{r}")
            for r, t in zip(regs, tmps): a(f"{sw} v{t}, v{r}")
            for r, t in zip(regs, tmps): a(f"{op} v{r}, v{r}, v{t}")

    def dpp_red(self, op, regs, steps):
        for s in steps:
            for r in regs: self.a(f"{op}_dpp v{r}, v{r}, v{r} {s} row_mask:0xf bank_mask:0xf")

    X1, X2, HM, R4, R8 = "quad_perm:[1,0,3,2]", "quad_perm:[2,3,0,1]", "row_half_mirror", "row_ror:4", "row_ror:8"

    def rbf(self, d, s):
        self.a(f"v_cvt_pk_bf16_f32 v{d}, v{s}, v{s}\nv_and_b32 v{d}, s{sHIMASK}, v{d}")

    def silu(self, d, s, t):
        self.a(f"v_mul_f32 v{t}, {NLOG2E}, v{s}\nv_exp_f32 v{t}, v{t}\nv_add_f32 v{t}, 1.0, v{t}\nv_rcp_f32 v{t}, v{t}\nv_mul_f32 v{d}, v{s}, v{t}")

    def preperm(self, W, npairs, free):
        a = self.a
        PP = []
        for p in range(npairs):
            E = list(range(W + 8 * p, W + 8 * p + 4)); O = list(range(W + 8 * p + 4, W + 8 * p + 8))
            P = []
            for d in range(4):
                a(f"v_perm_b32 v{free}, v{O[d]}, v{E[d]}, s{sPERMLO}")
                a(f"v_perm_b32 v{O[d]}, v{O[d]}, v{E[d]}, s{sPERMHI}")
                P += [free, O[d]]
                free = E[d]
            PP.append(P)
        return PP

    def ln_scalars(self, s1, s2, t):
        a = self.a
        a(f"v_mul_f32 v{s1}, {f32(1/640)}, v{s1}\nv_mul_f32 v{s2}, {f32(1/640)}, v{s2}")
        a(f"v_fma_f32 v{s2}, -v{s1}, v{s1}, v{s2}\nv_max_f32 v{s2}, 0, v{s2}")
        a(f"v_cvt_pk_bf16_f32 v{t}, v{s1}, v{s2}")
        a(f"v_lshlrev_b32 v{s1}, 16, v{t}\nv_and_b32 v{s2}, s{sHIMASK}, v{t}")
        a(f"v_add_f32 v{s2}, {f32(1e-5)}, v{s2}")
        self.rbf(s2, s2)
        a(f"v_sqrt_f32 v{s2}, v{s2}")
        self.rbf(s2, s2)
        a(f"v_rcp_f32 v{s2}, v{s2}")

    def masks(self, MK, T):
        a = self.a
        a(f"v_and_b32 v{T+1}, 15, v0\nv_mov_b32 v{T+2}, 0xffff\nv_mov_b32 v{T+3}, 0xffff0000")
        for i in range(4):
            a(f"v_cmp_eq_u32 vcc, {2*i}, v{T+1}\nv_cndmask_b32 v{MK+i}, 0, v{T+2}, vcc")
            a(f"v_cmp_eq_u32 vcc, {2*i+1}, v{T+1}\nv_cndmask_b32 v{MK+i}, v{MK+i}, v{T+3}, vcc")

    def bulk(self):
        a = self.a
        if self.DO:
            if self.dsel:
                a(f"s_waitcnt lgkmcnt(0)\ns_and_b32 s11, s{sROLE}, 3\ns_bitcmp1_b32 {self.dsel}, s11\ns_cbranch_scc1 L_bulk_odd")
            else: a(f"s_bitcmp1_b32 s2, 0\ns_cbranch_scc1 L_bulk_odd")
            self.bulk_body(32, "e", self.D)
            a("L_bulk_odd:")
            self.bulk_body(32, "o", self.DO)
        else:
            self.bulk_body(32, "o")
        self.bulk_fin()

    def bulk_body(self, N, sfx, Dx=None):
        a = self.a
        Dx = Dx or self.D
        if Dx < 20: Dx *= 10
        D_ = (Dx + 9) // 10; NLS = self.NL
        depth = lambda i: ((i + 1) * Dx) // 10 - (i * Dx) // 10
        VO, Q, MK, A0, D, T, S, RING = 1, 2, 6, 10, 18, 22, 31, 40
        NG = (N + 3) // 4
        assert NG <= 9 and N % 4 == 0
        dest = []
        for t in range(N): dest.append(("r", t) if t < 32 else ("l", t - 32))
        lnext = max(0, N - 32); spare = list(range(N, 32)); late = 0
        for t in range(N):
            if spare: dest.append(("r", spare.pop(0)))
            elif lnext < NLS: dest.append(("l", lnext)); lnext += 1
            else: dest.append(("R", late)); late += 1
        PRE = 2 * N - late
        scratch = [s for s in range(late, min(N, 32))]
        assert len(scratch) >= 8
        scratch = scratch[-8:]
        assert late <= 14 and scratch[0] >= 24
        self.issued = 0; self.m0 = None; self.s12 = None; self.wissued = 0; self.wpos = []
        after = lambda v: (self.issued - 1 - v) + sum(1 for p in self.wpos if p > v)
        def ld():
            i = self.issued
            if i >= 2 * N: return
            t = i % N
            kind, slot = dest[i]
            if i >= depth(i): a(f"s_waitcnt vmcnt({after(i - depth(i))})")
            if self.s12 != t // 4:
                if self.rot == 1: a(f"s_xor_b32 s12, s{14 + (t//4) % 2}, {(t//4)*32768}")
                else: a(f"s_xor_b32 s12, s14, {(t//4)*32768 + [0,2,4,6,1,3,5,7][t//4]*4096}")
                self.s12 = t // 4
            s_ = srd(SA if i < N else SB)
            if kind == "l":
                m = slot * 1024 - (t % 4) * 1024
                if self.m0 != m: a(f"s_add_u32 m0, s13, {m}\ns_nop 0" if m >= 0 else f"s_sub_u32 m0, s13, {-m}\ns_nop 0"); self.m0 = m
                a(f"buffer_load_dwordx4 v{VO}, {s_}, s12 offen offset:{(t%4)*1024} nt lds")
            else:
                a(f"buffer_load_dwordx4 {vr(RING+4*slot,4)}, v{VO}, {s_}, s12 offen offset:{(t%4)*1024} nt")
            self.issued += 1
            if i in (9, 15, 21, 27, 33, 39, 45, 51, 57, 63): self.stamp((i - 3) // 6, prog=True)
            if self.dynm and i == self.P1:
                a(f"s_lshl_b32 s11, s10, 2\nv_mov_b32 v{T+8}, s11\nds_write_b32 v{T+8}, v{T+8} offset:{PG1}")
            if self.trig and i == self.trig:
                a(f"s_lshl_b32 s11, s10, 2\nv_mov_b32 v{T+8}, s11\nds_write_b32 v{T+8}, v{T+8} offset:{ISS}")
        def landed(i, may_issue):
            while self.issued < 2 * N and self.issued - D_ <= i and may_issue(self.issued): ld()
            if self.issued - D_ <= i: a(f"s_waitcnt vmcnt({after(i)})")
        self.issued = 4
        for t in range(4, PRE): ld()
        self.stamp(4)
        self.poll(lambda: a(f"ds_read_b128 {vr(Q,4)}, v{T+1} offset:{QL}"), lambda: self.inv_poison(range(Q, Q + 4), T + 2), sleep=2, lds=True)
        order = list(range(min(NG, 8)))
        if NG > 8: order = [7] + list(range(7)) + [8]
        done_slots = set()
        free_for = lambda i: dest[i][1] in done_slots and not (NG > 8 and dest[i][1] >= 28)
        for n, u in enumerate(order):
            tiles = [t for t in range(4 * u, 4 * u + 4) if t < N]
            landed(tiles[-1], free_for)
            if u == 8: a("s_waitcnt lgkmcnt(0)")
            for d in range(4):
                for b, t in enumerate(tiles):
                    k = RING + 4 * (t if t < 32 else t - 4) + d
                    if d == 0: a(f"v_dot2_f32_bf16 v{T+b}, v{k}, v{Q}, 0")
                    else: a(f"v_dot2_f32_bf16 v{T+b}, v{k}, v{Q+d}, v{T+b}")
            for b in range(len(tiles), 4): a(f"v_mov_b32 v{T+b}, 0xff800000")
            if u < 8: done_slots |= set(tiles)
            if NG > 8 and u == 7:
                landed(N - 1, lambda i: False)
                for t in range(32, N): a(f"ds_read_b128 {vr(RING+4*(t-4),4)}, v{T+7} offset:{1024*(t-32)}")
            if n in (1, 4, 7) and self.issued < 2 * N and free_for(self.issued): ld()
            a(f"v_add_f32_dpp v{T+4}, v{T}, v{T} row_ror:8 row_mask:0xf bank_mask:0x3")
            a(f"v_add_f32_dpp v{T+5}, v{T+1}, v{T+1} row_ror:8 row_mask:0xf bank_mask:0x3")
            a(f"v_add_f32_dpp v{T+4}, v{T+2}, v{T+2} row_ror:8 row_mask:0xf bank_mask:0xc")
            a(f"v_add_f32_dpp v{T+5}, v{T+3}, v{T+3} row_ror:8 row_mask:0xf bank_mask:0xc")
            a(f"v_add_f32_dpp v{S+u}, v{T+4}, v{T+4} row_shl:4 row_mask:0xf bank_mask:0x5")
            a(f"v_add_f32_dpp v{S+u}, v{T+5}, v{T+5} row_shr:4 row_mask:0xf bank_mask:0xa")
        Sr = list(range(S, S + NG))
        self.dpp_red("v_add_f32", Sr, [self.X2, self.X1])
        prs = [(Sr[i], Sr[min(i + 1, NG - 1)]) for i in range(0, NG, 2)]
        for rep in range(2):
            for k, (x, y) in enumerate(prs): a(f"v_cvt_pk_bf16_f32 v{T+k}, v{x}, v{y}")
            for k, (x, y) in enumerate(prs):
                a(f"v_lshlrev_b32 v{x}, 16, v{T+k}")
                if y != x: a(f"v_and_b32 v{y}, s{sHIMASK}, v{T+k}")
            if rep == 0:
                for r in Sr: a(f"v_mul_f32 v{r}, {SCALE}, v{r}")
        M, Ls = T + 4, T + 5
        a(f"v_max3_f32 v{M}, v{Sr[0]}, v{Sr[1]}, v{Sr[2]}")
        rest = Sr[3:]
        while len(rest) >= 2: a(f"v_max3_f32 v{M}, v{M}, v{rest[0]}, v{rest[1]}"); rest = rest[2:]
        if rest: a(f"v_max_f32 v{M}, v{M}, v{rest[0]}")
        self.dpp_red("v_max_f32", [M], [self.R4, self.R8])
        self.allred_rows("v_max_f32", [M], [T])
        ld()
        for r in Sr: a(f"v_sub_f32 v{r}, v{r}, v{M}")
        for r in Sr: a(f"v_mul_f32 v{r}, {LOG2E}, v{r}")
        for r in Sr: a(f"v_exp_f32 v{r}, v{r}")
        a(f"v_add_f32 v{Ls}, v{Sr[0]}, v{Sr[1]}")
        for r in Sr[2:]: a(f"v_add_f32 v{Ls}, v{Ls}, v{r}")
        for r in Sr: a(f"v_cvt_pk_bf16_f32 v{r}, v{r}, v{r}")
        self.dpp_red("v_add_f32", [Ls], [self.R4, self.R8])
        self.allred_rows("v_add_f32", [Ls], [T])
        a(f"v_min_u32 v{M}, 0xfffffffe, v{M}")
        a(f"s_lshl_b32 s11, s10, 3\nv_mov_b32 v{T}, s11")
        a("s_mov_b64 exec, 1")
        a(f"ds_write_b64 v{T}, {vr(M,2)} offset:{MLW}")
        a("s_mov_b64 exec, -1")
        a(f"v_and_b32 v{T}, 15, v0\nv_lshlrev_b32 v{T}, 5, v{T}\nv_and_b32 v{T+1}, 16, v0\nv_add_u32 v{T}, v{T}, v{T+1}")
        a(f"s_lshl_b32 s11, s10, 9\nv_add_u32 v{T}, s11, v{T}")
        yes = lambda i: True
        lt = [t for t in range(N) if dest[N + t][0] == "l"]
        chunks = [lt[i:i + 4] for i in range(0, len(lt), 4)]
        where = {}
        def lds_reads(c):
            if c >= len(chunks): return
            for k, t in enumerate(chunks[c]):
                landed(N + t, yes)
                where[t] = scratch[(c % 2) * 4 + k]
                a(f"ds_read_b128 {vr(RING+4*where[t],4)}, v{T+7} offset:{1024*dest[N+t][1]}")
        a("s_waitcnt lgkmcnt(0)")
        lds_reads(0)
        FW = T + 6
        got_f = False
        if not self.dynr: self.weight_setup(T + 8, Q)
        RG = 4096 // self.GW // 32
        def wloads(n, va=T+8):
            for k in range(n):
                i = self.wissued
                if i >= self.wmax: return
                a(f"buffer_load_dwordx2 {vr(WREG+2*i,2)}, v{va}, {srd(SC)}, s{sWOFF} offen nt")
                a(f"s_add_u32 s{sWOFF}, s{sWOFF}, s{sWSTR}")
                if i == RG - 1: a(f"s_add_u32 s{sWOFF}, s{sWOFF}, s{sWJMP}")
                self.wissued += 1; self.wpos.append(self.issued)
        self.wloads = wloads
        def step(t):
            A = A0 + 4 * (t % 2)
            for i in range(4):
                a(f"v_and_b32_dpp v{A+i}, v{S+t//4}, v{MK+i} row_newbcast:{4*(t%4)} row_mask:0xf bank_mask:0xf")
            if t in lt:
                c, k = divmod(lt.index(t), 4)
                if k == 0:
                    if c % 2 == 1: ld()
                    a("s_waitcnt lgkmcnt(0)")
                    lds_reads(c + 1)
                slot = where[t]
            else:
                landed(N + t, yes)
                slot = dest[N + t][1]
            a(f"v_mfma_f32_16x16x32_bf16 {vr(D,4)}, {vr(A,4)}, {vr(RING+4*slot,4)}, {vr(D,4)}")
        def getrole():
            if self.dynr:
                a(f"v_mov_b32 v{Q}, 0")
                self.poll(lambda: a(f"ds_read_b32 v{Q+1}, v{Q} offset:{ROL}"), lambda: self.inv_poison([Q + 1], Q + 2), sleep=1, lds=True)
                a(f"v_readfirstlane_b32 s{sROLE}, v{Q+1}")
                self.weight_setup(T + 8, Q)
        def getf():
            if self.prio: a("s_setprio 2")
            a(f"v_and_b32 v{T+2}, 7, v0\nv_lshlrev_b32 v{T+2}, 3, v{T+2}")
            self.poll(lambda: a(f"ds_read_b32 v{FW}, v{T+2} offset:{MLW}"), lambda: self.inv_poison([FW], T + 3), sleep=2, lds=True)
            self.dpp_red("v_max_f32", [FW], [self.X1, self.X2, self.HM])
            a(f"v_sub_f32 v{FW}, v{M}, v{FW}\nv_mul_f32 v{FW}, {LOG2E}, v{FW}\nv_exp_f32 v{FW}, v{FW}")
            a(f"s_mul_i32 s14, s{sCI}, {REC}\ns_add_u32 s14, s14, {OA}")
            a(f"v_and_b32 v{T+2}, 63, v0\nv_lshlrev_b32 v{T+2}, 3, v{T+2}\nv_mov_b32 v{T+3}, 0\nv_mov_b32 v{T+7}, 1")
        def rest(wch, t, fn=None):
            got = False
            for u in range(t, N):
                if self.issued == 2 * N and not got: getf(); got = True
                if wch: (fn or wloads)(wch if u < N - 1 else 20)
                step(u)
            assert got
        t = 0
        if self.dback >= 0:
            while not (self.issued >= 2 * N - self.dback and t > (lt[-1] if lt else 0)):
                step(t); t += 1
            getrole()
            L1 = a.label("L_nod")
            a(f"s_cmp_lg_u32 s{sTY}, 3\ns_cbranch_scc1 {L1}")
            self.mksrd(SA, P_WD, 1728 * 1280)
            a(f"s_lshl_b32 s{sWOFF}, s{sRA}, 5\ns_add_u32 s{sWSTR}, s{sWOFF}, 5120")
            a(f"v_subrev_u32 v{Q}, 256, v0\nv_lshrrev_b32 v{Q}, 1, v{Q}\nv_mul_u32_u24 v{T+8}, {8*1280}, v{Q}\nv_and_b32 v{Q}, 1, v0\nv_lshl_add_u32 v{T+8}, v{Q}, 4, v{T+8}")
            def dloads(n):
                for k in range(n):
                    i = self.wissued
                    if i >= self.din: return
                    a(f"buffer_load_dwordx4 {vr(WREG+4*i,4)}, v{T+8}, {srd(SA)}, s{sWOFF + i//4} offen offset:{1280*(i%4)}{self.dpol}")
                    self.wissued += 1; self.wpos.append(self.issued)
            save = (self.issued, self.s12)
            rest(self.dper, t, dloads)
            a("s_branch L_bulk_fin ;nopad")
            a(f"{L1}:")
            self.issued, self.s12 = save; self.wissued = 0; self.wpos = []
        while not (self.issued >= 2 * N - self.wback and t > (lt[-1] if lt else 0)):
            step(t); t += 1
        if self.dback < 0: getrole()
        if self.WCH:
            L0 = a.label("L_now")
            if self.wgu: a(f"s_cmp_eq_u32 s{SC+2}, 0\ns_cbranch_scc1 {L0}"); self.wmax = 20
            else: a(f"s_cmp_lg_u32 s{sTY}, 1\ns_cbranch_scc1 {L0}"); self.wmax = RG
            save = (self.issued, self.s12)
            if self.wsync:
                assert self.wback == 0
                a(f"s_lshl_b32 s11, s10, 2\nv_mov_b32 v{Q}, s11\nds_write_b32 v{Q}, v{Q} offset:{ISS}\nv_and_b32 v{Q}, 7, v0\nv_lshlrev_b32 v{Q}, 2, v{Q}")
                self.poll(lambda: a(f"ds_read_b32 v{Q+1}, v{Q} offset:{ISS}"), lambda: self.inv_poison([Q + 1], Q + 2), sleep=1, lds=True)
            rest(self.WCH, t)
            a(f"s_mov_b32 s{SC+2}, 0")
            a("s_branch L_bulk_fin ;nopad")
            a(f"{L0}:")
            self.issued, self.s12 = save; self.wissued = 0; self.wpos = []
        rest(0, t)
        if sfx == "e": a("s_branch L_bulk_fin ;nopad")

    def bulk_fin(self):
        a = self.a
        VO, Q, MK, A0, D, T, S, RING = 1, 2, 6, 10, 18, 22, 31, 40
        FW = T + 6
        a("L_bulk_fin:")
        self.jitter(3, 31, 9)
        self.stamp(11, prog=True)
        if self.stamps == 6:
            a(f"s_memrealtime s[{STAMP0+2}:{STAMP0+3}]\ns_waitcnt lgkmcnt(0)\ns_mov_b64 exec, 1")
            a(f"s_add_u32 s{STAMP0+20}, s{P_WS}, 0x8000000\ns_addc_u32 s{STAMP0+21}, s{P_WS+1}, 0")
            a(f"s_mul_i32 s11, s2, 192\ns_lshl_b32 s12, s10, 3\nv_mov_b32 v3, s11\ns_add_u32 s11, s11, s12\nv_mov_b32 v2, s11")
            a(f"v_mov_b32 v4, s{STAMP0+2}\nv_mov_b32 v5, s{STAMP0+3}\nglobal_store_dwordx2 v2, v[4:5], s[{STAMP0+20}:{STAMP0+21}] offset:8\ns_nop 1")
            a(f"v_mov_b32 v4, s{STAMP0+8}\nv_mov_b32 v5, s{STAMP0+9}\nglobal_store_dwordx2 v2, v[4:5], s[{STAMP0+20}:{STAMP0+21}] offset:104\ns_nop 1")
            a(f"v_mov_b32 v4, s{STAMP0}\nv_mov_b32 v5, s{STAMP0+1}\nglobal_store_dwordx2 v3, v[4:5], s[{STAMP0+20}:{STAMP0+21}]\ns_nop 1")
            a("s_mov_b64 exec, -1")
        a("s_mov_b32 exec_hi, 0")
        for i in (0, 2): a(f"v_pk_mul_f32 {vr(D+i,2)}, {vr(D+i,2)}, {vr(FW,2)} op_sel_hi:[1,0]")
        a(f"ds_write_b128 v{T}, {vr(D,4)} offset:{OW}")
        a("s_mov_b64 exec, 1")
        a(f"ds_add_rtn_u32 v{T+1}, v{T+3}, v{T+7} offset:{CNT}")
        a("s_mov_b64 exec, -1")
        for w in range(8): a(f"ds_read_b64 {vr(RING+2*w,2)}, v{T+2} offset:{OW+512*w}")
        a(f"s_waitcnt lgkmcnt({0 if self.stamps else 8})")
        a(f"v_readfirstlane_b32 s11, v{T+1}")
        LN = a.label("L_notlast")
        a(f"s_cmp_lg_u32 s11, 6\ns_cbranch_scc1 {LN} ;nopad")
        self.stamp(6)
        for n, wt in ((0, 6), (2, 4), (4, 2), (6, 0)):
            a(f"s_waitcnt lgkmcnt({0 if self.stamps else wt})")
            a(f"v_pk_add_f32 {vr(RING+2*n,2)}, {vr(RING+2*n,2)}, {vr(RING+2*n+2,2)}")
            if n: a(f"v_pk_add_f32 {vr(RING,2)}, {vr(RING,2)}, {vr(RING+2*n,2)}")
        a(f"v_min_u32 v{RING}, 0xfffffffe, v{RING}\nv_min_u32 v{RING+1}, 0xfffffffe, v{RING+1}")
        a(f"buffer_store_dwordx2 {vr(RING,2)}, v{T+2}, {srd(SW)}, s14 offen sc1")
        a(f"ds_write_b32 v{T+3}, v{T+3} offset:{DONE}")
        if self.stamps:
            self.stamp(7)
            self.store_stamps((6, 7), 0)
            a("s_mov_b64 exec, -1")
        a(f"{LN}:")
        a("s_waitcnt lgkmcnt(0)")
        if not (self.WCH and self.wgu) and not self.gdone:
            a(f"s_cmp_eq_u32 s{SC+2}, 0\ns_cbranch_scc1 L_tail")
            self.wissued = 0; self.wmax = 20
            if self.prio: a("s_setprio 0")
            for k in range(20):
                if self.TD and k >= self.TD: a(f"s_waitcnt vmcnt({self.TD-1})")
                self.wloads(1)

    def store_stamps(self, idx, slot):
        a = self.a
        if self.stamps == 6: return
        if self.stamps == 5:
            if 11 not in idx: return
            idx = range(12)
        if self.stamps == 4:
            a("s_waitcnt lgkmcnt(0)\ns_mov_b64 exec, 1\nv_mov_b32 v2, 0")
            for i in idx: a(f"v_mov_b32 v4, s{STAMP0+2*i}\nds_write_b32 v2, v4 offset:{400+4*i}")
            a("s_waitcnt lgkmcnt(0)")
            if 11 in idx:
                t = role_table(self.roles, self.GW)
                pick = [b for b in range(240) if (t[b] & 3) == 3][0] if self.pick < 0 else self.pick
                a(f"s_cmp_lg_u32 s2, {pick}\ns_cbranch_scc1 L_end")
                a(f"ds_read_b32 v4, v2 offset:{400+4*self.pad}\ns_waitcnt lgkmcnt(0)\nv_readfirstlane_b32 s11, v4")
                a(f"s_sub_u32 s11, s11, s{STAMP0}\ns_mul_i32 s11, s11, 2\ns_add_u32 s11, s11, 5000\ns_min_u32 s11, s11, 20000")
                a(f"L_padloop:\ns_memrealtime s[12:13]\ns_waitcnt lgkmcnt(0)\ns_sub_u32 s12, s12, s{STAMP0}\ns_cmp_lt_u32 s12, s11\ns_cbranch_scc1 L_padloop")
            return
        if self.stamps == 3:
            t = role_table(self.roles, self.GW)
            pick = {ty: [b for b in range(240) if (t[b] & 3) == ty][0] for ty in (1, 2, 3)}
            a("s_load_dwordx2 s[12:13], s[0:1], 96\ns_waitcnt lgkmcnt(0)\ns_mov_b64 exec, 1\nv_mov_b32 v2, 0")
            for i in idx:
                for ty, slot in (((1, i), (2, i + 5)) if i in (8, 9) else ((3, i),)):
                    L = a.label("L_st")
                    a(f"s_cmp_lg_u32 s2, {pick[ty]}\ns_cbranch_scc1 {L}\nv_mov_b32 v4, s{STAMP0+2*i}\nglobal_store_dword v2, v4, s[12:13] offset:{4*slot}\n{L}:")
            return
        if self.stamps == 2:
            a("s_load_dwordx2 s[12:13], s[0:1], 96\ns_waitcnt lgkmcnt(0)\ns_mov_b64 exec, 1\nv_mov_b32 v2, 0")
            for i in idx:
                if i == 0: a(f"s_not_b32 s11, s{STAMP0}\nv_mov_b32 v4, s11\nglobal_atomic_umax v2, v4, s[12:13] offset:48\ns_nop 1")
                if i in (8, 9):
                    a(f"s_cmp_eq_u32 s{sTY}, 2\ns_cselect_b32 s11, 20, 0\nv_mov_b32 v3, s11\nv_mov_b32 v4, s{STAMP0+2*i}\nglobal_atomic_umax v3, v4, s[12:13] offset:{4*i}\ns_nop 1")
                else:
                    a(f"v_mov_b32 v4, s{STAMP0+2*i}\nglobal_atomic_umax v2, v4, s[12:13] offset:{4*i}\ns_nop 1")
            return
        a("s_waitcnt lgkmcnt(0)\ns_mov_b64 exec, 1")
        a(f"s_add_u32 s12, s{P_WS}, 0x8000000\ns_addc_u32 s13, s{P_WS+1}, 0")
        a(f"s_mul_i32 s11, s2, 192\nv_mov_b32 v2, s11")
        for i in idx:
            a(f"v_mov_b32 v4, s{STAMP0+2*i}\nv_mov_b32 v5, s{STAMP0+2*i+1}\nglobal_store_dwordx2 v2, v[4:5], s[12:13] offset:{8*i+96*slot}\ns_nop 1")

    def common_setup(self):
        a = self.a
        L = a.label("L_pc")
        a(f"s_load_dword s{sT}, s[{P_WS}:{P_WS+1}], 0")
        a(f"s_getpc_b64 s[{sEX}:{sEX+1}]")
        a(f"{L}:")
        a(f"s_lshl_b32 s11, s2, 2\ns_add_u32 s11, s11, role_tbl-{L}")
        a(f"s_load_dword s{sROLE}, s[{sEX}:{sEX+1}], s11")
        self.mksrd(SW, P_WS, WS_BYTES)
        a(f"s_mov_b32 s{sBUD}, {self.budget}\ns_mov_b32 s{sPERMLO}, 0x05040100\ns_mov_b32 s{sPERMHI}, 0x07060302\ns_mov_b32 s{sHIMASK}, 0xffff0000")
        a(f"s_mov_b64 {FULL}, -1")

    def role_decode(self):
        a = self.a
        a(f"s_and_b32 s{sTY}, s{sROLE}, 3\ns_bfe_u32 s{sRA}, s{sROLE}, 0x80008\ns_bfe_u32 s{sRB}, s{sROLE}, 0x80010")
        if self.dbg & 2: a(f"s_mov_b32 s{sTY}, 0")

    def weight_setup(self, VW, T):
        a = self.a
        RG = 4096 // self.GW // 32
        self.role_decode()
        a(f"s_sub_u32 s11, s{sRA}, 27\ns_cmp_lt_u32 s{sRA}, 27\ns_cselect_b32 s{SC}, s{P_WG}, s{P_WU}\ns_cselect_b32 s{SC+1}, s{P_WG+1}, s{P_WU+1}\ns_cselect_b32 s11, s{sRA}, s11")
        a(f"s_lshl_b32 s{sWOFF}, s11, 7")
        a(f"s_mul_i32 s11, s{sRB}, {RG*32*1280}\ns_lshl_b32 s{sWSTR}, s{sRA}, 7\ns_add_u32 s11, s11, s{sWSTR}")
        a(f"s_cmp_eq_u32 s{sTY}, 2\ns_cselect_b32 s{SC+2}, {640*3456}, 0")
        a(f"s_cmp_eq_u32 s{sTY}, 1\ns_cselect_b32 s{SC}, s{P_WO}, s{SC}\ns_cselect_b32 s{SC+1}, s{P_WO+1}, s{SC+1}\ns_cselect_b32 s{SC+2}, {4096*1280}, s{SC+2}")
        a(f"s_cselect_b32 s{sWOFF}, s11, s{sWOFF}\ns_cselect_b32 s{sWJMP}, 0x40000000, 0")
        a(f"s_mov_b32 s{sWSTR}, 3456\ns_cselect_b32 s{sWSTR}, 1280, s{sWSTR}\ns_mov_b32 s11, {20*3456}\ns_cselect_b32 s11, {RG*1280}, s11")
        if self.dbg & 256: a(f"s_cmp_eq_u32 s{sTY}, 1\ns_cselect_b32 s{SC+2}, 0, s{SC+2}")
        if self.dbg & 512: a(f"s_cmp_eq_u32 s{sTY}, 2\ns_cselect_b32 s{SC+2}, 0, s{SC+2}")
        a(f"s_and_b32 s{SC+1}, s{SC+1}, 0xffff\ns_mov_b32 s{SC+3}, 0x20000")
        a(f"v_subrev_u32 v{T}, 256, v0\nv_lshrrev_b32 v{T}, 4, v{T}\nv_mul_lo_u32 v{VW}, v{T}, s11\nv_and_b32 v{T}, 15, v0\nv_lshl_add_u32 v{VW}, v{T}, 3, v{VW}")

    def tile_mfma(self, W, AE, AO, MK, A0, D, PB, waits):
        a = self.a
        for t in range(20):
            A = A0 + 4 * (t % 2)
            for i in range(4):
                a(f"v_and_b32_dpp v{A+i}, v{AO if t % 2 else AE}, v{MK+i} row_newbcast:{t//2} row_mask:0xf bank_mask:0xf")
            if waits: a(f"s_waitcnt vmcnt({19-t})")
            if t < 2: a(f"v_mov_b32 v{PB+2*t+1}, s{sT}")
            a(f"v_mfma_f32_16x16x32_bf16 {vr(D,4)}, {vr(A,4)}, {vr(W+4*t,4)}, {vr(D,4)}")

    def tile_publish(self, D, PB, VA, soff):
        a = self.a
        a(f"v_permlane32_swap_b32 v{D}, v{D+2}\nv_permlane32_swap_b32 v{D+1}, v{D+3}")
        a(f"v_mov_b32 v{PB}, v{D}\nv_mov_b32 v{PB+2}, v{D+1}")
        a(f"buffer_store_dwordx4 {vr(PB,4)}, v{VA}, {srd(SW)}, s{soff} offen sc1")

    def pos2pair(self, dst, src, T):
        a = self.a
        a(f"v_and_b32 v{T}, 15, v{src}\nv_bfe_u32 v{T+1}, v{src}, 4, 1\nv_lshlrev_b32 v{T}, 2, v{T}\nv_lshl_add_u32 v{T}, v{T+1}, 1, v{T}")
        a(f"v_bfe_u32 v{T+1}, v{src}, 5, 1\nv_and_b32 v{dst}, 0xffc0, v{src}\nv_add3_u32 v{dst}, v{dst}, v{T}, v{T+1}")

    def tag(self):
        self.a(f"s_waitcnt lgkmcnt(0)\ns_mul_i32 s{sT}, s{sT}, 1664525\ns_add_u32 s{sT}, s{sT}, 1013904223")

    def pair_index(self, dst, T):
        self.a(f"v_lshrrev_b32 v{T}, 4, v1\nv_mul_u32_u24 v{T}, 10, v{T}\nv_and_b32 v{dst}, 15, v1\nv_add_u32 v{dst}, v{dst}, v{T}")

    def sum8(self, G):
        for n in (16, 8, 4):
            for i in range(0, n, 2): self.a(f"v_add_f32 v{G+i}, v{G+i}, v{G+n+i}")
        self.a(f"v_cvt_pk_bf16_f32 v{G}, v{G}, v{G+2}")

    def gather8(self, G, VO, sbase, gstride, T, sleep=1):
        a = self.a
        for g in range(8): a(f"s_add_u32 s{sWGT+g}, s{sbase}, {g*gstride}")
        def loads():
            for g in range(8): a(f"buffer_load_dwordx4 {vr(G+4*g,4)}, v{VO}, {srd(SW)}, s{sWGT+g} offen sc1")
        self.poll(loads, lambda: self.inv_tags([G + 2 * i + 1 for i in range(16)], T), sleep=sleep)
        self.sum8(G)

    def h0(self):
        a = self.a
        T, MK, D, VA, AE, AO, W, G = 2, 8, 12, 16, 17, 18, 24, 104
        A0, PB = G + 8, G + 16
        a("L_h0:")
        if self.dbg & 4: a("s_branch L_h0_none")
        sPASS = 9
        a(f"s_mov_b32 s{sPASS}, 0\ns_cmp_ge_u32 s{sR}, {10 if self.dynm else 30}\ns_cbranch_scc1 L_h0_none")
        a("L_h0_tile:")
        self.mksrd(SA, P_WM, 640 * 7680); self.mksrd(SB, P_C, 1280)
        self.pair_index(AE, T)
        a(f"v_lshlrev_b32 v{AE}, 2, v{AE}\ns_mul_i32 s13, s{sX}, 160\nv_lshlrev_b32 v{VA}, 4, v1")
        a(f"buffer_load_dword v{AE}, v{AE}, {srd(SB)}, s13 offen")
        a(f"s_mul_i32 s12, s{sX}, {80*7680}\ns_lshl_b32 s13, s{sR}, 8\ns_add_u32 s12, s12, s13")
        a(f"v_lshrrev_b32 v{T}, 4, v1\nv_mul_u32_u24 v{T}, {20*7680}, v{T}\nv_and_b32 v{T+1}, 15, v1\nv_lshl_add_u32 v{T}, v{T+1}, 4, v{T}")
        for t in range(20):
            a(f"buffer_load_dwordx4 {vr(W+4*t,4)}, v{T}, {srd(SA)}, s12 offen nt")
            if t < 19: a(f"s_add_u32 s12, s12, 7680")
        if self.dynm: a(f"s_cmp_lg_u32 s{sPASS}, 0\ns_cbranch_scc1 L_h0_p2")
        if self.dbg & 16: a("s_branch L_h0_np")
        self.jitter(1, 255, 11)
        a(f"s_cmp_ge_u32 s2, 80\ns_cbranch_scc1 L_h0_np")
        for i in range(4): a(f"v_mov_b32 v{PB+i}, -1")
        a(f"s_mul_i32 s13, s2, 3072\ns_add_u32 s13, s13, {PZ}")
        for i in range(3): a(f"buffer_store_dwordx4 {vr(PB,4)}, v{VA}, {srd(SW)}, s13 offen offset:{1024*i} sc1")
        a("L_h0_np:")
        if not self.eb: a("s_barrier")
        self.tag()
        a("L_h0_p2:")
        self.masks(MK, T)
        for i in range(4): a(f"v_mov_b32 v{D+i}, 0")
        a(f"s_mul_i32 s15, s{sX}, {3840*8}\ns_lshl_b32 s13, s{sR}, 10\ns_add_u32 s15, s15, s13\ns_add_u32 s15, s15, {MP}")
        a("s_waitcnt vmcnt(20)")
        a(f"v_and_b32 v{AO}, s{sHIMASK}, v{AE}\nv_lshlrev_b32 v{AE}, 16, v{AE}")
        self.silu(AE, AE, T); self.silu(AO, AO, T + 1)
        a(f"v_cvt_pk_bf16_f32 v{AE}, v{AE}, v{AE}\nv_cvt_pk_bf16_f32 v{AO}, v{AO}, v{AO}")
        self.tile_mfma(W, AE, AO, MK, A0, D, PB + 4, True)
        if not (self.dbg & 8): self.tile_publish(D, PB + 4, VA, 15)
        self.stamp(1)
        if self.dynm: a(f"s_cmp_lg_u32 s{sPASS}, 0\ns_cbranch_scc1 L_hend")
        a("s_waitcnt vmcnt(0)")
        a("s_branch L_h0_flag")
        a("L_h0_none:")
        if not self.eb: a("s_barrier")
        self.tag()
        if self.dynm: self.lds_wait(PG1, 1, T, sleep=4)
        a("L_h0_flag:")
        a(f"v_mov_b32 v{T}, 0\nds_write_b32 v{T}, v{T} offset:{F0L}")
        if self.dynm:
            a("s_load_dwordx2 s[12:13], s[0:1], 96")
            self.lds_wait(PG1, 8, T, sleep=4)
            if self.msides == 2: a("s_bfe_u32 s15, s2, 0x10002\ns_lshl_b32 s11, s15, 7")
            else: a("s_mov_b32 s15, 0\ns_mov_b32 s11, 0")
            a("s_mov_b32 s14, 1\ns_atomic_add s14, s[12:13], s11 glc\ns_waitcnt lgkmcnt(0)")
            a(f"s_cmp_ge_u32 s14, {160 // self.msides}\ns_cbranch_scc1 L_hend")
            a(f"s_mul_i32 s15, s15, 80\ns_add_u32 s14, s14, s15\ns_and_b32 s{sX}, s14, 7\ns_lshr_b32 s{sR}, s14, 3\ns_add_u32 s{sR}, s{sR}, 10\ns_mov_b32 s{sPASS}, 1")
            a("s_branch L_h0_tile")
        a("s_branch L_hend")

    def h1(self):
        a = self.a
        T, MK, D, VA, AE, AO, VG, VG2, RO, C16, W, G = 2, 8, 12, 16, 17, 18, 19, 20, 21, 22, 24, 104
        A0, PB, XS = G + 8, G + 16, G
        a("L_h1:")
        if self.dbg & 4:
            if not self.eb: a("s_barrier")
            self.tag()
            a(f"v_lshlrev_b32 v{VG2}, 2, v1\nv_mov_b32 v{W}, 0\nds_write_b32 v{VG2}, v{W} offset:{QL}\ns_branch L_hend")
        self.mksrd(SA, P_WQ, 640 * 8192); self.mksrd(SC, P_X, 1280)
        a(f"s_and_b32 s14, s2, 7\ns_mul_i32 s13, s14, 40")
        self.pair_index(VG, T)
        a(f"v_add_u32 v{VG}, s13, v{VG}")
        self.pos2pair(RO, VG, T)
        a(f"v_lshlrev_b32 v{AE}, 2, v{RO}\nv_lshlrev_b32 v{RO}, 14, v{RO}\nv_lshlrev_b32 v{T+2}, 2, v1")
        a(f"v_and_b32 v{C16}, 15, v1\nv_lshlrev_b32 v{C16}, 4, v{C16}")
        a(f"buffer_load_dword v{AE}, v{AE}, {srd(SC)}, 0 offen")
        for i in range(5): a(f"buffer_load_dword v{XS+i}, v{T+2}, {srd(SC)}, 0 offen offset:{256*i}")
        a(f"s_lshr_b32 s12, s2, 3\ns_lshl_b32 s12, s12, 8\ns_add_u32 s13, s12, 8192")
        for n in range(10):
            a(f"v_add_u32_dpp v{T+n%2}, v{RO}, v{C16} row_newbcast:{n} row_mask:0xf bank_mask:0xf")
            a(f"buffer_load_dwordx4 {vr(W+8*n,4)}, v{T+n%2}, {srd(SA)}, s12 offen nt")
            a(f"buffer_load_dwordx4 {vr(W+8*n+4,4)}, v{T+n%2}, {srd(SA)}, s13 offen nt")
        if not self.eb: a("s_barrier")
        self.masks(MK, T)
        for i in range(4): a(f"v_mov_b32 v{D+i}, 0")
        a(f"v_lshlrev_b32 v{VA}, 4, v1")
        self.tag()
        a("s_waitcnt vmcnt(20)")
        S1, S2 = XS + 6, XS + 7
        a(f"v_mov_b32 v{S1}, 0\nv_mov_b32 v{S2}, 0")
        for i in range(5):
            a(f"v_lshlrev_b32 v{T}, 16, v{XS+i}\nv_and_b32 v{T+1}, s{sHIMASK}, v{XS+i}")
            a(f"v_add_f32 v{S1}, v{S1}, v{T}\nv_fmac_f32 v{S2}, v{T}, v{T}\nv_add_f32 v{S1}, v{S1}, v{T+1}\nv_fmac_f32 v{S2}, v{T+1}, v{T+1}")
        self.dpp_red("v_add_f32", [S1, S2], [self.X1, self.X2, self.R4, self.R8])
        self.allred_rows("v_add_f32", [S1, S2], [T, T + 1])
        self.ln_scalars(S1, S2, T)
        a(f"v_and_b32 v{AO}, s{sHIMASK}, v{AE}\nv_lshlrev_b32 v{AE}, 16, v{AE}")
        for r in (AE, AO):
            a(f"v_sub_f32 v{r}, v{r}, v{S1}"); self.rbf(r, r)
            a(f"v_mul_f32 v{r}, v{r}, v{S2}"); self.rbf(r, r)
        a(f"v_lshlrev_b32 v{VG}, 4, v{VG}\nv_add_u32 v{VG2}, 5120, v{VG}")
        for g in range(8): a(f"s_mov_b32 s{sWGT+g}, {MP+g*3840*8}")
        a(f"s_lshl_b32 s15, s2, 10\ns_add_u32 s15, s15, {QP}")
        if self.dbg & 8:
            a(f"v_lshlrev_b32 v{VG2}, 2, v1\nv_mov_b32 v{T}, 0\nds_write_b32 v{VG2}, v{T} offset:{QL}\ns_waitcnt vmcnt(0)\ns_branch L_hend")
        self.lds_wait(F0L, 2, T)
        a("s_mov_b32 exec_lo, 0x03ff03ff\ns_mov_b32 exec_hi, 0x03ff03ff")
        def loads():
            for g in range(8):
                a(f"buffer_load_dwordx4 {vr(G+4*g,4)}, v{VG}, {srd(SW)}, s{sWGT+g} offen sc1")
                a(f"buffer_load_dwordx4 {vr(G+32+4*g,4)}, v{VG2}, {srd(SW)}, s{sWGT+g} offen sc1")
        for k in range(self.pre1 // 100): a("s_sleep 100")
        if self.pre1 % 100: a(f"s_sleep {self.pre1 % 100}")
        if self.dbg & 32: a("s_waitcnt vmcnt(0)")
        else: self.poll(loads, lambda: self.inv_tags([G + 2 * i + 1 for i in range(32)], T), sleep=8)
        self.stamp(2)
        self.sum8(G); self.sum8(G + 32)
        a(f"v_lshlrev_b32 v{T}, 16, v{G+32}\nv_and_b32 v{T+1}, s{sHIMASK}, v{G+32}")
        a(f"v_add_f32 v{T}, 1.0, v{T}\nv_add_f32 v{T+1}, 1.0, v{T+1}\nv_cvt_pk_bf16_f32 v{T+2}, v{T}, v{T+1}")
        a(f"v_lshlrev_b32 v{T}, 16, v{T+2}\nv_and_b32 v{T+1}, s{sHIMASK}, v{T+2}")
        a(f"v_mul_f32 v{T}, v{AE}, v{T}\nv_mul_f32 v{T+1}, v{AO}, v{T+1}\nv_cvt_pk_bf16_f32 v{T+2}, v{T}, v{T+1}")
        a(f"v_lshlrev_b32 v{T}, 16, v{T+2}\nv_and_b32 v{T+1}, s{sHIMASK}, v{T+2}")
        a(f"v_lshlrev_b32 v{AE}, 16, v{G}\nv_and_b32 v{AO}, s{sHIMASK}, v{G}")
        a(f"v_add_f32 v{AE}, v{AE}, v{T}\nv_add_f32 v{AO}, v{AO}, v{T+1}")
        a(f"v_cvt_pk_bf16_f32 v{AE}, v{AE}, v{AE}\nv_cvt_pk_bf16_f32 v{AO}, v{AO}, v{AO}")
        a("s_mov_b64 exec, -1")
        self.tile_mfma(W, AE, AO, MK, A0, D, PB, False)
        self.tile_publish(D, PB, VA, 15)
        a(f"s_lshr_b32 s15, s{sCI}, 3\ns_lshl_b32 s15, s15, 13\ns_add_u32 s15, s15, {QP}")
        self.pos2pair(VG2, 1, T)
        a(f"v_lshlrev_b32 v{VG2}, 2, v{VG2}")
        a("s_waitcnt vmcnt(0)")
        for k in range(self.pre2 // 100): a("s_sleep 100")
        if self.pre2 % 100: a(f"s_sleep {self.pre2 % 100}")
        if not (self.dbg & 64): self.gather8(W, VA, 15, 1024, T, sleep=8)
        a(f"v_min_u32 v{W}, 0xfffffffe, v{W}")
        a(f"ds_write_b32 v{VG2}, v{W} offset:{QL}")
        self.stamp(3)
        a("s_branch L_hend")

    def h2(self):
        a = self.a
        T, G = 2, 8
        OCT = [self.X1, self.X2, self.HM]
        a("L_h2:")
        if self.eb: a("s_waitcnt lgkmcnt(0)")
        else:
            a("v_mov_b32 v4, -1\nv_mov_b32 v5, -1\nv_lshlrev_b32 v2, 3, v1")
            a(f"ds_write_b64 v2, v[4:5] offset:0")
            a("s_waitcnt lgkmcnt(0)\ns_barrier")
        self.common_setup()
        if self.dynr:
            a(f"s_getpc_b64 s[12:13]\nL_pc2:\ns_bfe_u32 s14, s2, 0x10002\ns_lshl_b32 s15, s14, 9\ns_add_u32 s15, s15, ord_tbl-L_pc2\nv_lshl_add_u32 v2, v1, 2, s15")
            a("global_load_dword v160, v2, s[12:13]\nglobal_load_dword v161, v2, s[12:13] offset:256")
            a(f"s_and_b32 s{sWSTR}, s{sR}, {self.sh-1}\ns_mul_i32 s14, s14, {self.sh}\ns_add_u32 s14, s14, s{sWSTR}\ns_mul_i32 s{sWSTR}, s{sWSTR}, {128//self.sh}")
            a(f"s_lshl_b32 s{sWOFF}, s14, 7\ns_add_u32 s{sWOFF}, s{sWOFF}, {RC}")
        if self.dry:
            for v in range(2, 20): a(f"v_mov_b32 v{v}, 0")
            a("s_waitcnt lgkmcnt(0)")
            if self.dynr: a(f"s_mov_b32 s{sTY}, 1\ns_mov_b32 s{sRA}, 0\ns_mov_b32 s{sRB}, 0")
            else: self.role_decode()
            for v in list(range(44, 56)) + list(range(68, 94)): a(f"v_mov_b32 v{v}, 0")
            a(f"s_mov_b32 s{sTW}, 0\ns_mov_b64 {FULL}, 0\ns_mov_b64 exec, 0\ns_branch L_tail")
            a("L_dry_ret:")
            if self.dynr:
                a(f"s_bitcmp1_b32 s2, 2\ns_cbranch_scc1 L_dry_end\ns_add_u32 s{sTY}, s{sTY}, 1\ns_cmp_lt_u32 s{sTY}, 4\ns_cbranch_scc1 L_tail")
                a("L_dry_end:")
            self.jitter(5, 15, 5)
            a("s_mov_b64 exec, -1")
        MW, LW, PB = G, G + 1, G + 2
        a(f"v_and_b32 v{T}, 7, v1\nv_lshlrev_b32 v{T+1}, 3, v{T}")
        a(f"s_mul_i32 s12, s{sCI}, {REC}\ns_add_u32 s12, s12, {OA}")
        self.poll(lambda: a(f"ds_read_b64 {vr(MW,2)}, v{T+1} offset:{MLW}"), lambda: self.inv_poison([MW], T + 2), sleep=4, lds=True)
        claim = f"s_mov_b32 s14, 1\ns_atomic_add s14, s[{P_WS}:{P_WS+1}], s{sWOFF} glc"
        if self.omode >= 5: claim = f"s_and_b32 s13, s{sROLE}, 3\ns_cmp_eq_u32 s13, 3\ns_cbranch_scc1 L_noclaim\n" + claim + "\nL_noclaim:"
        if self.dynr and not self.trig: a(claim)
        a(f"v_mov_b32 v{PB}, v{MW}")
        self.dpp_red("v_max_f32", [PB], OCT)
        a(f"v_sub_f32 v{T+2}, v{MW}, v{PB}\nv_mul_f32 v{T+2}, {LOG2E}, v{T+2}\nv_exp_f32 v{T+2}, v{T+2}")
        a(f"v_mul_f32 v{PB+1}, v{T+2}, v{LW}")
        self.dpp_red("v_add_f32", [PB + 1], OCT)
        a(f"v_min_u32 v{PB}, 0xfffffffe, v{PB}\nv_min_u32 v{PB+1}, 0xfffffffe, v{PB+1}\nv_mov_b32 v{T+2}, 0")
        a("s_mov_b64 exec, 1")
        a(f"buffer_store_dwordx2 {vr(PB,2)}, v{T+2}, {srd(SW)}, s12 offen offset:512 sc1")
        a("s_mov_b64 exec, -1")
        a(f"v_mov_b32 v{T+4}, 0\nv_mov_b32 v{T+5}, 0")
        if self.dynr:
            if self.trig:
                self.lds_wait(ISS, 8, T, sleep=2)
                a(claim)
            if self.omode >= 5: a(f"s_and_b32 s{sROLE}, s{sROLE}, 0xffffff\ns_cmp_eq_u32 s13, 3\ns_cbranch_scc1 L_rolset")
            a(f"s_waitcnt lgkmcnt(0) vmcnt(1)\ns_add_u32 s14, s14, 1\ns_min_u32 s14, s14, {128//self.sh-1}\ns_add_u32 s14, s14, s{sWSTR}\ns_and_b32 s15, s14, 63")
            a(f"v_readlane_b32 s{sROLE}, v160, s15\nv_readlane_b32 s13, v161, s15")
            a(f"s_bitcmp1_b32 s14, 6\ns_cselect_b32 s{sROLE}, s13, s{sROLE}\ns_cmp_lt_u32 s14, 128\ns_cselect_b32 s{sROLE}, s{sROLE}, 0")
            a("L_rolset:")
            a(f"v_mov_b32 v{T+2}, s{sROLE}\nds_write_b32 v{T+4}, v{T+2} offset:{ROL}")
        if self.dynr or not self.dry: self.role_decode()
        a(f"s_cmp_eq_u32 s{sTY}, 0\ns_cbranch_scc1 L_end")
        if self.near:
            a(f"s_mov_b32 s12, {SG}")
            self.poll(lambda: a(f"buffer_load_dword v{T+5}, v{T+4}, {srd(SW)}, s12 offen sc1"), lambda: self.inv_poison([T + 5], T + 2), sleep=8)
        a(f"s_cmp_lg_u32 s{sTY}, 2\ns_cbranch_scc1 L_h2_sel")
        self.mksrd(SA, P_X, 1280)
        a(f"v_lshlrev_b32 v{T}, 2, v1\ns_mov_b32 s12, {MG}")
        for k in range(5): a(f"buffer_load_dword v{40+15+k}, v{T}, {srd(SA)}, 0 offen offset:{256*k}")
        def loads():
            for k in range(15): a(f"buffer_load_dword v{40+k}, v{T}, {srd(SW)}, s12 offen offset:{256*k} sc1")
        self.poll(loads, lambda: self.inv_poison(range(40, 55), T + 2), sleep=8)
        for k in range(20): a(f"ds_write_b32 v{T}, v{40+k} offset:{MGL+256*k}")
        a("L_h2_sel:")
        a(f"ds_write_b32 v{T+4}, v{T+5} offset:{SEL}")
        a("s_endpgm")

    def h3(self):
        a = self.a
        T, G = 2, 40
        a("L_h3:")
        self.jitter(2, 7, 3)
        if self.l2pre:
            a(f"s_getpc_b64 s[12:13]\nL_pc3:\ns_sub_u32 s12, s12, L_pc3-{NAME}_kernel\ns_subb_u32 s13, s13, 0")
            a(f"s_lshl_b32 s14, s{sR}, 10\ns_cmp_ge_u32 s14, role_tbl-{NAME}_kernel\ns_cbranch_scc1 L_h3_np")
            a(f"v_lshl_add_u32 v10, v1, 4, s14")
            a(f"global_load_dwordx4 v[164:167], v10, s[12:13]")
            a("L_h3_np:")
        if not self.eb: a("s_barrier")
        if self.tlb:
            a("s_mov_b64 exec, 1")
            a(f"s_lshl_b32 s12, s2, 18\nv_mov_b32 v10, s12\nv_mov_b32 v11, 0\nv_mov_b32 v12, 0x200000\nv_mov_b32 v13, 0x400000")
            a(f"global_load_dword v20, v10, s[{P_V}:{P_V+1}] nt")
            if self.tlb > 1:
                for p, n in ((P_WO, 3), (P_WG, 2), (P_WU, 2), (P_WD, 2), (P_OUT, 1), (P_WS, 1)):
                    for k in range(n): a(f"global_load_dword v21, v{11+k}, s[{p}:{p+1}] offset:{1024 if p != P_OUT else 0} nt")
            a("s_mov_b64 exec, -1\ns_waitcnt vmcnt(0)")
        self.tag()
        a(f"v_mov_b32 v2, 0\nds_write_b32 v2, v2 offset:{F0L+4}")
        if self.near:
            t = role_table(self.roles, self.GW)
            dec = [b for b in range(256) if (t[b] & 3) == 0 and (t[b] >> 24) == 255 and (b & 7) in self.near_x][0]
            a(f"s_cmp_lg_u32 s2, {dec}\ns_cbranch_scc1 L_nodec")
            a(f"s_add_u32 s12, s{P_WS}, 0x100000\ns_addc_u32 s13, s{P_WS+1}, 0\ns_mov_b32 s14, 0")
            if self.near == 1:
                for k in range(8):
                    ph = (k ^ (k >> 1)) & 1
                    a(f"s_memtime s[{sWGT}:{sWGT+1}]\ns_waitcnt lgkmcnt(0)")
                    for j in range(4): a(f"s_load_dword s{SA+j}, s[12:13], {ph*8192 + (k//2)*16384 + j*1024 + (j%2)*4096}")
                    a(f"s_waitcnt lgkmcnt(3)\ns_memtime s[{sWGT+2}:{sWGT+3}]\ns_waitcnt lgkmcnt(0)")
                    a(f"s_sub_u32 s15, s{sWGT+2}, s{sWGT}\ns_min_u32 s15, s15, 4000")
                    a("s_add_u32 s14, s14, s15" if ph else "s_sub_u32 s14, s14, s15")
                a("s_cmp_gt_i32 s14, 0\ns_cselect_b32 s14, 0, 8192")
            else: a(f"s_mov_b32 s14, {(self.near - 2) * 8192}")
            self.lds_wait(QL, 1, T, sleep=8)
            a(f"v_mov_b32 v2, 0\nv_mov_b32 v3, s14\ns_mov_b32 s12, {SG}\ns_mov_b64 exec, 1")
            a(f"buffer_store_dword v3, v2, {srd(SW)}, s12 offen sc1")
            if self.stamps == 7:
                a("s_load_dwordx2 s[12:13], s[0:1], 96\ns_waitcnt lgkmcnt(0)\nglobal_store_dword v2, v3, s[12:13]")
            a("s_endpgm")
            a("L_nodec:")
        if self.dbg & (12 | 128): a("s_endpgm")
        a(f"s_lshr_b32 s14, s{sROLE}, 24\ns_cmp_eq_u32 s14, 255\ns_cbranch_scc1 L_end")
        self.lds_wait(QL, 1, T, sleep=8)
        a(f"s_lshl_b32 s15, s14, 10\ns_add_u32 s15, s15, {MP+1280*8}")
        a(f"v_lshlrev_b32 v8, 4, v1")
        self.pos2pair(9, 1, T)
        a("v_lshlrev_b32 v9, 2, v9")
        self.gather8(G, 8, 15, 3840 * 8, T, sleep=8)
        a(f"v_min_u32 v{G}, 0xfffffffe, v{G}\ns_lshl_b32 s15, s14, 8\ns_add_u32 s15, s15, {MG}")
        a(f"buffer_store_dword v{G}, v9, {srd(SW)}, s15 offen sc1")
        a("s_endpgm")
        a("L_hend:")
        if self.stamps:
            a(f"s_cmp_eq_u32 s{sWAVE}, 1\ns_cbranch_scc1 L_hend1")
            self.store_stamps((0, 1), 0); a("s_endpgm")
            a("L_hend1:")
            self.store_stamps((0, 2, 3), 1)
        a("s_endpgm")

    def done_wait(self, t, zero):
        self.poll(lambda: self.a(f"ds_read_b32 v{t}, v{zero} offset:{DONE}"), lambda: self.inv_poison([t], t + 1), sleep=2, lds=True, tail=True)
    def jitter(self, bit, m, v):
        if not (self.jit >> bit) & 1: return
        L = self.a.label("L_jit")
        self.a(f"s_and_b32 s11, s2, {m}\ns_cmp_lg_u32 s11, {v}\ns_cbranch_scc1 {L}")
        for k in range(10): self.a("s_sleep 127")
        self.a(f"{L}:")
    def yrow(self, dst, g, tmp):
        self.a(f"s_mul_i32 s{tmp}, s{g}, 11\ns_lshr_b32 s{tmp}, s{tmp}, 5\ns_mul_i32 s{tmp}, s{tmp}, 8704\ns_mul_i32 s{dst}, s{g}, 2560\ns_add_u32 s{dst}, s{dst}, s{tmp}\ns_add_u32 s{dst}, s{dst}, {YB}")
    def mask(self, m):
        self.a(f"s_and_b32 exec_lo, s{sFULL}, {hex(m & 0xffffffff)}\ns_and_b32 exec_hi, s{sFULL}, {hex(m >> 32)}")
    def unmask(self): self.a(f"s_mov_b64 exec, {FULL}")
    def barrier(self):
        L = self.a.label("L_nb")
        self.a(f"s_waitcnt lgkmcnt(0)\ns_cbranch_execz {L}\ns_barrier\n{L}:")
    def mem(self, txt):
        L = self.a.label("L_nm")
        self.a(f"s_cbranch_execz {L} ;nopad\n{txt}\n{L}:")
    def preperm4(self, W, npairs, free, before=None, after=None):
        a = self.a
        PP = []
        for p in range(npairs):
            if before: before(p)
            P = []
            for d in range(2):
                E, O = W + 4 * p + d, W + 4 * p + 2 + d
                a(f"v_perm_b32 v{free}, v{O}, v{E}, s{sPERMLO}\nv_perm_b32 v{O}, v{O}, v{E}, s{sPERMHI}")
                P += [free, O]; free = E
            PP.append(P)
            if after: after(p, P)
        return PP
    def reduce4(self, acc):
        a = self.a
        a(f"v_permlane32_swap_b32 v{acc[0]}, v{acc[2]}\nv_permlane32_swap_b32 v{acc[1]}, v{acc[3]}")
        a(f"v_add_f32 v{acc[0]}, v{acc[0]}, v{acc[2]}\nv_add_f32 v{acc[1]}, v{acc[1]}, v{acc[3]}")
        a(f"v_permlane16_swap_b32 v{acc[0]}, v{acc[1]}\nv_add_f32 v{acc[0]}, v{acc[0]}, v{acc[1]}")
    def ticket(self, reads, nreads, TR, ZERO_ONE):
        a = self.a
        L = a.label("L_tk")
        self.mask(1)
        a(f"ds_add_rtn_u32 v{TR}, v{ZERO_ONE}, v{ZERO_ONE+1} offset:{TK}")
        self.unmask()
        reads()
        a(f"s_waitcnt lgkmcnt({0 if self.stamps else nreads})")
        a(f"v_readfirstlane_b32 s11, v{TR}")
        a(f"s_cbranch_execz {L} ;nopad\ns_cmp_lg_u32 s11, 6\ns_cbranch_scc1 L_fin ;nopad\n{L}:")
    def part_reads(self, G, VA, st):
        for k in range(4):
            if st == 256: self.a(f"ds_read2st64_b32 {vr(G+2*k,2)}, v{VA} offset0:{2*k} offset1:{2*k+1}")
            else: self.a(f"ds_read2_b32 {vr(G+2*k,2)}, v{VA} offset0:{2*k*st//4} offset1:{(2*k+1)*st//4}")
    def part_sum(self, G, extra=0):
        a = self.a
        for k in range(4):
            a(f"s_waitcnt lgkmcnt({0 if self.stamps else 3-k+extra})\nv_add_f32 v{G+2*k}, v{G+2*k}, v{G+2*k+1}")
            if k % 2: a(f"v_add_f32 v{G+2*k-2}, v{G+2*k-2}, v{G+2*k}")
        a(f"v_add_f32 v{G}, v{G}, v{G+4}")
    def sum_parts(self, G, VA, st):
        a = self.a
        for k in range(4):
            if st == 256: a(f"ds_read2st64_b32 {vr(G+2*k,2)}, v{VA} offset0:{2*k} offset1:{2*k+1}")
            else: a(f"ds_read2_b32 {vr(G+2*k,2)}, v{VA} offset0:{2*k*st//4} offset1:{(2*k+1)*st//4}")
        for k in range(4):
            a(f"s_waitcnt lgkmcnt({0 if self.stamps else 3-k})\nv_add_f32 v{G+2*k}, v{G+2*k}, v{G+2*k+1}")
            if k % 2: a(f"v_add_f32 v{G+2*k-2}, v{G+2*k-2}, v{G+2*k}")
        a(f"v_add_f32 v{G}, v{G}, v{G+4}")
    def unpack(self, lo, hi, src):
        self.a(f"v_lshlrev_b32 v{lo}, 16, v{src}\nv_and_b32 v{hi}, s{sHIMASK}, v{src}")

    def tail(self):
        a = self.a
        GW = self.GW
        TL, LN, N16, T, ACC, G, FREE, W = 1, 2, 3, 4, 20, 28, 92, WREG
        VP, VR_ = T + 12, T + 13
        a("L_tail:")
        self.jitter(4, 15, 2)
        self.stamp(5)
        a(f"s_cmp_eq_u32 s{sTY}, 0\ns_cbranch_scc1 L_fin")
        a(f"v_subrev_u32 v{TL}, 256, v0\nv_and_b32 v{LN}, 63, v0\nv_and_b32 v{N16}, 15, v0")
        for j in range(8): a(f"v_mov_b32 v{ACC+j}, 0")
        sSEL = 9
        ZO, TR = 90, 93
        a(f"v_mov_b32 v{ZO}, 0\nv_mov_b32 v{ZO+1}, 1")
        a(f"v_mov_b32 v{G+52}, v30")
        self.poll(lambda: a(f"ds_read_b32 v{T+3}, v{ACC} offset:{SEL}"), lambda: self.inv_poison([T + 3], T + 4), sleep=2, lds=True, tail=True)
        a(f"v_readfirstlane_b32 s{sSEL}, v{T+3}\ns_and_b32 s{sSEL}, s{sSEL}, 8192")
        if self.gdone: a(f"s_cmp_eq_u32 s{sTY}, 2\ns_cbranch_scc1 L_nodone")
        if self.dnd: a(f"s_cmp_eq_u32 s{sTY}, 3\ns_cbranch_scc1 L_dn")
        self.done_wait(T + 3, ACC)
        a("L_nodone:")
        a(f"s_cmp_eq_u32 s{sTY}, 3\ns_cbranch_scc1 L_dn")
        a(f"v_lshrrev_b32 v{VP}, 4, v{LN}\nv_lshl_add_u32 v{VP}, v{N16}, 2, v{VP}\ns_lshl_b32 s11, s{sTW}, 8\ns_add_u32 s11, s11, {PW}")
        a(f"v_lshl_add_u32 v{VP}, v{VP}, 2, s11\nv_lshlrev_b32 v{VR_}, 2, v{LN}\nv_add_u32 v{T+14}, {PW}, v{VR_}")
        a(f"s_cmp_eq_u32 s{sTY}, 2\ns_cbranch_scc1 L_gu")
        NP = 4096 // GW // 64; NS = NP // 2; HPT = 32 // GW
        lg = NP.bit_length() - 1
        steps = [self.R4, self.R8] if NP == 4 else [self.R8]
        ML, F = G + 16, T + 4
        a(f"s_lshr_b32 s12, s{sTW}, {3 - (HPT.bit_length() - 1)}\ns_mul_i32 s13, s{sRB}, {HPT}\ns_add_u32 s12, s12, s13\ns_mul_i32 s12, s12, {8*REC}\ns_add_u32 s12, s12, {OA}")
        self.yrow(15, sRB, 13)
        a(f"s_lshl_b32 s13, s{sRA}, 8\ns_add_u32 s15, s15, s13\ns_add_u32 s15, s15, s{sSEL}")
        a(f"v_lshrrev_b32 v{T+1}, {lg}, v{N16}\nv_mul_u32_u24 v{T+1}, {NS*REC}, v{T+1}")
        a(f"v_bfe_u32 v{T}, v{TL}, 4, {(32 // HPT).bit_length() - 1}\nv_lshlrev_b32 v{T}, {lg+3}, v{T}\nv_and_b32 v{T+2}, {NP-1}, v{N16}")
        a(f"v_lshl_add_u32 v{T}, v{T+2}, 3, v{T}\nv_add_u32 v{T}, v{T}, v{T+1}")
        PW_ = []
        def loads_oa():
            for k in range(NS): a(f"buffer_load_dwordx2 {vr(G+2*k,2)}, v{T}, {srd(SW)}, s12 offen offset:{REC*k} sc1")
        def loads():
            for k in range(NS): a(f"buffer_load_dwordx2 {vr(ML+2*k,2)}, v{T+1}, {srd(SW)}, s12 offen offset:{512+REC*k} sc1")
            loads_oa()
        self.poll_pre(loads, 2 * NS, lambda: PW_.extend(self.preperm4(W, NP, FREE)), lambda: self.inv_poison(range(ML, ML + 2 * NS), T + 2), sleep=2)
        a(f"v_max_f32 v{T+2}, v{ML}, v{ML+2}")
        if NS == 4: a(f"v_max3_f32 v{T+2}, v{T+2}, v{ML+4}, v{ML+6}")
        self.dpp_red("v_max_f32", [T + 2], steps)
        for k in range(NS): a(f"v_sub_f32 v{F+k}, v{ML+2*k}, v{T+2}")
        for k in range(NS): a(f"v_mul_f32 v{F+k}, {LOG2E}, v{F+k}")
        for k in range(NS): a(f"v_exp_f32 v{F+k}, v{F+k}")
        a(f"v_mul_f32 v{T+2}, v{F}, v{ML+1}")
        for k in range(1, NS): a(f"v_fmac_f32 v{T+2}, v{F+k}, v{ML+2*k+1}")
        self.dpp_red("v_add_f32", [T + 2], steps)
        a(f"v_rcp_f32 v{T+2}, v{T+2}")
        for k in range(NS): a(f"v_mul_f32 v{F+k}, v{F+k}, v{T+2}")
        self.inv_poison(range(G, G + 2 * NS), T + 2)
        a("s_cbranch_vccz L_oa_ok")
        self.poll(loads_oa, lambda: self.inv_poison(range(G, G + 2 * NS), T + 2), sleep=self.ps, tail=True)
        a("L_oa_ok:")
        self.stamp(8)
        a(f"v_pk_mul_f32 {vr(T+2,2)}, {vr(G,2)}, {vr(F,2)} op_sel_hi:[1,0]")
        for k in range(1, NS):
            sel = "op_sel:[0,1,0] op_sel_hi:[1,1,1]" if k % 2 else "op_sel_hi:[1,0,1]"
            a(f"v_pk_fma_f32 {vr(T+2,2)}, {vr(G+2*k,2)}, {vr(F+k//2*2,2)}, {vr(T+2,2)} {sel}")
        self.dpp_red("v_add_f32", [T + 2, T + 3], steps)
        a(f"v_cvt_pk_bf16_f32 v{T+2}, v{T+2}, v{T+3}")
        for p in range(NP):
            for j in range(4): a(f"v_dot2c_f32_bf16_dpp v{ACC+j}, v{T+2}, v{PW_[p][j]} row_newbcast:{p} row_mask:0xf bank_mask:0xf")
        self.reduce4(list(range(ACC, ACC + 4)))
        a(f"ds_write_b32 v{VP}, v{ACC}")
        self.ticket(lambda: self.part_reads(G, T + 14, 256), 4, TR, ZO)
        self.part_sum(G)
        a(f"v_min_u32 v{G}, 0xfffffffe, v{G}")
        self.mem(f"buffer_store_dword v{G}, v{VR_}, {srd(SW)}, s15 offen sc1")
        self.stamp(9)
        a("s_branch L_fin")
        a("L_gu:")
        GA, SBv, CB1, XV, S1, S2 = T + 2, T + 4, T + 6, T + 8, T + 10, T + 11
        U = G + 40
        a(f"v_lshrrev_b32 v{T}, 4, v{TL}\nv_mul_u32_u24 v{T}, 10, v{T}\nv_add_u32 v{T}, v{T}, v{N16}\nv_lshlrev_b32 v{T+1}, 2, v{T}\nv_lshlrev_b32 v{T}, 3, v{T}")
        a(f"v_mov_b32 v{S1}, 0\nv_mov_b32 v{S2}, 0")
        a(f"v_and_b32 v{U+4}, 32, v{LN}\ns_lshl_b32 s11, s{sTW}, 2\nv_add_u32 v{U+4}, s11, v{U+4}\nv_lshlrev_b32 v{U+5}, 2, v{N16}")
        a(f"s_lshl_b32 s15, s{sRA}, 7\ns_add_u32 s15, s15, {GUP}\ns_mov_b32 s12, {MG}")
        a(f"v_mov_b32 v{U+6}, {f32(1/640)}")
        PG_ = []
        self.mask(0x03ff03ff03ff03ff)
        for k in range(4): a(f"ds_read_b32 v{G+k}, v{T+1} offset:{MGL+1280*k}")
        a("s_waitcnt lgkmcnt(0)")
        for dst, s in ((GA, G), (SBv, G + 1), (CB1, G + 2), (XV, G + 3)): self.unpack(dst, dst + 1, s)
        a(f"v_add_f32 v{CB1}, 1.0, v{CB1}\nv_add_f32 v{CB1+1}, 1.0, v{CB1+1}\nv_cvt_pk_bf16_f32 v{U}, v{CB1}, v{CB1+1}")
        self.unpack(CB1, CB1 + 1, U)
        if self.lin:
            a(f"v_mov_b32 v{U+14}, v{U}\nv_mov_b32 v{U+15}, v{G+1}\nv_add_f32 v{S1}, v{XV}, v{XV+1}")
            self.unmask()
            self.dpp_red("v_add_f32", [S1], [self.X1, self.X2, self.R4, self.R8])
            self.allred_rows("v_add_f32", [S1], [S2])
            a(f"v_mul_f32 v{U+13}, {f32(1/80)}, v{S1}")
            a(f"v_mul_f32 v{U+16}, v{U+13}, v{CB1}\nv_mul_f32 v{U+17}, v{U+13}, v{CB1+1}")
            a(f"v_mov_b32 v{S1}, 0\nv_mov_b32 v{S2}, 0")
        assert GW == 8
        self.unmask()
        self.yrow(14, sTW, 13)
        a(f"s_add_u32 s14, s14, s{sSEL}\ns_add_u32 s15, s15, s{sSEL}")
        a(f"v_lshlrev_b32 v{U+7}, 4, v{LN}\ns_mul_i32 s13, s{sTW}, 2560\ns_add_u32 s13, s13, {VL}")
        a(f"v_add_u32 v{U+8}, s13, v{U+7}\nv_add_u32 v{T}, {VL}, v{T}")
        a(f"v_mov_b32 v{U+9}, 0x7fffffff\nv_cmp_gt_u32 vcc, 32, v{LN}\nv_cndmask_b32 v{U+9}, v{U+9}, v{U+7}, vcc")
        def loads():
            a(f"buffer_load_dwordx4 {vr(G,4)}, v{U+7}, {srd(SW)}, s14 offen sc1")
            a(f"buffer_load_dwordx4 {vr(G+4,4)}, v{U+7}, {srd(SW)}, s14 offen offset:1024 sc1")
            a(f"buffer_load_dwordx4 {vr(G+8,4)}, v{U+9}, {srd(SW)}, s14 offen offset:2048 sc1")
        if self.gdone:
            self.done_wait(U + 10, ACC)
            a(f"s_cbranch_execz L_wdone")
            self.wissued = 0; self.wmax = 20
            self.wloads(20, U + 12)
            a("L_wdone:")
        CBP, SBP, MC, AS, BS = U + 14, U + 15, U + 16, U + 18, U + 19
        def pre():
            X = G + 16
            for j in range(4): a(f"v_mov_b32 v{X+j}, 0")
            def after(p, P):
                if not self.lin: return
                for j in range(4): a(f"v_dot2c_f32_bf16_dpp v{X+j}, v{CBP}, v{P[j]} row_newbcast:{p} row_mask:0xf bank_mask:0xf")
                for j in range(4): a(f"v_dot2c_f32_bf16_dpp v{ACC+4+j}, v{SBP}, v{P[j]} row_newbcast:{p} row_mask:0xf bank_mask:0xf")
            PG_.extend(self.preperm4(W, 10, FREE, before=lambda p: a(f"s_waitcnt vmcnt({3 + 18 - 2*p})"), after=after))
            if not self.lin: return
            for j in range(4): a(f"v_mul_f32 v{ACC+j}, v{U+13}, v{X+j}")
            self.reduce4(list(range(X, X + 4))); self.reduce4(list(range(ACC + 4, ACC + 8)))
            a(f"ds_write_b32 v{VP}, v{X} offset:2048\nds_write_b32 v{VP}, v{ACC+4} offset:4096")
            self.barrier()
            a(f"v_add_u32 v{X+8}, 2048, v{T+14}\nv_add_u32 v{X+9}, 4096, v{T+14}")
            self.sum_parts(X, X + 8, 256); a(f"v_mov_b32 v{AS}, v{X}")
            self.sum_parts(X, X + 9, 256); a(f"v_mov_b32 v{BS}, v{X}")
        self.poll_pre(loads, 3, pre, lambda: self.inv_poison(range(G, G + 12), U), sleep=self.ps, prog=True)
        a(f"ds_write_b128 v{U+8}, {vr(G,4)}\nds_write_b128 v{U+8}, {vr(G+4,4)} offset:1024")
        self.mask(0xffffffff)
        a(f"ds_write_b128 v{U+8}, {vr(G+8,4)} offset:2048")
        self.unmask()
        self.barrier()
        self.stamp(2)
        self.mask(0x03ff03ff03ff03ff)
        for k in range(4): a(f"ds_read2st64_b64 {vr(G+4*k,4)}, v{T} offset0:{10*k} offset1:{10*k+5}")
        for k in range(4):
            a(f"s_waitcnt lgkmcnt({0 if self.stamps else 3-k})\nv_pk_add_f32 {vr(G+4*k,2)}, {vr(G+4*k,2)}, {vr(G+4*k+2,2)}")
            if k % 2: a(f"v_pk_add_f32 {vr(G+4*k-4,2)}, {vr(G+4*k-4,2)}, {vr(G+4*k,2)}")
        a(f"v_pk_add_f32 {vr(G,2)}, {vr(G,2)}, {vr(G+8,2)}")
        def rb2():
            a(f"v_cvt_pk_bf16_f32 v{U}, v{G}, v{G+1}"); self.unpack(G, G + 1, U)
        rb2()
        a(f"v_pk_mul_f32 {vr(G,2)}, {vr(G,2)}, {vr(GA,2)}"); rb2()
        a(f"v_pk_add_f32 {vr(G,2)}, {vr(G,2)}, {vr(XV,2)}"); rb2()
        if self.lin:
            a(f"v_pk_fma_f32 {vr(G+2,2)}, {vr(G,2)}, {vr(CB1,2)}, {vr(MC,2)} neg_lo:[0,0,1] neg_hi:[0,0,1]")
            a(f"v_add_f32 v{S1}, v{G}, v{G+1}\nv_cvt_pk_bf16_f32 v{U}, v{G+2}, v{G+3}\nv_mul_f32 v{S2}, v{G}, v{G}\nv_fmac_f32 v{S2}, v{G+1}, v{G+1}")
            self.unmask()
            side = [f"v_permlane32_swap_b32 v{S1}, v{S2}", f"v_add_f32 v{S1}, v{S1}, v{S2}", f"v_mov_b32 v{S2}, v{S1}", f"v_permlane16_swap_b32 v{S2}, v{S1}",
                    f"v_add_f32 v{S1}, v{S1}, v{S2}"] + [f"v_add_f32_dpp v{S1}, v{S1}, v{S1} {s} row_mask:0xf bank_mask:0xf" for s in (self.R8, self.R4, self.X2, self.X1)] + \
                   [f"ds_write_b32 v{U+4}, v{S1} offset:{STL}"]
            for p in range(10):
                for j in range(4): a(f"v_dot2c_f32_bf16_dpp v{ACC+j}, v{U}, v{PG_[p][j]} row_newbcast:{p} row_mask:0xf bank_mask:0xf")
                a(side[p])
            self.reduce4(list(range(ACC, ACC + 4)))
            a(f"ds_write_b32 v{VP}, v{ACC}")
            a(f"v_lshlrev_b32 v{T}, 1, v{LN}")
            def reads():
                a(f"ds_read_b32 v{U+1}, v{U+5} offset:{STL}")
                self.part_reads(G, T + 14, 256)
            self.ticket(reads, 5, TR, ZO)
            a(f"s_waitcnt lgkmcnt({0 if self.stamps else 4})")
            a(f"v_add_f32_dpp v{U+1}, v{U+1}, v{U+1} {self.X1} row_mask:0xf bank_mask:0xf")
            a(f"s_waitcnt lgkmcnt(2)\nv_add_f32 v{G}, v{G}, v{G+1}")
            a(f"v_add_f32_dpp v{U+1}, v{U+1}, v{U+1} {self.X2} row_mask:0xf bank_mask:0xf")
            a(f"v_add_f32 v{G+2}, v{G+2}, v{G+3}\ns_waitcnt lgkmcnt(0)")
            a(f"v_add_f32_dpp v{U+1}, v{U+1}, v{U+1} {self.HM} row_mask:0xf bank_mask:0xf")
            a(f"v_add_f32 v{G+4}, v{G+4}, v{G+5}\nv_add_f32 v{G+6}, v{G+6}, v{G+7}")
            a(f"v_mul_f32_dpp v{S1}, v{U+1}, v{U+6} row_newbcast:0 row_mask:0xf bank_mask:0xf")
            a(f"v_mul_f32_dpp v{S2}, v{U+1}, v{U+6} row_newbcast:8 row_mask:0xf bank_mask:0xf")
            a(f"v_fma_f32 v{S2}, -v{S1}, v{S1}, v{S2}\nv_max_f32 v{S2}, 0, v{S2}")
            a(f"v_cvt_pk_bf16_f32 v{U}, v{S1}, v{S2}")
            a(f"v_and_b32 v{S2}, s{sHIMASK}, v{U}\nv_lshlrev_b32 v{S1}, 16, v{U}")
            a(f"v_add_f32 v{S2}, {f32(1e-5)}, v{S2}")
            a(f"v_cvt_pk_bf16_f32 v{S2}, v{S2}, v{S2}\nv_and_b32 v{S2}, s{sHIMASK}, v{S2}")
            a(f"v_sqrt_f32 v{S2}, v{S2}\nv_add_f32 v{G}, v{G}, v{G+2}")
            a(f"v_cvt_pk_bf16_f32 v{S2}, v{S2}, v{S2}\nv_add_f32 v{G+4}, v{G+4}, v{G+6}\nv_and_b32 v{S2}, s{sHIMASK}, v{S2}")
            a(f"v_rcp_f32 v{S2}, v{S2}\nv_add_f32 v{G}, v{G}, v{G+4}")
            a(f"v_fma_f32 v{G}, -v{S1}, v{AS}, v{G}\nv_fma_f32 v{G}, v{G}, v{S2}, v{BS}")
        else:
            a(f"v_add_f32 v{S1}, v{G}, v{G+1}\nv_mul_f32 v{S2}, v{G}, v{G}\nv_fmac_f32 v{S2}, v{G+1}, v{G+1}")
            self.unmask()
            a(f"v_permlane32_swap_b32 v{S1}, v{S2}\nv_add_f32 v{S1}, v{S1}, v{S2}")
            a(f"v_mov_b32 v{S2}, v{S1}\nv_permlane16_swap_b32 v{S2}, v{S1}\nv_add_f32 v{S1}, v{S1}, v{S2}")
            self.dpp_red("v_add_f32", [S1], [self.R8, self.R4, self.X2, self.X1])
            self.mask(0x0000000100000001)
            a(f"ds_write_b32 v{U+4}, v{S1} offset:{STL}")
            self.unmask()
            self.barrier()
            a(f"ds_read_b32 v{U+1}, v{U+5} offset:{STL}\ns_waitcnt lgkmcnt(0)")
            self.dpp_red("v_add_f32", [U + 1], [self.X1, self.X2, self.HM])
            a(f"v_mul_f32_dpp v{S1}, v{U+1}, v{U+6} row_newbcast:0 row_mask:0xf bank_mask:0xf")
            a(f"v_mul_f32_dpp v{S2}, v{U+1}, v{U+6} row_newbcast:8 row_mask:0xf bank_mask:0xf")
            a(f"v_fma_f32 v{S2}, -v{S1}, v{S1}, v{S2}\nv_max_f32 v{S2}, 0, v{S2}")
            a(f"v_cvt_pk_bf16_f32 v{U}, v{S1}, v{S2}")
            a(f"v_and_b32 v{S2}, s{sHIMASK}, v{U}\nv_lshlrev_b32 v{S1}, 16, v{U}")
            a(f"v_add_f32 v{S2}, {f32(1e-5)}, v{S2}\nv_sub_f32 v{G}, v{G}, v{S1}")
            a(f"v_cvt_pk_bf16_f32 v{S2}, v{S2}, v{S2}\nv_sub_f32 v{G+1}, v{G+1}, v{S1}\nv_and_b32 v{S2}, s{sHIMASK}, v{S2}")
            a(f"v_sqrt_f32 v{S2}, v{S2}\nv_cvt_pk_bf16_f32 v{U}, v{G}, v{G+1}")
            a(f"v_cvt_pk_bf16_f32 v{S2}, v{S2}, v{S2}\nv_lshlrev_b32 v{G}, 16, v{U}\nv_and_b32 v{S2}, s{sHIMASK}, v{S2}")
            a(f"v_rcp_f32 v{S2}, v{S2}\nv_and_b32 v{G+1}, s{sHIMASK}, v{U}")
            a(f"v_mul_f32 v{G}, v{G}, v{S2}\nv_mul_f32 v{G+1}, v{G+1}, v{S2}"); rb2()
            a(f"v_pk_mul_f32 {vr(G,2)}, {vr(G,2)}, {vr(CB1,2)}"); rb2()
            a(f"v_pk_add_f32 {vr(G,2)}, {vr(G,2)}, {vr(SBv,2)}")
            a(f"v_cvt_pk_bf16_f32 v{U}, v{G}, v{G+1}")
            for p in range(10):
                for j in range(4): a(f"v_dot2c_f32_bf16_dpp v{ACC+j}, v{U}, v{PG_[p][j]} row_newbcast:{p} row_mask:0xf bank_mask:0xf")
            self.reduce4(list(range(ACC, ACC + 4)))
            a(f"ds_write_b32 v{VP}, v{ACC}")
            a(f"v_lshlrev_b32 v{T}, 1, v{LN}")
            self.barrier()
            a(f"s_cmp_lg_u32 s{sTW}, 0\ns_cbranch_scc1 L_fin")
            self.sum_parts(G, T + 14, 256)
        a(f"s_cmp_ge_u32 s{sRA}, 27\ns_cbranch_scc1 L_gu_up")
        self.rbf(G, G)
        self.silu(G, G, G + 1)
        a("L_gu_up:")
        a(f"v_mov_b32_dpp v{G+1}, v{G} {self.X1} row_mask:0xf bank_mask:0xf")
        a(f"v_cvt_pk_bf16_f32 v{G}, v{G}, v{G+1}\nv_min_u32 v{G}, 0xfffffffe, v{G}")
        self.mask(0x5555555555555555)
        self.mem(f"buffer_store_dword v{G}, v{T}, {srd(SW)}, s15 offen sc1")
        self.stamp(3)
        a("s_branch L_fin")
        a("L_dn:")
        GA, GB, XV, R = T + 8, T + 9, T + 10, T + 11
        self.mksrd(SA, P_WD, 0 if self.dbg & 1024 else 1728 * 1280)
        a(f"s_lshl_b32 s12, s{sRA}, 5\ns_add_u32 s13, s12, 5120")
        a(f"v_lshrrev_b32 v{T}, 1, v{TL}\nv_mul_u32_u24 v{T}, {8*1280}, v{T}\nv_and_b32 v{T+1}, 1, v{TL}\nv_lshl_add_u32 v{T}, v{T+1}, 4, v{T}")
        i0_ = self.din if self.dback >= 0 else 0
        if i0_ < 8: self.mem("\n".join(f"buffer_load_dwordx4 {vr(W+4*i,4)}, v{T}, {srd(SA)}, s{12+i//4} offen offset:{1280*(i%4)}{self.dpol}" for i in range(i0_, 8)))
        a(f"v_lshrrev_b32 v{VP}, 3, v{LN}\nv_lshl_add_u32 v{VP}, v{T+1}, 3, v{VP}\ns_lshl_b32 s11, s{sTW}, 6\ns_add_u32 s11, s11, {PW}")
        a(f"v_lshl_add_u32 v{VP}, v{VP}, 2, s11\nv_lshlrev_b32 v{VR_}, 2, v{LN}\nv_add_u32 v{VR_}, {PW}, v{VR_}")
        a(f"s_cmp_lg_u32 s{sTW}, 0\ns_cbranch_scc1 L_dn_x1done")
        self.mksrd(SB, P_X, 1280)
        a(f"v_lshrrev_b32 v{T}, 1, v{N16}\nv_lshlrev_b32 v{T}, 2, v{T}")
        a(f"s_add_u32 s13, s12, {MG}\ns_lshl_b32 s15, s{sRA}, 6\ns_add_u32 s15, s15, {YB}\ns_add_u32 s15, s15, s{sSEL}")
        self.mem(f"buffer_load_dword v{G+2}, v{T}, {srd(SB)}, s12 offen")
        def loads():
            a(f"buffer_load_dword v{G}, v{T}, {srd(SW)}, s13 offen sc1")
            a(f"buffer_load_dword v{G+1}, v{T}, {srd(SW)}, s13 offen offset:{3*1280} sc1")
        self.poll(loads, lambda: self.inv_poison([G, G + 1], T + 4), sleep=8, tail=True)
        a(f"v_cmp_eq_u32 vcc, 1, v{T+1}")
        for dst, s in ((GA, G), (GB, G + 1), (XV, G + 2)):
            self.unpack(T + 2, T + 3, s); a(f"v_cndmask_b32 v{dst}, v{T+2}, v{T+3}, vcc")
        for k in range(2):
            a(f"v_lshrrev_b32 v{T+2}, 4, v{LN}\nv_add_u32 v{T+2}, {4*k}, v{T+2}\nv_mul_u32_u24 v{T+3}, 11, v{T+2}\nv_lshrrev_b32 v{T+3}, 5, v{T+3}")
            a(f"v_mul_u32_u24 v{T+3}, 8704, v{T+3}\nv_mul_u32_u24 v{T+2}, 2560, v{T+2}\nv_add_u32 v{T+2}, v{T+2}, v{T+3}\nv_lshl_add_u32 v{T+6+k}, v{N16}, 2, v{T+2}")
        def loads():
            for k in range(2): a(f"buffer_load_dword v{G+k}, v{T+6+k}, {srd(SW)}, s15 offen sc1")
        self.poll(loads, lambda: self.inv_poison(range(G, G + 2), T + 2), sleep=2, tail=True)
        for k in range(1, GW // 4): a(f"v_add_f32 v{G}, v{G}, v{G+k}")
        self.allred_rows("v_add_f32", [G], [T])
        self.rbf(G, G)
        a(f"v_mul_f32 v{G}, v{GA}, v{G}")
        self.rbf(G, G)
        a(f"v_add_f32 v{XV}, v{XV}, v{G}")
        self.rbf(XV, XV)
        a(f"ds_write_b32 v{VR_}, v{GB} offset:1024\nds_write_b32 v{VR_}, v{XV} offset:1280")
        a(f"s_cmp_lg_u32 s{sRA}, 0\ns_cbranch_scc1 L_dn_x1done")
        a(f"s_mul_i32 s{sT}, s{sT}, 1664525\ns_add_u32 s{sT}, s{sT}, 1013904223")
        self.mask(1)
        a(f"v_mov_b32 v{G+1}, s{sT}\nv_mov_b32 v{T}, 0")
        self.mem(f"buffer_store_dword v{G+1}, v{T}, {srd(SW)}, 0 offen sc1")
        self.unmask()
        a("L_dn_x1done:")
        self.mksrd(SB, P_OUT, 1280)
        PD_ = []
        for i in range(4): a(f"v_mov_b32 v{G+i}, 0")
        a(f"v_lshlrev_b32 v{T}, 3, v{TL}\ns_add_u32 s13, s{sSEL}, {GUP}\nv_lshlrev_b32 v{T+5}, 1, v{LN}")
        def loads():
            a(f"buffer_load_dwordx2 {vr(G,2)}, v{T}, {srd(SW)}, s13 offen sc1")
            a(f"buffer_load_dwordx2 {vr(G+2,2)}, v{T}, {srd(SW)}, s13 offen offset:3456 sc1")
        self.poll_pre(loads, 2, lambda: PD_.extend(self.preperm(W, 4, FREE)), lambda: self.inv_poison(range(G, G + 4), T + 2), sleep=self.ps,
                      narrow=lambda: a(f"v_cmp_gt_u32 vcc, 432, v{TL}\ns_mov_b64 exec, vcc"))
        self.stamp(10)
        for i in range(4): self.unpack(G + 4 + 2 * i, G + 5 + 2 * i, G + i)
        a(f"v_pk_mul_f32 {vr(G+4,2)}, {vr(G+4,2)}, {vr(G+8,2)}\nv_pk_mul_f32 {vr(G+6,2)}, {vr(G+6,2)}, {vr(G+10,2)}")
        a(f"v_cvt_pk_bf16_f32 v{G}, v{G+4}, v{G+5}\nv_cvt_pk_bf16_f32 v{G+1}, v{G+6}, v{G+7}")
        for p in range(4):
            qp = "quad_perm:[0,0,2,2]" if p < 2 else "quad_perm:[1,1,3,3]"
            for j in range(8): a(f"v_dot2c_f32_bf16_dpp v{ACC+j}, v{G+p%2}, v{PD_[p][j]} {qp} row_mask:0xf bank_mask:0xf")
        self.reduce8(list(range(ACC, ACC + 8)), R)
        a(f"v_add_f32_dpp v{R}, v{R}, v{R} row_shl:4 row_mask:0xf bank_mask:0x5")
        self.dpp_red("v_add_f32", [R], [self.X2])
        self.mask(0x0303030303030303)
        a(f"ds_write_b32 v{VP}, v{R}")
        def reads():
            self.part_reads(G, VR_, 64)
            a(f"ds_read2st64_b32 {vr(ACC,2)}, v{VR_} offset0:4 offset1:5")
        self.ticket(reads, 5, TR, ZO)
        self.part_sum(G, 1)
        self.mask(0xffff)
        GB, XV = ACC, ACC + 1
        self.rbf(G, G)
        a("s_waitcnt lgkmcnt(0)")
        a(f"v_mul_f32 v{G}, v{GB}, v{G}")
        self.rbf(G, G)
        a(f"v_add_f32 v{G}, v{XV}, v{G}\nv_cvt_pk_bf16_f32 v{G}, v{G}, v{G}")
        self.mem(f"buffer_store_short v{G}, v{T+5}, {srd(SB)}, s12 offen{self.opol}")
        a("L_fin:")
        if self.dry: a("s_cbranch_execz L_dry_ret")
        if self.stamps:
            self.stamp(11)
            a(f"s_cmp_lg_u32 s{sTY}, 0\ns_cselect_b32 s12, s11, s{sTW}\ns_cselect_b32 s13, 6, 0\ns_cmp_lg_u32 s12, s13\ns_cbranch_scc1 L_end")
            self.store_stamps((2, 3, 4, 5, 8, 9, 10, 11), 0)
        a("L_end:")
        a("s_endpgm")

    def build(self):
        a = self.a
        for l in HEADER.strip("\n").split("\n"): a.raw("; " + l if l else ";")
        a.raw(f"; @launch grid=(256,1,1) block=(768,1,1) lds={VL + 8 * 1024 * self.NL}")
        a.raw('.amdgcn_target "amdgcn-amd-amdhsa--gfx950"')
        a.raw(f".text\n.globl {NAME}_kernel\n.p2align 8\n.type {NAME}_kernel,@function\n{NAME}_kernel:")
        if self.stamps:
            for i in range(2, 24): a(f"s_mov_b32 s{STAMP0+i}, 0")
        self.stamp(0)
        VO, Q, MK, A0, D, T, S, RING = 1, 2, 6, 10, 18, 22, 31, 40
        a("s_load_dwordx16 s[16:31], s[0:1], 0\ns_load_dwordx8 s[32:39], s[0:1], 64\ns_load_dwordx2 s[42:43], s[0:1], 104")
        a(f"v_lshrrev_b32 v2, 6, v0\nv_and_b32 v1, 63, v0\nv_readfirstlane_b32 s{sWAVE}, v2")
        a("s_cmp_ge_u32 s2, 256\ns_cbranch_scc1 L_end")
        self.jitter(0, 63, 37)
        if self.amap == 1: a(f"s_and_b32 s{sCI}, s2, 7\ns_lshl_b32 s{sCI}, s{sCI}, 5\ns_lshr_b32 s11, s2, 3\ns_or_b32 s{sCI}, s{sCI}, s11")
        elif self.amap == 2:
            a(f"s_bfe_u32 s{sCI}, s2, 0x20001\ns_lshl_b32 s{sCI}, s{sCI}, 6\ns_lshr_b32 s11, s2, 5\ns_lshl_b32 s11, s11, 3\ns_or_b32 s{sCI}, s{sCI}, s11")
            a(f"s_and_b32 s11, s2, 1\ns_lshl_b32 s11, s11, 2\ns_or_b32 s{sCI}, s{sCI}, s11\ns_bfe_u32 s11, s2, 0x20003\ns_or_b32 s{sCI}, s{sCI}, s11")
        else: a(f"s_mov_b32 s{sCI}, s2")
        a(f"s_cmp_lt_u32 s{sWAVE}, 4\ns_cbranch_scc1 {'L_help0' if self.eb else 'L_help'}")
        a(f"s_sub_u32 s10, s{sWAVE}, 4\ns_lshl_b32 s9, s{sCI}, 18\ns_lshl_b32 s14, s10, 12\nv_lshl_add_u32 v{VO}, v1, 4, s9")
        if self.gx == 1: a("s_and_b32 s11, s2, 7\ns_lshl_b32 s11, s11, 15\ns_or_b32 s14, s14, s11")
        if self.gx == 2: a("s_bfe_u32 s11, s2, 0x30003\ns_lshl_b32 s11, s11, 15\ns_or_b32 s14, s14, s11")
        if self.gx == 3: a("s_lshr_b32 s11, s2, 3\ns_add_u32 s11, s11, s2\ns_and_b32 s11, s11, 7\ns_lshl_b32 s11, s11, 15\ns_or_b32 s14, s14, s11")
        if self.gx == 4: a("s_lshl_b32 s11, s10, 15\ns_or_b32 s14, s14, s11")
        a(f"s_mov_b32 s{SA+2}, 0x4000000\ns_mov_b32 s{SA+3}, 0x20000")
        a("s_waitcnt lgkmcnt(0)")
        a(f"s_mov_b32 s{SA}, s{P_K}\ns_and_b32 s{SA+1}, s{P_K+1}, 0xffff")
        for t in range(4):
            if self.early == t: a("s_barrier")
            a(f"buffer_load_dwordx4 {vr(RING+4*t,4)}, v{VO}, {srd(SA)}, s14 offen offset:{t*1024} nt")
        if self.early == 4: a("s_barrier")
        if self.eb:
            a("s_branch L_b2")
            a("L_help0:")
            a("v_lshlrev_b32 v2, 1, v0\nv_mov_b32 v3, -1\nds_write_b16 v2, v3\ns_waitcnt lgkmcnt(0)\ns_barrier\ns_branch L_help")
            a("L_b2:")
        self.mksrd(SB, P_V, 0x4000000)
        a(f"s_xor_b32 s15, s14, 8192\ns_mul_i32 s13, s10, {1024*self.NL}\ns_add_u32 s13, s13, {VL}")
        self.common_setup()
        self.masks(MK, T)
        for i in range(4): a(f"v_mov_b32 v{D+i}, 0")
        a(f"v_lshlrev_b32 v{T+1}, 4, v{T+1}")
        a(f"v_and_b32 v{T+7}, 63, v0\nv_lshl_add_u32 v{T+7}, v{T+7}, 4, s13")
        if self.early == 5: a("s_barrier")
        self.bulk(); self.tail()
        a("L_help:")
        a(f"s_setprio 3\ns_and_b32 s{sX}, s2, 7\ns_lshr_b32 s{sR}, s2, 3")
        a(f"s_cmp_eq_u32 s{sWAVE}, 2\ns_cbranch_scc1 L_h2")
        a("s_waitcnt lgkmcnt(0)")
        self.common_setup()
        a(f"s_cmp_eq_u32 s{sWAVE}, 1\ns_cbranch_scc1 L_h1\ns_cmp_eq_u32 s{sWAVE}, 3\ns_cbranch_scc1 L_h3")
        self.h0(); self.h1(); self.h2(); self.h3()
        a.raw(".p2align 6\n.type role_tbl,@object\nrole_tbl:")
        t = role_table(self.roles, self.GW)
        for i in range(0, 256, 8): a.raw("    .long " + ", ".join("0x%08x" % v for v in t[i:i+8]))
        a.raw(".size role_tbl, 1024")
        if self.dynr:
            a.raw(".type ord_tbl,@object\nord_tbl:")
            t = order_table(self.omode, self.sh)
            for i in range(0, 256, 8): a.raw("    .long " + ", ".join("0x%08x" % v for v in t[i:i+8]))
            a.raw(".size ord_tbl, 1024")
        a.raw('.section .rodata,"a"\n.p2align 6')
        a.raw(f".amdhsa_kernel {NAME}_kernel")
        a.raw("  .amdhsa_next_free_vgpr 168\n  .amdhsa_next_free_sgpr 102\n  .amdhsa_accum_offset 168\n  .amdhsa_group_segment_fixed_size 0")
        a.raw("  .amdhsa_kernarg_size 112\n  .amdhsa_user_sgpr_count 2\n  .amdhsa_user_sgpr_kernarg_segment_ptr 1\n  .amdhsa_system_sgpr_workgroup_id_x 1")
        a.raw("  .amdhsa_float_denorm_mode_32 3")
        a.raw(".end_amdhsa_kernel")
        return a.text()

if __name__ == "__main__":
    for spec in sys.argv[1:]:
        name, _, kw = spec.partition(":")
        kw = dict((k, int(v)) for k, v in (p.split("=") for p in kw.split(",") if p))
        open(f"work/{name}.s", "w").write(Gen(**kw).build())
        import numpy as np
        np.save(f"work/{name}.roles.npy", np.array(role_table(kw.get("roles", 6), kw.get("GW", 8)), dtype=np.uint32))
```

```python
import sys, struct
from asmlib import Asm
NAME = "adaLN_cond__gqa_block_cached__swiglu_ffn__decode"

def f32(x): return "0x%08x" % struct.unpack("<I", struct.pack("<f", x))[0]
LOG2E = f32(1.4426950408889634)
NLOG2E = f32(-1.4426950408889634)
SCALE = f32(128 ** -0.5)

PZ, MP, QP = 0x4000, 0x40000, 0x80000
YB = PZ
GUP = PZ + 3 * 16384
OA = PZ + 4 * 16384; REC = 640
MG = OA + 256 * REC
SG = MG + 5120
RC = SG + 128
assert RC + 2048 <= PZ + 240 * 1024 and MG % 128 == 0
WS_BYTES = 0xC0000
PG1 = 416
QL, MLW, ISS, F0L, CNT, DONE, SEL, ROL, OW = 0, 256, 384, 344, 356, 360, 364, 368, 512
STL, PW = 4608, 4736
MGL = 10880
VL = 16000
sWAVE, sX, sR, sCI, sT, sBUD, sTW = 3, 4, 5, 6, 7, 8, 10
P_X, P_K, P_V, P_WQ, P_WO, P_WG, P_WU, P_WD, P_C, P_WM, P_OUT, P_WS = 16, 18, 20, 22, 24, 28, 30, 32, 34, 36, 38, 42
sROLE, sTY, sRA, sRB = 26, 27, 40, 41
SA, SB, SW, SC = 44, 48, 52, 56
sWOFF, sWSTR, sFULL = 60, 61, 62
sWGT = 64
sEX = 72
sPERMLO, sPERMHI, sHIMASK, sWJMP = 74, 75, 76, 77
STAMP0 = 78
FULL = f"s[{sFULL}:{sFULL+1}]"

def srd(n): return f"s[{n}:{n+3}]"
def vr(a, n): return f"v[{a}:{a+n-1}]"

def role_table(mode, GW):
    B = lambda x, r: 8 * r + x
    even = [B(x, r) for r in range(32) for x in (0, 2, 4, 6)]
    odd = [B(x, r) for r in range(32) for x in (1, 3, 5, 7)]
    wo = [(1, k, g) for g in range(GW) for k in range(10)]
    gu = [(2, k, 0) for k in range(54)]
    role = {}
    if mode == 0: order = list(range(256)); dnx = list(range(8))
    elif mode == 1: order = even + odd; dnx = [1, 3, 5, 7]
    elif mode == 2: order = even + odd; dnx = [1, 3, 5, 7]
    elif mode == 3: order = even + odd; dnx = [0, 2, 4, 6]
    elif mode == 4: order = even + odd; dnx = [0, 2, 4, 6]
    SPEC = {8: ((0, 2), (1, 3), ((0, 2), (4, 6))),
            9: ((1, 3), (0, 2), ((4, 6), (0, 2), (1, 3))),
            10: ((4, 6), (1, 3), ((0, 2), (4, 6))),
            11: ((1, 3), (4, 6), ((0, 2), (4, 6), (1, 3))),
            12: ((0, 2, 4, 6), (1, 3), ((0, 2, 4, 6),)),
            13: ((0, 1, 2, 3), (0, 1, 2, 3), ((4, 6), (0, 2), (1, 3))),
            14: ((0, 2), (1, 3, 5), ((4, 6), (0, 2)))}
    if mode in SPEC:
        dnx = list(SPEC[mode][0])
        A = lambda xs: [B(x, r) for r in range(32) for x in xs]
        for b, rl in zip(A(SPEC[mode][1]), gu): role[b] = rl
        gu = []
        order = sum([A(xs) for xs in SPEC[mode][2]], [])
    if mode == 30:
        dnx = list(range(8)); order = list(range(256))
    if mode == 6:
        dnx = [0, 2]
        A = lambda xs: [B(x, r) for r in range(32) for x in xs]
        for b, rl in zip(A((1, 3)), gu): role[b] = rl
        gu = []
        order = A((4, 6)) + A((0, 2)) + A((5, 7))
    if mode == 7:
        dnx = [4, 6]
        A = lambda xs: [B(x, r) for r in range(32) for x in xs]
        for b, rl in zip(A((5, 7)), gu): role[b] = rl
        gu = []
        order = A((0, 2)) + A((4, 6)) + A((1, 3))
    for k in range(40):
        x = dnx[(k // 4) % len(dnx)]; r = 31 - (k % 4) - 4 * ((k // 4) // len(dnx))
        role[B(x, r)] = (3, k, 0)
    free = [b for b in order if b not in role]
    for b, rl in zip(free, (wo + gu) if mode not in (2, 4) else (gu + wo)): role[b] = rl
    assert len(role) == 40 + 54 + 10 * GW
    mg = {B(k % 8, 30 + (k // 8) % 2) if k < 16 else B(k % 8, 29): k for k in range(20)}
    t = []
    for b in range(256):
        ty, a_, b_ = role.get(b, (0, 0, 0))
        t.append(ty | (a_ << 8) | (b_ << 16) | (mg.get(b, 255) << 24))
    return t

def order_table(omode, sh=1):
    wo = [(1, k, g) for g in range(8) for k in range(10)]
    gu = [(2, k, 0) for k in range(54)]; dn = [(3, k, 0) for k in range(40)]
    if omode == 0: s0, s1 = dn + gu, wo
    elif omode == 1: s0, s1 = gu + dn, wo
    elif omode == 2: s0, s1 = wo[:16] + dn + gu, wo[16:]
    elif omode == 3: s0, s1 = wo[:16] + gu + dn, wo[16:]
    elif omode == 5: s0, s1 = gu, wo
    elif omode == 6: s0, s1 = wo[:16] + gu, wo[16:]
    elif omode == 7: s0, s1 = wo[:8] + gu, wo[8:]
    elif omode == 8: s0, s1 = gu + wo[:10], wo[10:]
    elif omode == 4:
        s0 = [x for p in zip(dn, gu) for x in p] + gu[40:]; s1 = wo
    t = []
    for s in (s0, s1):
        s = s + [(0, 0, 0)] * (128 - len(s))
        s = [x for k in range(sh) for x in s[k::sh]]
        t += [ty | (a << 8) | (b << 16) for ty, a, b in s]
    return t

HEADER = """
Fused adaLN + decode attention + SwiGLU FFN, ONE persistent launch (hand-written generator: work/gen8.py + asmlib.py).
256 workgroups (one per CU) x 12 waves: waves 4-11 stream K/V (1024 keys per workgroup), waves 0-3 are helpers.
 head : silu(c)@w_mod and h@wq as 80x128 K-split tiles (masked-A MFMA), exchanged through d_ws as {value,tag} granules;
        tag = LCG(epoch word found in d_ws), only used to tell this launch's hand-offs from an earlier launch's.
 main : QK via v_dot2 + DPP, per-wave true-max softmax, PV via masked-A MFMA; part of V is prefetched to LDS until q arrives.
 tail : split-softmax combine + wo, LayerNorm (folded into the GEMV) + gate/up, down + residual; hand-off slots are poisoned
        at the start of the launch (ordered by the q dependency chain), so every dword validates itself.
        wo / gate-up tiles go to the workgroups that finish their scores first (arrival counter); placement affects speed only.
 every spin is bounded.
"""

WREG = 40 + 4 * 14

class Gen:
    def __init__(self, stamps=0, budget=30000, D=4, NL=18, roles=6, dbg=0, pre1=0, pre2=0, DO=0, GW=8, WCH=4, dry=1, ps=0, extra=0, early=4, pad=-1, pick=-1, tlb=0, rot=1, l2pre=0, eb=0, wback=0, wgu=0, gdone=0, near=1, opol=0, gx=0, amap=1, ov=1, lin=1, jit=0, wsync=0, TD=0, prio=0, dsel=0, dynr=1, omode=7, trig=0, dback=-1, dper=1, dpol=0, din=8, dnd=0, dynm=0, P1=16, msides=1, sh=2):
        self.a = Asm(); self.stamps = stamps; self.budget = budget; self.D = D; self.NL = NL; self.DO = DO
        self.roles = roles; self.dbg = dbg; self.pre1 = pre1; self.pre2 = pre2; self.GW = GW; self.WCH = WCH; self.dry = dry; self.ps = ps; self.extra = extra; self.early = early; self.tlb = tlb; self.sh = sh; self.dynm = dynm; self.P1 = P1; self.msides = msides; self.din = din; self.dnd = dnd; self.dback = dback; self.dper = dper; self.dpol = ' nt' if dpol else ''; self.dynr = dynr; self.omode = omode; self.trig = trig; self.dsel = dsel; self.wsync = wsync; self.TD = TD; self.prio = prio; self.jit = jit; self.near_x = (4, 5, 6, 7) if roles == 7 else (0, 1, 2, 3); self.lin = lin; self.ov = ov; self.amap = amap; self.gx = gx; self.opol = ['', ' sc1', ' sc0 sc1', ' nt'][opol]; self.near = near; self.gdone = gdone; self.wback = wback; self.wgu = wgu; self.eb = eb; self.l2pre = l2pre; self.rot = rot; self.pad = pad; self.pick = pick

    def mksrd(self, s, p, nbytes):
        self.a(f"s_mov_b32 s{s}, s{p}\ns_and_b32 s{s+1}, s{p+1}, 0xffff\ns_mov_b32 s{s+2}, {nbytes}\ns_mov_b32 s{s+3}, 0x20000")

    def stamp(self, i, prog=False):
        if self.stamps == 5 and not prog and i != 0: return
        if prog and self.stamps != 5: return
        if self.stamps: self.a(f"s_memrealtime s[{STAMP0+2*i}:{STAMP0+2*i+1}]")

    def poll(self, loads, invalid, sleep=1, lds=False, tail=False):
        a = self.a
        L, D = a.label("L_poll"), a.label("L_pdone")
        a(f"s_mov_b64 s[{sEX}:{sEX+1}], exec")
        if tail: a(f"s_cbranch_execz {D}")
        a(f"{L}:")
        loads()
        a("s_waitcnt lgkmcnt(0)" if lds else "s_waitcnt vmcnt(0)")
        invalid()
        a(f"s_cbranch_vccz {D}")
        a(f"s_cmp_eq_u32 s{sBUD}, 0\ns_cbranch_scc1 {D}\ns_sub_u32 s{sBUD}, s{sBUD}, 1")
        a("s_mov_b64 exec, vcc")
        if sleep: a(f"s_sleep {sleep}")
        a(f"s_branch {L}")
        a(f"{D}:")
        a(f"s_mov_b64 exec, s[{sEX}:{sEX+1}]")

    def poll_pre(self, loads, nloads, pre, invalid, sleep=0, narrow=None, prog=False):
        a = self.a
        L, W, D, S = a.label("L_poll"), a.label("L_pw"), a.label("L_pdone"), a.label("L_ps")
        if narrow: narrow()
        a(f"s_mov_b64 s[{sEX}:{sEX+1}], exec")
        a(f"s_cbranch_execz {S}")
        loads()
        a((f"s_waitcnt vmcnt({nloads})\n" if not prog else "") + f"s_branch {S}2")
        a(f"{S}:")
        a("s_waitcnt vmcnt(0)")
        a(f"{S}2:")
        if narrow: self.unmask()
        pre()
        a(f"s_mov_b64 exec, s[{sEX}:{sEX+1}]")
        a(f"s_cbranch_execz {D}\ns_branch {W}")
        a(f"{L}:")
        loads()
        a(f"{W}:")
        a("s_waitcnt vmcnt(0)")
        invalid()
        a(f"s_cbranch_vccz {D}")
        a(f"s_cmp_eq_u32 s{sBUD}, 0\ns_cbranch_scc1 {D}\ns_sub_u32 s{sBUD}, s{sBUD}, 1")
        a("s_mov_b64 exec, vcc")
        if sleep: a(f"s_sleep {sleep}")
        a(f"s_branch {L}")
        a(f"{D}:")
        self.unmask()

    def lds_wait(self, off, n, T, sleep=4):
        a = self.a
        a(f"v_and_b32 v{T}, {n-1}, v1\nv_lshlrev_b32 v{T}, 2, v{T}")
        self.poll(lambda: a(f"ds_read_b32 v{T+1}, v{T} offset:{off}"), lambda: self.inv_poison([T + 1], T + 2), sleep=sleep, lds=True)

    def inv_tags(self, tagregs, tmp):
        a = self.a
        a(f"v_xor_b32 v{tmp}, s{sT}, v{tagregs[0]}")
        for t in tagregs[1:]:
            a(f"v_xor_b32 v{tmp+1}, s{sT}, v{t}\nv_or_b32 v{tmp}, v{tmp}, v{tmp+1}")
        a(f"v_cmp_ne_u32 vcc, 0, v{tmp}")

    def inv_poison(self, regs, tmp):
        a = self.a
        regs = list(regs)
        if len(regs) == 1:
            a(f"v_cmp_eq_u32 vcc, -1, v{regs[0]}"); return
        if len(regs) == 2:
            a(f"v_max_u32 v{tmp}, v{regs[0]}, v{regs[1]}"); rest = []
        else:
            a(f"v_max3_u32 v{tmp}, v{regs[0]}, v{regs[1]}, v{regs[2]}"); rest = regs[3:]
        while len(rest) >= 2:
            a(f"v_max3_u32 v{tmp}, v{tmp}, v{rest[0]}, v{rest[1]}"); rest = rest[2:]
        if rest: a(f"v_max_u32 v{tmp}, v{tmp}, v{rest[0]}")
        a(f"v_cmp_eq_u32 vcc, -1, v{tmp}")

    def reduce8(self, acc, t):
        a = self.a
        for j in range(4): a(f"v_permlane32_swap_b32 v{acc[j]}, v{acc[j+4]}")
        for j in range(4): a(f"v_add_f32 v{acc[j]}, v{acc[j]}, v{acc[j+4]}")
        for j in range(2): a(f"v_permlane16_swap_b32 v{acc[j]}, v{acc[j+2]}")
        for j in range(2): a(f"v_add_f32 v{acc[j]}, v{acc[j]}, v{acc[j+2]}")
        a(f"v_add_f32_dpp v{t}, v{acc[0]}, v{acc[0]} row_ror:8 row_mask:0xf bank_mask:0x3")
        a(f"v_add_f32_dpp v{t}, v{acc[1]}, v{acc[1]} row_ror:8 row_mask:0xf bank_mask:0xc")

    def allred_rows(self, op, regs, tmps):
        a = self.a
        for sw in ("v_permlane16_swap_b32", "v_permlane32_swap_b32"):
            for r, t in zip(regs, tmps): a(f"v_mov_b32 v{t}, v{r}")
            for r, t in zip(regs, tmps): a(f"{sw} v{t}, v{r}")
            for r, t in zip(regs, tmps): a(f"{op} v{r}, v{r}, v{t}")

    def dpp_red(self, op, regs, steps):
        for s in steps:
            for r in regs: self.a(f"{op}_dpp v{r}, v{r}, v{r} {s} row_mask:0xf bank_mask:0xf")

    X1, X2, HM, R4, R8 = "quad_perm:[1,0,3,2]", "quad_perm:[2,3,0,1]", "row_half_mirror", "row_ror:4", "row_ror:8"

    def rbf(self, d, s):
        self.a(f"v_cvt_pk_bf16_f32 v{d}, v{s}, v{s}\nv_and_b32 v{d}, s{sHIMASK}, v{d}")

    def silu(self, d, s, t):
        self.a(f"v_mul_f32 v{t}, {NLOG2E}, v{s}\nv_exp_f32 v{t}, v{t}\nv_add_f32 v{t}, 1.0, v{t}\nv_rcp_f32 v{t}, v{t}\nv_mul_f32 v{d}, v{s}, v{t}")

    def preperm(self, W, npairs, free):
        a = self.a
        PP = []
        for p in range(npairs):
            E = list(range(W + 8 * p, W + 8 * p + 4)); O = list(range(W + 8 * p + 4, W + 8 * p + 8))
            P = []
            for d in range(4):
                a(f"v_perm_b32 v{free}, v{O[d]}, v{E[d]}, s{sPERMLO}")
                a(f"v_perm_b32 v{O[d]}, v{O[d]}, v{E[d]}, s{sPERMHI}")
                P += [free, O[d]]
                free = E[d]
            PP.append(P)
        return PP

    def ln_scalars(self, s1, s2, t):
        a = self.a
        a(f"v_mul_f32 v{s1}, {f32(1/640)}, v{s1}\nv_mul_f32 v{s2}, {f32(1/640)}, v{s2}")
        a(f"v_fma_f32 v{s2}, -v{s1}, v{s1}, v{s2}\nv_max_f32 v{s2}, 0, v{s2}")
        a(f"v_cvt_pk_bf16_f32 v{t}, v{s1}, v{s2}")
        a(f"v_lshlrev_b32 v{s1}, 16, v{t}\nv_and_b32 v{s2}, s{sHIMASK}, v{t}")
        a(f"v_add_f32 v{s2}, {f32(1e-5)}, v{s2}")
        self.rbf(s2, s2)
        a(f"v_sqrt_f32 v{s2}, v{s2}")
        self.rbf(s2, s2)
        a(f"v_rcp_f32 v{s2}, v{s2}")

    def masks(self, MK, T):
        a = self.a
        a(f"v_and_b32 v{T+1}, 15, v0\nv_mov_b32 v{T+2}, 0xffff\nv_mov_b32 v{T+3}, 0xffff0000")
        for i in range(4):
            a(f"v_cmp_eq_u32 vcc, {2*i}, v{T+1}\nv_cndmask_b32 v{MK+i}, 0, v{T+2}, vcc")
            a(f"v_cmp_eq_u32 vcc, {2*i+1}, v{T+1}\nv_cndmask_b32 v{MK+i}, v{MK+i}, v{T+3}, vcc")

    def bulk(self):
        a = self.a
        if self.DO:
            if self.dsel:
                a(f"s_waitcnt lgkmcnt(0)\ns_and_b32 s11, s{sROLE}, 3\ns_bitcmp1_b32 {self.dsel}, s11\ns_cbranch_scc1 L_bulk_odd")
            else: a(f"s_bitcmp1_b32 s2, 0\ns_cbranch_scc1 L_bulk_odd")
            self.bulk_body(32, "e", self.D)
            a("L_bulk_odd:")
            self.bulk_body(32, "o", self.DO)
        else:
            self.bulk_body(32, "o")
        self.bulk_fin()

    def bulk_body(self, N, sfx, Dx=None):
        a = self.a
        Dx = Dx or self.D
        if Dx < 20: Dx *= 10
        D_ = (Dx + 9) // 10; NLS = self.NL
        depth = lambda i: ((i + 1) * Dx) // 10 - (i * Dx) // 10
        VO, Q, MK, A0, D, T, S, RING = 1, 2, 6, 10, 18, 22, 31, 40
        NG = (N + 3) // 4
        assert NG <= 9 and N % 4 == 0
        dest = []
        for t in range(N): dest.append(("r", t) if t < 32 else ("l", t - 32))
        lnext = max(0, N - 32); spare = list(range(N, 32)); late = 0
        for t in range(N):
            if spare: dest.append(("r", spare.pop(0)))
            elif lnext < NLS: dest.append(("l", lnext)); lnext += 1
            else: dest.append(("R", late)); late += 1
        PRE = 2 * N - late
        scratch = [s for s in range(late, min(N, 32))]
        assert len(scratch) >= 8
        scratch = scratch[-8:]
        assert late <= 14 and scratch[0] >= 24
        self.issued = 0; self.m0 = None; self.s12 = None; self.wissued = 0; self.wpos = []
        after = lambda v: (self.issued - 1 - v) + sum(1 for p in self.wpos if p > v)
        def ld():
            i = self.issued
            if i >= 2 * N: return
            t = i % N
            kind, slot = dest[i]
            if i >= depth(i): a(f"s_waitcnt vmcnt({after(i - depth(i))})")
            if self.s12 != t // 4:
                if self.rot == 1: a(f"s_xor_b32 s12, s{14 + (t//4) % 2}, {(t//4)*32768}")
                else: a(f"s_xor_b32 s12, s14, {(t//4)*32768 + [0,2,4,6,1,3,5,7][t//4]*4096}")
                self.s12 = t // 4
            s_ = srd(SA if i < N else SB)
            if kind == "l":
                m = slot * 1024 - (t % 4) * 1024
                if self.m0 != m: a(f"s_add_u32 m0, s13, {m}\ns_nop 0" if m >= 0 else f"s_sub_u32 m0, s13, {-m}\ns_nop 0"); self.m0 = m
                a(f"buffer_load_dwordx4 v{VO}, {s_}, s12 offen offset:{(t%4)*1024} nt lds")
            else:
                a(f"buffer_load_dwordx4 {vr(RING+4*slot,4)}, v{VO}, {s_}, s12 offen offset:{(t%4)*1024} nt")
            self.issued += 1
            if i in (9, 15, 21, 27, 33, 39, 45, 51, 57, 63): self.stamp((i - 3) // 6, prog=True)
            if self.dynm and i == self.P1:
                a(f"s_lshl_b32 s11, s10, 2\nv_mov_b32 v{T+8}, s11\nds_write_b32 v{T+8}, v{T+8} offset:{PG1}")
            if self.trig and i == self.trig:
                a(f"s_lshl_b32 s11, s10, 2\nv_mov_b32 v{T+8}, s11\nds_write_b32 v{T+8}, v{T+8} offset:{ISS}")
        def landed(i, may_issue):
            while self.issued < 2 * N and self.issued - D_ <= i and may_issue(self.issued): ld()
            if self.issued - D_ <= i: a(f"s_waitcnt vmcnt({after(i)})")
        self.issued = 4
        for t in range(4, PRE): ld()
        self.stamp(4)
        self.poll(lambda: a(f"ds_read_b128 {vr(Q,4)}, v{T+1} offset:{QL}"), lambda: self.inv_poison(range(Q, Q + 4), T + 2), sleep=2, lds=True)
        order = list(range(min(NG, 8)))
        if NG > 8: order = [7] + list(range(7)) + [8]
        done_slots = set()
        free_for = lambda i: dest[i][1] in done_slots and not (NG > 8 and dest[i][1] >= 28)
        for n, u in enumerate(order):
            tiles = [t for t in range(4 * u, 4 * u + 4) if t < N]
            landed(tiles[-1], free_for)
            if u == 8: a("s_waitcnt lgkmcnt(0)")
            for d in range(4):
                for b, t in enumerate(tiles):
                    k = RING + 4 * (t if t < 32 else t - 4) + d
                    if d == 0: a(f"v_dot2_f32_bf16 v{T+b}, v{k}, v{Q}, 0")
                    else: a(f"v_dot2_f32_bf16 v{T+b}, v{k}, v{Q+d}, v{T+b}")
            for b in range(len(tiles), 4): a(f"v_mov_b32 v{T+b}, 0xff800000")
            if u < 8: done_slots |= set(tiles)
            if NG > 8 and u == 7:
                landed(N - 1, lambda i: False)
                for t in range(32, N): a(f"ds_read_b128 {vr(RING+4*(t-4),4)}, v{T+7} offset:{1024*(t-32)}")
            if n in (1, 4, 7) and self.issued < 2 * N and free_for(self.issued): ld()
            a(f"v_add_f32_dpp v{T+4}, v{T}, v{T} row_ror:8 row_mask:0xf bank_mask:0x3")
            a(f"v_add_f32_dpp v{T+5}, v{T+1}, v{T+1} row_ror:8 row_mask:0xf bank_mask:0x3")
            a(f"v_add_f32_dpp v{T+4}, v{T+2}, v{T+2} row_ror:8 row_mask:0xf bank_mask:0xc")
            a(f"v_add_f32_dpp v{T+5}, v{T+3}, v{T+3} row_ror:8 row_mask:0xf bank_mask:0xc")
            a(f"v_add_f32_dpp v{S+u}, v{T+4}, v{T+4} row_shl:4 row_mask:0xf bank_mask:0x5")
            a(f"v_add_f32_dpp v{S+u}, v{T+5}, v{T+5} row_shr:4 row_mask:0xf bank_mask:0xa")
        Sr = list(range(S, S + NG))
        self.dpp_red("v_add_f32", Sr, [self.X2, self.X1])
        prs = [(Sr[i], Sr[min(i + 1, NG - 1)]) for i in range(0, NG, 2)]
        for rep in range(2):
            for k, (x, y) in enumerate(prs): a(f"v_cvt_pk_bf16_f32 v{T+k}, v{x}, v{y}")
            for k, (x, y) in enumerate(prs):
                a(f"v_lshlrev_b32 v{x}, 16, v{T+k}")
                if y != x: a(f"v_and_b32 v{y}, s{sHIMASK}, v{T+k}")
            if rep == 0:
                for r in Sr: a(f"v_mul_f32 v{r}, {SCALE}, v{r}")
        M, Ls = T + 4, T + 5
        a(f"v_max3_f32 v{M}, v{Sr[0]}, v{Sr[1]}, v{Sr[2]}")
        rest = Sr[3:]
        while len(rest) >= 2: a(f"v_max3_f32 v{M}, v{M}, v{rest[0]}, v{rest[1]}"); rest = rest[2:]
        if rest: a(f"v_max_f32 v{M}, v{M}, v{rest[0]}")
        self.dpp_red("v_max_f32", [M], [self.R4, self.R8])
        self.allred_rows("v_max_f32", [M], [T])
        ld()
        for r in Sr: a(f"v_sub_f32 v{r}, v{r}, v{M}")
        for r in Sr: a(f"v_mul_f32 v{r}, {LOG2E}, v{r}")
        for r in Sr: a(f"v_exp_f32 v{r}, v{r}")
        a(f"v_add_f32 v{Ls}, v{Sr[0]}, v{Sr[1]}")
        for r in Sr[2:]: a(f"v_add_f32 v{Ls}, v{Ls}, v{r}")
        for r in Sr: a(f"v_cvt_pk_bf16_f32 v{r}, v{r}, v{r}")
        self.dpp_red("v_add_f32", [Ls], [self.R4, self.R8])
        self.allred_rows("v_add_f32", [Ls], [T])
        a(f"v_min_u32 v{M}, 0xfffffffe, v{M}")
        a(f"s_lshl_b32 s11, s10, 3\nv_mov_b32 v{T}, s11")
        a("s_mov_b64 exec, 1")
        a(f"ds_write_b64 v{T}, {vr(M,2)} offset:{MLW}")
        a("s_mov_b64 exec, -1")
        a(f"v_and_b32 v{T}, 15, v0\nv_lshlrev_b32 v{T}, 5, v{T}\nv_and_b32 v{T+1}, 16, v0\nv_add_u32 v{T}, v{T}, v{T+1}")
        a(f"s_lshl_b32 s11, s10, 9\nv_add_u32 v{T}, s11, v{T}")
        yes = lambda i: True
        lt = [t for t in range(N) if dest[N + t][0] == "l"]
        chunks = [lt[i:i + 4] for i in range(0, len(lt), 4)]
        where = {}
        def lds_reads(c):
            if c >= len(chunks): return
            for k, t in enumerate(chunks[c]):
                landed(N + t, yes)
                where[t] = scratch[(c % 2) * 4 + k]
                a(f"ds_read_b128 {vr(RING+4*where[t],4)}, v{T+7} offset:{1024*dest[N+t][1]}")
        a("s_waitcnt lgkmcnt(0)")
        lds_reads(0)
        FW = T + 6
        got_f = False
        if not self.dynr: self.weight_setup(T + 8, Q)
        RG = 4096 // self.GW // 32
        def wloads(n, va=T+8):
            for k in range(n):
                i = self.wissued
                if i >= self.wmax: return
                a(f"buffer_load_dwordx2 {vr(WREG+2*i,2)}, v{va}, {srd(SC)}, s{sWOFF} offen nt")
                a(f"s_add_u32 s{sWOFF}, s{sWOFF}, s{sWSTR}")
                if i == RG - 1: a(f"s_add_u32 s{sWOFF}, s{sWOFF}, s{sWJMP}")
                self.wissued += 1; self.wpos.append(self.issued)
        self.wloads = wloads
        def step(t):
            A = A0 + 4 * (t % 2)
            for i in range(4):
                a(f"v_and_b32_dpp v{A+i}, v{S+t//4}, v{MK+i} row_newbcast:{4*(t%4)} row_mask:0xf bank_mask:0xf")
            if t in lt:
                c, k = divmod(lt.index(t), 4)
                if k == 0:
                    if c % 2 == 1: ld()
                    a("s_waitcnt lgkmcnt(0)")
                    lds_reads(c + 1)
                slot = where[t]
            else:
                landed(N + t, yes)
                slot = dest[N + t][1]
            a(f"v_mfma_f32_16x16x32_bf16 {vr(D,4)}, {vr(A,4)}, {vr(RING+4*slot,4)}, {vr(D,4)}")
        def getrole():
            if self.dynr:
                a(f"v_mov_b32 v{Q}, 0")
                self.poll(lambda: a(f"ds_read_b32 v{Q+1}, v{Q} offset:{ROL}"), lambda: self.inv_poison([Q + 1], Q + 2), sleep=1, lds=True)
                a(f"v_readfirstlane_b32 s{sROLE}, v{Q+1}")
                self.weight_setup(T + 8, Q)
        def getf():
            if self.prio: a("s_setprio 2")
            a(f"v_and_b32 v{T+2}, 7, v0\nv_lshlrev_b32 v{T+2}, 3, v{T+2}")
            self.poll(lambda: a(f"ds_read_b32 v{FW}, v{T+2} offset:{MLW}"), lambda: self.inv_poison([FW], T + 3), sleep=2, lds=True)
            self.dpp_red("v_max_f32", [FW], [self.X1, self.X2, self.HM])
            a(f"v_sub_f32 v{FW}, v{M}, v{FW}\nv_mul_f32 v{FW}, {LOG2E}, v{FW}\nv_exp_f32 v{FW}, v{FW}")
            a(f"s_mul_i32 s14, s{sCI}, {REC}\ns_add_u32 s14, s14, {OA}")
            a(f"v_and_b32 v{T+2}, 63, v0\nv_lshlrev_b32 v{T+2}, 3, v{T+2}\nv_mov_b32 v{T+3}, 0\nv_mov_b32 v{T+7}, 1")
        def rest(wch, t, fn=None):
            got = False
            for u in range(t, N):
                if self.issued == 2 * N and not got: getf(); got = True
                if wch: (fn or wloads)(wch if u < N - 1 else 20)
                step(u)
            assert got
        t = 0
        if self.dback >= 0:
            while not (self.issued >= 2 * N - self.dback and t > (lt[-1] if lt else 0)):
                step(t); t += 1
            getrole()
            L1 = a.label("L_nod")
            a(f"s_cmp_lg_u32 s{sTY}, 3\ns_cbranch_scc1 {L1}")
            self.mksrd(SA, P_WD, 1728 * 1280)
            a(f"s_lshl_b32 s{sWOFF}, s{sRA}, 5\ns_add_u32 s{sWSTR}, s{sWOFF}, 5120")
            a(f"v_subrev_u32 v{Q}, 256, v0\nv_lshrrev_b32 v{Q}, 1, v{Q}\nv_mul_u32_u24 v{T+8}, {8*1280}, v{Q}\nv_and_b32 v{Q}, 1, v0\nv_lshl_add_u32 v{T+8}, v{Q}, 4, v{T+8}")
            def dloads(n):
                for k in range(n):
                    i = self.wissued
                    if i >= self.din: return
                    a(f"buffer_load_dwordx4 {vr(WREG+4*i,4)}, v{T+8}, {srd(SA)}, s{sWOFF + i//4} offen offset:{1280*(i%4)}{self.dpol}")
                    self.wissued += 1; self.wpos.append(self.issued)
            save = (self.issued, self.s12)
            rest(self.dper, t, dloads)
            a("s_branch L_bulk_fin")
            a(f"{L1}:")
            self.issued, self.s12 = save; self.wissued = 0; self.wpos = []
        while not (self.issued >= 2 * N - self.wback and t > (lt[-1] if lt else 0)):
            step(t); t += 1
        if self.dback < 0: getrole()
        if self.WCH:
            L0 = a.label("L_now")
            if self.wgu: a(f"s_cmp_eq_u32 s{SC+2}, 0\ns_cbranch_scc1 {L0}"); self.wmax = 20
            else: a(f"s_cmp_lg_u32 s{sTY}, 1\ns_cbranch_scc1 {L0}"); self.wmax = RG
            save = (self.issued, self.s12)
            if self.wsync:
                assert self.wback == 0
                a(f"s_lshl_b32 s11, s10, 2\nv_mov_b32 v{Q}, s11\nds_write_b32 v{Q}, v{Q} offset:{ISS}\nv_and_b32 v{Q}, 7, v0\nv_lshlrev_b32 v{Q}, 2, v{Q}")
                self.poll(lambda: a(f"ds_read_b32 v{Q+1}, v{Q} offset:{ISS}"), lambda: self.inv_poison([Q + 1], Q + 2), sleep=1, lds=True)
            rest(self.WCH, t)
            a(f"s_mov_b32 s{SC+2}, 0")
            a("s_branch L_bulk_fin")
            a(f"{L0}:")
            self.issued, self.s12 = save; self.wissued = 0; self.wpos = []
        rest(0, t)
        if sfx == "e": a("s_branch L_bulk_fin")

    def bulk_fin(self):
        a = self.a
        VO, Q, MK, A0, D, T, S, RING = 1, 2, 6, 10, 18, 22, 31, 40
        FW = T + 6
        a("L_bulk_fin:")
        self.jitter(3, 31, 9)
        self.stamp(11, prog=True)
        if self.stamps == 6:
            a(f"s_memrealtime s[{STAMP0+2}:{STAMP0+3}]\ns_waitcnt lgkmcnt(0)\ns_mov_b64 exec, 1")
            a(f"s_add_u32 s{STAMP0+20}, s{P_WS}, 0x8000000\ns_addc_u32 s{STAMP0+21}, s{P_WS+1}, 0")
            a(f"s_mul_i32 s11, s2, 192\ns_lshl_b32 s12, s10, 3\nv_mov_b32 v3, s11\ns_add_u32 s11, s11, s12\nv_mov_b32 v2, s11")
            a(f"v_mov_b32 v4, s{STAMP0+2}\nv_mov_b32 v5, s{STAMP0+3}\nglobal_store_dwordx2 v2, v[4:5], s[{STAMP0+20}:{STAMP0+21}] offset:8\ns_nop 1")
            a(f"v_mov_b32 v4, s{STAMP0+8}\nv_mov_b32 v5, s{STAMP0+9}\nglobal_store_dwordx2 v2, v[4:5], s[{STAMP0+20}:{STAMP0+21}] offset:104\ns_nop 1")
            a(f"v_mov_b32 v4, s{STAMP0}\nv_mov_b32 v5, s{STAMP0+1}\nglobal_store_dwordx2 v3, v[4:5], s[{STAMP0+20}:{STAMP0+21}]\ns_nop 1")
            a("s_mov_b64 exec, -1")
        a("s_mov_b32 exec_hi, 0")
        for i in range(4): a(f"v_mul_f32 v{D+i}, v{FW}, v{D+i}")
        a(f"ds_write_b128 v{T}, {vr(D,4)} offset:{OW}")
        a("s_mov_b64 exec, 1")
        a(f"ds_add_rtn_u32 v{T+1}, v{T+3}, v{T+7} offset:{CNT}")
        a("s_mov_b64 exec, -1")
        a("s_waitcnt lgkmcnt(0)")
        a(f"v_readfirstlane_b32 s11, v{T+1}")
        LN = a.label("L_notlast")
        a(f"s_cmp_lg_u32 s11, 6\ns_cbranch_scc1 {LN}")
        self.stamp(6)
        for w in range(8): a(f"ds_read_b64 {vr(RING+2*w,2)}, v{T+2} offset:{OW+512*w}")
        for n, wt in ((0, 6), (2, 4), (4, 2), (6, 0)):
            a(f"s_waitcnt lgkmcnt({0 if self.stamps else wt})")
            a(f"v_pk_add_f32 {vr(RING+2*n,2)}, {vr(RING+2*n,2)}, {vr(RING+2*n+2,2)}")
            if n: a(f"v_pk_add_f32 {vr(RING,2)}, {vr(RING,2)}, {vr(RING+2*n,2)}")
        a(f"v_min_u32 v{RING}, 0xfffffffe, v{RING}\nv_min_u32 v{RING+1}, 0xfffffffe, v{RING+1}")
        a(f"buffer_store_dwordx2 {vr(RING,2)}, v{T+2}, {srd(SW)}, s14 offen sc1")
        a(f"ds_write_b32 v{T+3}, v{T+3} offset:{DONE}")
        if self.stamps:
            self.stamp(7)
            self.store_stamps((6, 7), 0)
            a("s_mov_b64 exec, -1")
        a(f"{LN}:")
        if not (self.WCH and self.wgu) and not self.gdone:
            a(f"s_cmp_eq_u32 s{SC+2}, 0\ns_cbranch_scc1 L_tail")
            self.wissued = 0; self.wmax = 20
            if self.prio: a("s_setprio 0")
            for k in range(20):
                if self.TD and k >= self.TD: a(f"s_waitcnt vmcnt({self.TD-1})")
                self.wloads(1)

    def store_stamps(self, idx, slot):
        a = self.a
        if self.stamps == 6: return
        if self.stamps == 5:
            if 11 not in idx: return
            idx = range(12)
        if self.stamps == 4:
            a("s_waitcnt lgkmcnt(0)\ns_mov_b64 exec, 1\nv_mov_b32 v2, 0")
            for i in idx: a(f"v_mov_b32 v4, s{STAMP0+2*i}\nds_write_b32 v2, v4 offset:{400+4*i}")
            a("s_waitcnt lgkmcnt(0)")
            if 11 in idx:
                t = role_table(self.roles, self.GW)
                pick = [b for b in range(240) if (t[b] & 3) == 3][0] if self.pick < 0 else self.pick
                a(f"s_cmp_lg_u32 s2, {pick}\ns_cbranch_scc1 L_end")
                a(f"ds_read_b32 v4, v2 offset:{400+4*self.pad}\ns_waitcnt lgkmcnt(0)\nv_readfirstlane_b32 s11, v4")
                a(f"s_sub_u32 s11, s11, s{STAMP0}\ns_mul_i32 s11, s11, 2\ns_add_u32 s11, s11, 5000\ns_min_u32 s11, s11, 20000")
                a(f"L_padloop:\ns_memrealtime s[12:13]\ns_waitcnt lgkmcnt(0)\ns_sub_u32 s12, s12, s{STAMP0}\ns_cmp_lt_u32 s12, s11\ns_cbranch_scc1 L_padloop")
            return
        if self.stamps == 3:
            t = role_table(self.roles, self.GW)
            pick = {ty: [b for b in range(240) if (t[b] & 3) == ty][0] for ty in (1, 2, 3)}
            a("s_load_dwordx2 s[12:13], s[0:1], 96\ns_waitcnt lgkmcnt(0)\ns_mov_b64 exec, 1\nv_mov_b32 v2, 0")
            for i in idx:
                for ty, slot in (((1, i), (2, i + 5)) if i in (8, 9) else ((3, i),)):
                    L = a.label("L_st")
                    a(f"s_cmp_lg_u32 s2, {pick[ty]}\ns_cbranch_scc1 {L}\nv_mov_b32 v4, s{STAMP0+2*i}\nglobal_store_dword v2, v4, s[12:13] offset:{4*slot}\n{L}:")
            return
        if self.stamps == 2:
            a("s_load_dwordx2 s[12:13], s[0:1], 96\ns_waitcnt lgkmcnt(0)\ns_mov_b64 exec, 1\nv_mov_b32 v2, 0")
            for i in idx:
                if i == 0: a(f"s_not_b32 s11, s{STAMP0}\nv_mov_b32 v4, s11\nglobal_atomic_umax v2, v4, s[12:13] offset:48\ns_nop 1")
                if i in (8, 9):
                    a(f"s_cmp_eq_u32 s{sTY}, 2\ns_cselect_b32 s11, 20, 0\nv_mov_b32 v3, s11\nv_mov_b32 v4, s{STAMP0+2*i}\nglobal_atomic_umax v3, v4, s[12:13] offset:{4*i}\ns_nop 1")
                else:
                    a(f"v_mov_b32 v4, s{STAMP0+2*i}\nglobal_atomic_umax v2, v4, s[12:13] offset:{4*i}\ns_nop 1")
            return
        a("s_waitcnt lgkmcnt(0)\ns_mov_b64 exec, 1")
        a(f"s_add_u32 s12, s{P_WS}, 0x8000000\ns_addc_u32 s13, s{P_WS+1}, 0")
        a(f"s_mul_i32 s11, s2, 192\nv_mov_b32 v2, s11")
        for i in idx:
            a(f"v_mov_b32 v4, s{STAMP0+2*i}\nv_mov_b32 v5, s{STAMP0+2*i+1}\nglobal_store_dwordx2 v2, v[4:5], s[12:13] offset:{8*i+96*slot}\ns_nop 1")

    def common_setup(self):
        a = self.a
        L = a.label("L_pc")
        a(f"s_load_dword s{sT}, s[{P_WS}:{P_WS+1}], 0")
        a(f"s_getpc_b64 s[{sEX}:{sEX+1}]")
        a(f"{L}:")
        a(f"s_lshl_b32 s11, s2, 2\ns_add_u32 s11, s11, role_tbl-{L}")
        a(f"s_load_dword s{sROLE}, s[{sEX}:{sEX+1}], s11")
        self.mksrd(SW, P_WS, WS_BYTES)
        a(f"s_mov_b32 s{sBUD}, {self.budget}\ns_mov_b32 s{sPERMLO}, 0x05040100\ns_mov_b32 s{sPERMHI}, 0x07060302\ns_mov_b32 s{sHIMASK}, 0xffff0000")
        a(f"s_mov_b64 {FULL}, -1")

    def role_decode(self):
        a = self.a
        a(f"s_and_b32 s{sTY}, s{sROLE}, 3\ns_bfe_u32 s{sRA}, s{sROLE}, 0x80008\ns_bfe_u32 s{sRB}, s{sROLE}, 0x80010")
        if self.dbg & 2: a(f"s_mov_b32 s{sTY}, 0")

    def weight_setup(self, VW, T):
        a = self.a
        RG = 4096 // self.GW // 32
        self.role_decode()
        a(f"s_sub_u32 s11, s{sRA}, 27\ns_cmp_lt_u32 s{sRA}, 27\ns_cselect_b32 s{SC}, s{P_WG}, s{P_WU}\ns_cselect_b32 s{SC+1}, s{P_WG+1}, s{P_WU+1}\ns_cselect_b32 s11, s{sRA}, s11")
        a(f"s_lshl_b32 s{sWOFF}, s11, 7")
        a(f"s_mul_i32 s11, s{sRB}, {RG*32*1280}\ns_lshl_b32 s{sWSTR}, s{sRA}, 7\ns_add_u32 s11, s11, s{sWSTR}")
        a(f"s_cmp_eq_u32 s{sTY}, 2\ns_cselect_b32 s{SC+2}, {640*3456}, 0")
        a(f"s_cmp_eq_u32 s{sTY}, 1\ns_cselect_b32 s{SC}, s{P_WO}, s{SC}\ns_cselect_b32 s{SC+1}, s{P_WO+1}, s{SC+1}\ns_cselect_b32 s{SC+2}, {4096*1280}, s{SC+2}")
        a(f"s_cselect_b32 s{sWOFF}, s11, s{sWOFF}\ns_cselect_b32 s{sWJMP}, 0x40000000, 0")
        a(f"s_mov_b32 s{sWSTR}, 3456\ns_cselect_b32 s{sWSTR}, 1280, s{sWSTR}\ns_mov_b32 s11, {20*3456}\ns_cselect_b32 s11, {RG*1280}, s11")
        if self.dbg & 256: a(f"s_cmp_eq_u32 s{sTY}, 1\ns_cselect_b32 s{SC+2}, 0, s{SC+2}")
        if self.dbg & 512: a(f"s_cmp_eq_u32 s{sTY}, 2\ns_cselect_b32 s{SC+2}, 0, s{SC+2}")
        a(f"s_and_b32 s{SC+1}, s{SC+1}, 0xffff\ns_mov_b32 s{SC+3}, 0x20000")
        a(f"v_subrev_u32 v{T}, 256, v0\nv_lshrrev_b32 v{T}, 4, v{T}\nv_mul_lo_u32 v{VW}, v{T}, s11\nv_and_b32 v{T}, 15, v0\nv_lshl_add_u32 v{VW}, v{T}, 3, v{VW}")

    def tile_mfma(self, W, AE, AO, MK, A0, D, PB, waits):
        a = self.a
        for t in range(20):
            A = A0 + 4 * (t % 2)
            for i in range(4):
                a(f"v_and_b32_dpp v{A+i}, v{AO if t % 2 else AE}, v{MK+i} row_newbcast:{t//2} row_mask:0xf bank_mask:0xf")
            if waits: a(f"s_waitcnt vmcnt({19-t})")
            if t < 2: a(f"v_mov_b32 v{PB+2*t+1}, s{sT}")
            a(f"v_mfma_f32_16x16x32_bf16 {vr(D,4)}, {vr(A,4)}, {vr(W+4*t,4)}, {vr(D,4)}")

    def tile_publish(self, D, PB, VA, soff):
        a = self.a
        a(f"v_permlane32_swap_b32 v{D}, v{D+2}\nv_permlane32_swap_b32 v{D+1}, v{D+3}")
        a(f"v_mov_b32 v{PB}, v{D}\nv_mov_b32 v{PB+2}, v{D+1}")
        a(f"buffer_store_dwordx4 {vr(PB,4)}, v{VA}, {srd(SW)}, s{soff} offen sc1")

    def pos2pair(self, dst, src, T):
        a = self.a
        a(f"v_and_b32 v{T}, 15, v{src}\nv_bfe_u32 v{T+1}, v{src}, 4, 1\nv_lshlrev_b32 v{T}, 2, v{T}\nv_lshl_add_u32 v{T}, v{T+1}, 1, v{T}")
        a(f"v_bfe_u32 v{T+1}, v{src}, 5, 1\nv_and_b32 v{dst}, 0xffc0, v{src}\nv_add3_u32 v{dst}, v{dst}, v{T}, v{T+1}")

    def tag(self):
        self.a(f"s_waitcnt lgkmcnt(0)\ns_mul_i32 s{sT}, s{sT}, 1664525\ns_add_u32 s{sT}, s{sT}, 1013904223")

    def pair_index(self, dst, T):
        self.a(f"v_lshrrev_b32 v{T}, 4, v1\nv_mul_u32_u24 v{T}, 10, v{T}\nv_and_b32 v{dst}, 15, v1\nv_add_u32 v{dst}, v{dst}, v{T}")

    def sum8(self, G):
        for n in (16, 8, 4):
            for i in range(0, n, 2): self.a(f"v_add_f32 v{G+i}, v{G+i}, v{G+n+i}")
        self.a(f"v_cvt_pk_bf16_f32 v{G}, v{G}, v{G+2}")

    def gather8(self, G, VO, sbase, gstride, T, sleep=1):
        a = self.a
        for g in range(8): a(f"s_add_u32 s{sWGT+g}, s{sbase}, {g*gstride}")
        def loads():
            for g in range(8): a(f"buffer_load_dwordx4 {vr(G+4*g,4)}, v{VO}, {srd(SW)}, s{sWGT+g} offen sc1")
        self.poll(loads, lambda: self.inv_tags([G + 2 * i + 1 for i in range(16)], T), sleep=sleep)
        self.sum8(G)

    def h0(self):
        a = self.a
        T, MK, D, VA, AE, AO, W, G = 2, 8, 12, 16, 17, 18, 24, 104
        A0, PB = G + 8, G + 16
        a("L_h0:")
        if self.dbg & 4: a("s_branch L_h0_none")
        sPASS = 9
        a(f"s_mov_b32 s{sPASS}, 0\ns_cmp_ge_u32 s{sR}, {10 if self.dynm else 30}\ns_cbranch_scc1 L_h0_none")
        a("L_h0_tile:")
        self.mksrd(SA, P_WM, 640 * 7680); self.mksrd(SB, P_C, 1280)
        self.pair_index(AE, T)
        a(f"v_lshlrev_b32 v{AE}, 2, v{AE}\ns_mul_i32 s13, s{sX}, 160\nv_lshlrev_b32 v{VA}, 4, v1")
        a(f"buffer_load_dword v{AE}, v{AE}, {srd(SB)}, s13 offen")
        a(f"s_mul_i32 s12, s{sX}, {80*7680}\ns_lshl_b32 s13, s{sR}, 8\ns_add_u32 s12, s12, s13")
        a(f"v_lshrrev_b32 v{T}, 4, v1\nv_mul_u32_u24 v{T}, {20*7680}, v{T}\nv_and_b32 v{T+1}, 15, v1\nv_lshl_add_u32 v{T}, v{T+1}, 4, v{T}")
        for t in range(20):
            a(f"buffer_load_dwordx4 {vr(W+4*t,4)}, v{T}, {srd(SA)}, s12 offen nt")
            if t < 19: a(f"s_add_u32 s12, s12, 7680")
        if self.dynm: a(f"s_cmp_lg_u32 s{sPASS}, 0\ns_cbranch_scc1 L_h0_p2")
        if self.dbg & 16: a("s_branch L_h0_np")
        self.jitter(1, 255, 11)
        a(f"s_cmp_ge_u32 s2, 80\ns_cbranch_scc1 L_h0_np")
        for i in range(4): a(f"v_mov_b32 v{PB+i}, -1")
        a(f"s_mul_i32 s13, s2, 3072\ns_add_u32 s13, s13, {PZ}")
        for i in range(3): a(f"buffer_store_dwordx4 {vr(PB,4)}, v{VA}, {srd(SW)}, s13 offen offset:{1024*i} sc1")
        a("L_h0_np:")
        if not self.eb: a("s_barrier")
        self.tag()
        a("L_h0_p2:")
        self.masks(MK, T)
        for i in range(4): a(f"v_mov_b32 v{D+i}, 0")
        a(f"s_mul_i32 s15, s{sX}, {3840*8}\ns_lshl_b32 s13, s{sR}, 10\ns_add_u32 s15, s15, s13\ns_add_u32 s15, s15, {MP}")
        a("s_waitcnt vmcnt(20)")
        a(f"v_and_b32 v{AO}, s{sHIMASK}, v{AE}\nv_lshlrev_b32 v{AE}, 16, v{AE}")
        self.silu(AE, AE, T); self.silu(AO, AO, T + 1)
        a(f"v_cvt_pk_bf16_f32 v{AE}, v{AE}, v{AE}\nv_cvt_pk_bf16_f32 v{AO}, v{AO}, v{AO}")
        self.tile_mfma(W, AE, AO, MK, A0, D, PB + 4, True)
        if not (self.dbg & 8): self.tile_publish(D, PB + 4, VA, 15)
        self.stamp(1)
        if self.dynm: a(f"s_cmp_lg_u32 s{sPASS}, 0\ns_cbranch_scc1 L_hend")
        a("s_waitcnt vmcnt(0)")
        a("s_branch L_h0_flag")
        a("L_h0_none:")
        if not self.eb: a("s_barrier")
        self.tag()
        if self.dynm: self.lds_wait(PG1, 1, T, sleep=4)
        a("L_h0_flag:")
        a(f"v_mov_b32 v{T}, 0\nds_write_b32 v{T}, v{T} offset:{F0L}")
        if self.dynm:
            a("s_load_dwordx2 s[12:13], s[0:1], 96")
            self.lds_wait(PG1, 8, T, sleep=4)
            if self.msides == 2: a("s_bfe_u32 s15, s2, 0x10002\ns_lshl_b32 s11, s15, 7")
            else: a("s_mov_b32 s15, 0\ns_mov_b32 s11, 0")
            a("s_mov_b32 s14, 1\ns_atomic_add s14, s[12:13], s11 glc\ns_waitcnt lgkmcnt(0)")
            a(f"s_cmp_ge_u32 s14, {160 // self.msides}\ns_cbranch_scc1 L_hend")
            a(f"s_mul_i32 s15, s15, 80\ns_add_u32 s14, s14, s15\ns_and_b32 s{sX}, s14, 7\ns_lshr_b32 s{sR}, s14, 3\ns_add_u32 s{sR}, s{sR}, 10\ns_mov_b32 s{sPASS}, 1")
            a("s_branch L_h0_tile")
        a("s_branch L_hend")

    def h1(self):
        a = self.a
        T, MK, D, VA, AE, AO, VG, VG2, RO, C16, W, G = 2, 8, 12, 16, 17, 18, 19, 20, 21, 22, 24, 104
        A0, PB, XS = G + 8, G + 16, G
        a("L_h1:")
        if self.dbg & 4:
            if not self.eb: a("s_barrier")
            self.tag()
            a(f"v_lshlrev_b32 v{VG2}, 2, v1\nv_mov_b32 v{W}, 0\nds_write_b32 v{VG2}, v{W} offset:{QL}\ns_branch L_hend")
        self.mksrd(SA, P_WQ, 640 * 8192); self.mksrd(SC, P_X, 1280)
        a(f"s_and_b32 s14, s2, 7\ns_mul_i32 s13, s14, 40")
        self.pair_index(VG, T)
        a(f"v_add_u32 v{VG}, s13, v{VG}")
        self.pos2pair(RO, VG, T)
        a(f"v_lshlrev_b32 v{AE}, 2, v{RO}\nv_lshlrev_b32 v{RO}, 14, v{RO}\nv_lshlrev_b32 v{T+2}, 2, v1")
        a(f"v_and_b32 v{C16}, 15, v1\nv_lshlrev_b32 v{C16}, 4, v{C16}")
        a(f"buffer_load_dword v{AE}, v{AE}, {srd(SC)}, 0 offen")
        for i in range(5): a(f"buffer_load_dword v{XS+i}, v{T+2}, {srd(SC)}, 0 offen offset:{256*i}")
        a(f"s_lshr_b32 s12, s2, 3\ns_lshl_b32 s12, s12, 8\ns_add_u32 s13, s12, 8192")
        for n in range(10):
            a(f"v_add_u32_dpp v{T+n%2}, v{RO}, v{C16} row_newbcast:{n} row_mask:0xf bank_mask:0xf")
            a(f"buffer_load_dwordx4 {vr(W+8*n,4)}, v{T+n%2}, {srd(SA)}, s12 offen nt")
            a(f"buffer_load_dwordx4 {vr(W+8*n+4,4)}, v{T+n%2}, {srd(SA)}, s13 offen nt")
        if not self.eb: a("s_barrier")
        self.masks(MK, T)
        for i in range(4): a(f"v_mov_b32 v{D+i}, 0")
        a(f"v_lshlrev_b32 v{VA}, 4, v1")
        self.tag()
        a("s_waitcnt vmcnt(20)")
        S1, S2 = XS + 6, XS + 7
        a(f"v_mov_b32 v{S1}, 0\nv_mov_b32 v{S2}, 0")
        for i in range(5):
            a(f"v_lshlrev_b32 v{T}, 16, v{XS+i}\nv_and_b32 v{T+1}, s{sHIMASK}, v{XS+i}")
            a(f"v_add_f32 v{S1}, v{S1}, v{T}\nv_fmac_f32 v{S2}, v{T}, v{T}\nv_add_f32 v{S1}, v{S1}, v{T+1}\nv_fmac_f32 v{S2}, v{T+1}, v{T+1}")
        self.dpp_red("v_add_f32", [S1, S2], [self.X1, self.X2, self.R4, self.R8])
        self.allred_rows("v_add_f32", [S1, S2], [T, T + 1])
        self.ln_scalars(S1, S2, T)
        a(f"v_and_b32 v{AO}, s{sHIMASK}, v{AE}\nv_lshlrev_b32 v{AE}, 16, v{AE}")
        for r in (AE, AO):
            a(f"v_sub_f32 v{r}, v{r}, v{S1}"); self.rbf(r, r)
            a(f"v_mul_f32 v{r}, v{r}, v{S2}"); self.rbf(r, r)
        a(f"v_lshlrev_b32 v{VG}, 4, v{VG}\nv_add_u32 v{VG2}, 5120, v{VG}")
        for g in range(8): a(f"s_mov_b32 s{sWGT+g}, {MP+g*3840*8}")
        a(f"s_lshl_b32 s15, s2, 10\ns_add_u32 s15, s15, {QP}")
        if self.dbg & 8:
            a(f"v_lshlrev_b32 v{VG2}, 2, v1\nv_mov_b32 v{T}, 0\nds_write_b32 v{VG2}, v{T} offset:{QL}\ns_waitcnt vmcnt(0)\ns_branch L_hend")
        self.lds_wait(F0L, 2, T)
        a("s_mov_b32 exec_lo, 0x03ff03ff\ns_mov_b32 exec_hi, 0x03ff03ff")
        def loads():
            for g in range(8):
                a(f"buffer_load_dwordx4 {vr(G+4*g,4)}, v{VG}, {srd(SW)}, s{sWGT+g} offen sc1")
                a(f"buffer_load_dwordx4 {vr(G+32+4*g,4)}, v{VG2}, {srd(SW)}, s{sWGT+g} offen sc1")
        for k in range(self.pre1 // 100): a("s_sleep 100")
        if self.pre1 % 100: a(f"s_sleep {self.pre1 % 100}")
        if self.dbg & 32: a("s_waitcnt vmcnt(0)")
        else: self.poll(loads, lambda: self.inv_tags([G + 2 * i + 1 for i in range(32)], T), sleep=8)
        self.stamp(2)
        self.sum8(G); self.sum8(G + 32)
        a(f"v_lshlrev_b32 v{T}, 16, v{G+32}\nv_and_b32 v{T+1}, s{sHIMASK}, v{G+32}")
        a(f"v_add_f32 v{T}, 1.0, v{T}\nv_add_f32 v{T+1}, 1.0, v{T+1}\nv_cvt_pk_bf16_f32 v{T+2}, v{T}, v{T+1}")
        a(f"v_lshlrev_b32 v{T}, 16, v{T+2}\nv_and_b32 v{T+1}, s{sHIMASK}, v{T+2}")
        a(f"v_mul_f32 v{T}, v{AE}, v{T}\nv_mul_f32 v{T+1}, v{AO}, v{T+1}\nv_cvt_pk_bf16_f32 v{T+2}, v{T}, v{T+1}")
        a(f"v_lshlrev_b32 v{T}, 16, v{T+2}\nv_and_b32 v{T+1}, s{sHIMASK}, v{T+2}")
        a(f"v_lshlrev_b32 v{AE}, 16, v{G}\nv_and_b32 v{AO}, s{sHIMASK}, v{G}")
        a(f"v_add_f32 v{AE}, v{AE}, v{T}\nv_add_f32 v{AO}, v{AO}, v{T+1}")
        a(f"v_cvt_pk_bf16_f32 v{AE}, v{AE}, v{AE}\nv_cvt_pk_bf16_f32 v{AO}, v{AO}, v{AO}")
        a("s_mov_b64 exec, -1")
        self.tile_mfma(W, AE, AO, MK, A0, D, PB, False)
        self.tile_publish(D, PB, VA, 15)
        a(f"s_lshr_b32 s15, s{sCI}, 3\ns_lshl_b32 s15, s15, 13\ns_add_u32 s15, s15, {QP}")
        self.pos2pair(VG2, 1, T)
        a(f"v_lshlrev_b32 v{VG2}, 2, v{VG2}")
        a("s_waitcnt vmcnt(0)")
        for k in range(self.pre2 // 100): a("s_sleep 100")
        if self.pre2 % 100: a(f"s_sleep {self.pre2 % 100}")
        if not (self.dbg & 64): self.gather8(W, VA, 15, 1024, T, sleep=8)
        a(f"v_min_u32 v{W}, 0xfffffffe, v{W}")
        a(f"ds_write_b32 v{VG2}, v{W} offset:{QL}")
        self.stamp(3)
        a("s_branch L_hend")

    def h2(self):
        a = self.a
        T, G = 2, 8
        OCT = [self.X1, self.X2, self.HM]
        a("L_h2:")
        if self.eb: a("s_waitcnt lgkmcnt(0)")
        else:
            a("v_mov_b32 v4, -1\nv_mov_b32 v5, -1\nv_lshlrev_b32 v2, 3, v1")
            a(f"ds_write_b64 v2, v[4:5] offset:0")
            a("s_waitcnt lgkmcnt(0)\ns_barrier")
        self.common_setup()
        if self.dynr:
            a(f"s_getpc_b64 s[12:13]\nL_pc2:\ns_bfe_u32 s14, s2, 0x10002\ns_lshl_b32 s15, s14, 9\ns_add_u32 s15, s15, ord_tbl-L_pc2\nv_lshl_add_u32 v2, v1, 2, s15")
            a("global_load_dword v160, v2, s[12:13]\nglobal_load_dword v161, v2, s[12:13] offset:256")
            a(f"s_and_b32 s{sWSTR}, s{sR}, {self.sh-1}\ns_mul_i32 s14, s14, {self.sh}\ns_add_u32 s14, s14, s{sWSTR}\ns_mul_i32 s{sWSTR}, s{sWSTR}, {128//self.sh}")
            a(f"s_lshl_b32 s{sWOFF}, s14, 7\ns_add_u32 s{sWOFF}, s{sWOFF}, {RC}")
        if self.dry:
            for v in range(2, 20): a(f"v_mov_b32 v{v}, 0")
            a("s_waitcnt lgkmcnt(0)")
            if self.dynr: a(f"s_mov_b32 s{sTY}, 1\ns_mov_b32 s{sRA}, 0\ns_mov_b32 s{sRB}, 0")
            else: self.role_decode()
            for v in list(range(44, 56)) + list(range(68, 90)): a(f"v_mov_b32 v{v}, 0")
            a(f"s_mov_b32 s{sTW}, 0\ns_mov_b64 {FULL}, 0\ns_mov_b64 exec, 0\ns_branch L_tail")
            a("L_dry_ret:")
            if self.dynr:
                a(f"s_bitcmp1_b32 s2, 2\ns_cbranch_scc1 L_dry_end\ns_add_u32 s{sTY}, s{sTY}, 1\ns_cmp_lt_u32 s{sTY}, 4\ns_cbranch_scc1 L_tail")
                a("L_dry_end:")
            self.jitter(5, 15, 5)
            a("s_mov_b64 exec, -1")
        MW, LW, PB = G, G + 1, G + 2
        a(f"v_and_b32 v{T}, 7, v1\nv_lshlrev_b32 v{T+1}, 3, v{T}")
        a(f"s_mul_i32 s12, s{sCI}, {REC}\ns_add_u32 s12, s12, {OA}")
        self.poll(lambda: a(f"ds_read_b64 {vr(MW,2)}, v{T+1} offset:{MLW}"), lambda: self.inv_poison([MW], T + 2), sleep=4, lds=True)
        claim = f"s_mov_b32 s14, 1\ns_atomic_add s14, s[{P_WS}:{P_WS+1}], s{sWOFF} glc"
        if self.omode >= 5: claim = f"s_and_b32 s13, s{sROLE}, 3\ns_cmp_eq_u32 s13, 3\ns_cbranch_scc1 L_noclaim\n" + claim + "\nL_noclaim:"
        if self.dynr and not self.trig: a(claim)
        a(f"v_mov_b32 v{PB}, v{MW}")
        self.dpp_red("v_max_f32", [PB], OCT)
        a(f"v_sub_f32 v{T+2}, v{MW}, v{PB}\nv_mul_f32 v{T+2}, {LOG2E}, v{T+2}\nv_exp_f32 v{T+2}, v{T+2}")
        a(f"v_mul_f32 v{PB+1}, v{T+2}, v{LW}")
        self.dpp_red("v_add_f32", [PB + 1], OCT)
        a(f"v_min_u32 v{PB}, 0xfffffffe, v{PB}\nv_min_u32 v{PB+1}, 0xfffffffe, v{PB+1}\nv_mov_b32 v{T+2}, 0")
        a("s_mov_b64 exec, 1")
        a(f"buffer_store_dwordx2 {vr(PB,2)}, v{T+2}, {srd(SW)}, s12 offen offset:512 sc1")
        a("s_mov_b64 exec, -1")
        a(f"v_mov_b32 v{T+4}, 0\nv_mov_b32 v{T+5}, 0")
        if self.dynr:
            if self.trig:
                self.lds_wait(ISS, 8, T, sleep=2)
                a(claim)
            if self.omode >= 5: a(f"s_and_b32 s{sROLE}, s{sROLE}, 0xffffff\ns_cmp_eq_u32 s13, 3\ns_cbranch_scc1 L_rolset")
            a(f"s_waitcnt lgkmcnt(0) vmcnt(1)\ns_add_u32 s14, s14, 1\ns_min_u32 s14, s14, {128//self.sh-1}\ns_add_u32 s14, s14, s{sWSTR}\ns_and_b32 s15, s14, 63")
            a(f"v_readlane_b32 s{sROLE}, v160, s15\nv_readlane_b32 s13, v161, s15")
            a(f"s_bitcmp1_b32 s14, 6\ns_cselect_b32 s{sROLE}, s13, s{sROLE}\ns_cmp_lt_u32 s14, 128\ns_cselect_b32 s{sROLE}, s{sROLE}, 0")
            a("L_rolset:")
            a(f"v_mov_b32 v{T+2}, s{sROLE}\nds_write_b32 v{T+4}, v{T+2} offset:{ROL}")
        if self.dynr or not self.dry: self.role_decode()
        a(f"s_cmp_eq_u32 s{sTY}, 0\ns_cbranch_scc1 L_end")
        if self.near:
            a(f"s_mov_b32 s12, {SG}")
            self.poll(lambda: a(f"buffer_load_dword v{T+5}, v{T+4}, {srd(SW)}, s12 offen sc1"), lambda: self.inv_poison([T + 5], T + 2), sleep=8)
        a(f"s_cmp_lg_u32 s{sTY}, 2\ns_cbranch_scc1 L_h2_sel")
        self.mksrd(SA, P_X, 1280)
        a(f"v_lshlrev_b32 v{T}, 2, v1\ns_mov_b32 s12, {MG}")
        for k in range(5): a(f"buffer_load_dword v{40+15+k}, v{T}, {srd(SA)}, 0 offen offset:{256*k}")
        def loads():
            for k in range(15): a(f"buffer_load_dword v{40+k}, v{T}, {srd(SW)}, s12 offen offset:{256*k} sc1")
        self.poll(loads, lambda: self.inv_poison(range(40, 55), T + 2), sleep=8)
        for k in range(20): a(f"ds_write_b32 v{T}, v{40+k} offset:{MGL+256*k}")
        a("L_h2_sel:")
        a(f"ds_write_b32 v{T+4}, v{T+5} offset:{SEL}")
        a("s_endpgm")

    def h3(self):
        a = self.a
        T, G = 2, 40
        a("L_h3:")
        self.jitter(2, 7, 3)
        if self.l2pre:
            a(f"s_getpc_b64 s[12:13]\nL_pc3:\ns_sub_u32 s12, s12, L_pc3-{NAME}_kernel\ns_subb_u32 s13, s13, 0")
            a(f"s_lshl_b32 s14, s{sR}, 10\ns_cmp_ge_u32 s14, role_tbl-{NAME}_kernel\ns_cbranch_scc1 L_h3_np")
            a(f"v_lshl_add_u32 v10, v1, 4, s14")
            a(f"global_load_dwordx4 v[164:167], v10, s[12:13]")
            a("L_h3_np:")
        if not self.eb: a("s_barrier")
        if self.tlb:
            a("s_mov_b64 exec, 1")
            a(f"s_lshl_b32 s12, s2, 18\nv_mov_b32 v10, s12\nv_mov_b32 v11, 0\nv_mov_b32 v12, 0x200000\nv_mov_b32 v13, 0x400000")
            a(f"global_load_dword v20, v10, s[{P_V}:{P_V+1}] nt")
            if self.tlb > 1:
                for p, n in ((P_WO, 3), (P_WG, 2), (P_WU, 2), (P_WD, 2), (P_OUT, 1), (P_WS, 1)):
                    for k in range(n): a(f"global_load_dword v21, v{11+k}, s[{p}:{p+1}] offset:{1024 if p != P_OUT else 0} nt")
            a("s_mov_b64 exec, -1\ns_waitcnt vmcnt(0)")
        self.tag()
        a(f"v_mov_b32 v2, 0\nds_write_b32 v2, v2 offset:{F0L+4}")
        if self.near:
            t = role_table(self.roles, self.GW)
            dec = [b for b in range(256) if (t[b] & 3) == 0 and (t[b] >> 24) == 255 and (b & 7) in self.near_x][0]
            a(f"s_cmp_lg_u32 s2, {dec}\ns_cbranch_scc1 L_nodec")
            a(f"s_add_u32 s12, s{P_WS}, 0x100000\ns_addc_u32 s13, s{P_WS+1}, 0\ns_mov_b32 s14, 0")
            if self.near == 1:
                for k in range(8):
                    ph = (k ^ (k >> 1)) & 1
                    a(f"s_memtime s[{sWGT}:{sWGT+1}]\ns_waitcnt lgkmcnt(0)")
                    for j in range(4): a(f"s_load_dword s{SA+j}, s[12:13], {ph*8192 + (k//2)*16384 + j*1024 + (j%2)*4096}")
                    a(f"s_waitcnt lgkmcnt(3)\ns_memtime s[{sWGT+2}:{sWGT+3}]\ns_waitcnt lgkmcnt(0)")
                    a(f"s_sub_u32 s15, s{sWGT+2}, s{sWGT}\ns_min_u32 s15, s15, 4000")
                    a("s_add_u32 s14, s14, s15" if ph else "s_sub_u32 s14, s14, s15")
                a("s_cmp_gt_i32 s14, 0\ns_cselect_b32 s14, 0, 8192")
            else: a(f"s_mov_b32 s14, {(self.near - 2) * 8192}")
            self.lds_wait(QL, 1, T, sleep=8)
            a(f"v_mov_b32 v2, 0\nv_mov_b32 v3, s14\ns_mov_b32 s12, {SG}\ns_mov_b64 exec, 1")
            a(f"buffer_store_dword v3, v2, {srd(SW)}, s12 offen sc1")
            if self.stamps == 7:
                a("s_load_dwordx2 s[12:13], s[0:1], 96\ns_waitcnt lgkmcnt(0)\nglobal_store_dword v2, v3, s[12:13]")
            a("s_endpgm")
            a("L_nodec:")
        if self.dbg & (12 | 128): a("s_endpgm")
        a(f"s_lshr_b32 s14, s{sROLE}, 24\ns_cmp_eq_u32 s14, 255\ns_cbranch_scc1 L_end")
        self.lds_wait(QL, 1, T, sleep=8)
        a(f"s_lshl_b32 s15, s14, 10\ns_add_u32 s15, s15, {MP+1280*8}")
        a(f"v_lshlrev_b32 v8, 4, v1")
        self.pos2pair(9, 1, T)
        a("v_lshlrev_b32 v9, 2, v9")
        self.gather8(G, 8, 15, 3840 * 8, T, sleep=8)
        a(f"v_min_u32 v{G}, 0xfffffffe, v{G}\ns_lshl_b32 s15, s14, 8\ns_add_u32 s15, s15, {MG}")
        a(f"buffer_store_dword v{G}, v9, {srd(SW)}, s15 offen sc1")
        a("s_endpgm")
        a("L_hend:")
        if self.stamps:
            a(f"s_cmp_eq_u32 s{sWAVE}, 1\ns_cbranch_scc1 L_hend1")
            self.store_stamps((0, 1), 0); a("s_endpgm")
            a("L_hend1:")
            self.store_stamps((0, 2, 3), 1)
        a("s_endpgm")

    def done_wait(self, t, zero):
        self.poll(lambda: self.a(f"ds_read_b32 v{t}, v{zero} offset:{DONE}"), lambda: self.inv_poison([t], t + 1), sleep=2, lds=True, tail=True)
    def jitter(self, bit, m, v):
        if not (self.jit >> bit) & 1: return
        L = self.a.label("L_jit")
        self.a(f"s_and_b32 s11, s2, {m}\ns_cmp_lg_u32 s11, {v}\ns_cbranch_scc1 {L}")
        for k in range(10): self.a("s_sleep 127")
        self.a(f"{L}:")
    def yrow(self, dst, g, tmp):
        self.a(f"s_mul_i32 s{tmp}, s{g}, 11\ns_lshr_b32 s{tmp}, s{tmp}, 5\ns_mul_i32 s{tmp}, s{tmp}, 8704\ns_mul_i32 s{dst}, s{g}, 2560\ns_add_u32 s{dst}, s{dst}, s{tmp}\ns_add_u32 s{dst}, s{dst}, {YB}")
    def mask(self, m):
        self.a(f"s_and_b32 exec_lo, s{sFULL}, {hex(m & 0xffffffff)}\ns_and_b32 exec_hi, s{sFULL}, {hex(m >> 32)}")
    def unmask(self): self.a(f"s_mov_b64 exec, {FULL}")
    def barrier(self):
        L = self.a.label("L_nb")
        self.a(f"s_waitcnt lgkmcnt(0)\ns_cbranch_execz {L}\ns_barrier\n{L}:")
    def mem(self, txt):
        L = self.a.label("L_nm")
        self.a(f"s_cbranch_execz {L}\n{txt}\n{L}:")
    def preperm4(self, W, npairs, free, before=None, after=None):
        a = self.a
        PP = []
        for p in range(npairs):
            if before: before(p)
            P = []
            for d in range(2):
                E, O = W + 4 * p + d, W + 4 * p + 2 + d
                a(f"v_perm_b32 v{free}, v{O}, v{E}, s{sPERMLO}\nv_perm_b32 v{O}, v{O}, v{E}, s{sPERMHI}")
                P += [free, O]; free = E
            PP.append(P)
            if after: after(p, P)
        return PP
    def reduce4(self, acc):
        a = self.a
        a(f"v_permlane32_swap_b32 v{acc[0]}, v{acc[2]}\nv_permlane32_swap_b32 v{acc[1]}, v{acc[3]}")
        a(f"v_add_f32 v{acc[0]}, v{acc[0]}, v{acc[2]}\nv_add_f32 v{acc[1]}, v{acc[1]}, v{acc[3]}")
        a(f"v_permlane16_swap_b32 v{acc[0]}, v{acc[1]}\nv_add_f32 v{acc[0]}, v{acc[0]}, v{acc[1]}")
    def sum_parts(self, G, VA, st):
        a = self.a
        for k in range(4):
            if st == 256: a(f"ds_read2st64_b32 {vr(G+2*k,2)}, v{VA} offset0:{2*k} offset1:{2*k+1}")
            else: a(f"ds_read2_b32 {vr(G+2*k,2)}, v{VA} offset0:{2*k*st//4} offset1:{(2*k+1)*st//4}")
        for k in range(4):
            a(f"s_waitcnt lgkmcnt({0 if self.stamps else 3-k})\nv_add_f32 v{G+2*k}, v{G+2*k}, v{G+2*k+1}")
            if k % 2: a(f"v_add_f32 v{G+2*k-2}, v{G+2*k-2}, v{G+2*k}")
        a(f"v_add_f32 v{G}, v{G}, v{G+4}")
    def unpack(self, lo, hi, src):
        self.a(f"v_lshlrev_b32 v{lo}, 16, v{src}\nv_and_b32 v{hi}, s{sHIMASK}, v{src}")

    def tail(self):
        a = self.a
        GW = self.GW
        TL, LN, N16, T, ACC, G, FREE, W = 1, 2, 3, 4, 20, 28, 92, WREG
        VP, VR_ = T + 12, T + 13
        a("L_tail:")
        self.jitter(4, 15, 2)
        self.stamp(5)
        a(f"s_cmp_eq_u32 s{sTY}, 0\ns_cbranch_scc1 L_fin")
        a(f"v_subrev_u32 v{TL}, 256, v0\nv_and_b32 v{LN}, 63, v0\nv_and_b32 v{N16}, 15, v0")
        for j in range(8): a(f"v_mov_b32 v{ACC+j}, 0")
        sSEL = 9
        a(f"v_mov_b32 v{G+52}, v30")
        self.poll(lambda: a(f"ds_read_b32 v{T+3}, v{ACC} offset:{SEL}"), lambda: self.inv_poison([T + 3], T + 4), sleep=2, lds=True, tail=True)
        a(f"v_readfirstlane_b32 s{sSEL}, v{T+3}\ns_and_b32 s{sSEL}, s{sSEL}, 8192")
        if self.gdone: a(f"s_cmp_eq_u32 s{sTY}, 2\ns_cbranch_scc1 L_nodone")
        if self.dnd: a(f"s_cmp_eq_u32 s{sTY}, 3\ns_cbranch_scc1 L_dn")
        self.done_wait(T + 3, ACC)
        a("L_nodone:")
        a(f"s_cmp_eq_u32 s{sTY}, 3\ns_cbranch_scc1 L_dn")
        a(f"v_lshrrev_b32 v{VP}, 4, v{LN}\nv_lshl_add_u32 v{VP}, v{N16}, 2, v{VP}\ns_lshl_b32 s11, s{sTW}, 8\ns_add_u32 s11, s11, {PW}")
        a(f"v_lshl_add_u32 v{VP}, v{VP}, 2, s11\nv_lshlrev_b32 v{VR_}, 2, v{LN}\nv_add_u32 v{T+14}, {PW}, v{VR_}")
        a(f"s_cmp_eq_u32 s{sTY}, 2\ns_cbranch_scc1 L_gu")
        NP = 4096 // GW // 64; NS = NP // 2; HPT = 32 // GW
        lg = NP.bit_length() - 1
        steps = [self.R4, self.R8] if NP == 4 else [self.R8]
        ML, F = G + 16, T + 4
        a(f"s_lshr_b32 s12, s{sTW}, {3 - (HPT.bit_length() - 1)}\ns_mul_i32 s13, s{sRB}, {HPT}\ns_add_u32 s12, s12, s13\ns_mul_i32 s12, s12, {8*REC}\ns_add_u32 s12, s12, {OA}")
        self.yrow(15, sRB, 13)
        a(f"s_lshl_b32 s13, s{sRA}, 8\ns_add_u32 s15, s15, s13\ns_add_u32 s15, s15, s{sSEL}")
        a(f"v_lshrrev_b32 v{T+1}, {lg}, v{N16}\nv_mul_u32_u24 v{T+1}, {NS*REC}, v{T+1}")
        a(f"v_bfe_u32 v{T}, v{TL}, 4, {(32 // HPT).bit_length() - 1}\nv_lshlrev_b32 v{T}, {lg+3}, v{T}\nv_and_b32 v{T+2}, {NP-1}, v{N16}")
        a(f"v_lshl_add_u32 v{T}, v{T+2}, 3, v{T}\nv_add_u32 v{T}, v{T}, v{T+1}")
        PW_ = []
        def loads_oa():
            for k in range(NS): a(f"buffer_load_dwordx2 {vr(G+2*k,2)}, v{T}, {srd(SW)}, s12 offen offset:{REC*k} sc1")
        def loads():
            for k in range(NS): a(f"buffer_load_dwordx2 {vr(ML+2*k,2)}, v{T+1}, {srd(SW)}, s12 offen offset:{512+REC*k} sc1")
            loads_oa()
        self.poll_pre(loads, 2 * NS, lambda: PW_.extend(self.preperm4(W, NP, FREE)), lambda: self.inv_poison(range(ML, ML + 2 * NS), T + 2), sleep=2)
        a(f"v_max_f32 v{T+2}, v{ML}, v{ML+2}")
        if NS == 4: a(f"v_max3_f32 v{T+2}, v{T+2}, v{ML+4}, v{ML+6}")
        self.dpp_red("v_max_f32", [T + 2], steps)
        for k in range(NS): a(f"v_sub_f32 v{F+k}, v{ML+2*k}, v{T+2}")
        for k in range(NS): a(f"v_mul_f32 v{F+k}, {LOG2E}, v{F+k}")
        for k in range(NS): a(f"v_exp_f32 v{F+k}, v{F+k}")
        a(f"v_mul_f32 v{T+2}, v{F}, v{ML+1}")
        for k in range(1, NS): a(f"v_fmac_f32 v{T+2}, v{F+k}, v{ML+2*k+1}")
        self.dpp_red("v_add_f32", [T + 2], steps)
        a(f"v_rcp_f32 v{T+2}, v{T+2}")
        for k in range(NS): a(f"v_mul_f32 v{F+k}, v{F+k}, v{T+2}")
        self.inv_poison(range(G, G + 2 * NS), T + 2)
        a("s_cbranch_vccz L_oa_ok")
        self.poll(loads_oa, lambda: self.inv_poison(range(G, G + 2 * NS), T + 2), sleep=self.ps, tail=True)
        a("L_oa_ok:")
        self.stamp(8)
        a(f"v_mul_f32 v{T+2}, v{F}, v{G}\nv_mul_f32 v{T+3}, v{F}, v{G+1}")
        for k in range(1, NS): a(f"v_fmac_f32 v{T+2}, v{F+k}, v{G+2*k}\nv_fmac_f32 v{T+3}, v{F+k}, v{G+2*k+1}")
        self.dpp_red("v_add_f32", [T + 2, T + 3], steps)
        a(f"v_cvt_pk_bf16_f32 v{T+2}, v{T+2}, v{T+3}")
        for p in range(NP):
            for j in range(4): a(f"v_dot2c_f32_bf16_dpp v{ACC+j}, v{T+2}, v{PW_[p][j]} row_newbcast:{p} row_mask:0xf bank_mask:0xf")
        self.reduce4(list(range(ACC, ACC + 4)))
        a(f"ds_write_b32 v{VP}, v{ACC}")
        self.barrier()
        a(f"s_cmp_lg_u32 s{sTW}, 0\ns_cbranch_scc1 L_fin")
        self.sum_parts(G, T + 14, 256)
        a(f"v_min_u32 v{G}, 0xfffffffe, v{G}")
        self.mem(f"buffer_store_dword v{G}, v{VR_}, {srd(SW)}, s15 offen sc1")
        self.stamp(9)
        a("s_branch L_fin")
        a("L_gu:")
        GA, SBv, CB1, XV, S1, S2 = T + 2, T + 4, T + 6, T + 8, T + 10, T + 11
        U = G + 40
        a(f"v_lshrrev_b32 v{T}, 4, v{TL}\nv_mul_u32_u24 v{T}, 10, v{T}\nv_add_u32 v{T}, v{T}, v{N16}\nv_lshlrev_b32 v{T+1}, 2, v{T}\nv_lshlrev_b32 v{T}, 3, v{T}")
        a(f"v_mov_b32 v{S1}, 0\nv_mov_b32 v{S2}, 0")
        a(f"v_and_b32 v{U+4}, 32, v{LN}\ns_lshl_b32 s11, s{sTW}, 2\nv_add_u32 v{U+4}, s11, v{U+4}\nv_lshlrev_b32 v{U+5}, 2, v{N16}")
        a(f"s_lshl_b32 s15, s{sRA}, 7\ns_add_u32 s15, s15, {GUP}\ns_mov_b32 s12, {MG}")
        a(f"v_mov_b32 v{U+6}, {f32(1/640)}")
        PG_ = []
        self.mask(0x03ff03ff03ff03ff)
        for k in range(4): a(f"ds_read_b32 v{G+k}, v{T+1} offset:{MGL+1280*k}")
        a("s_waitcnt lgkmcnt(0)")
        for dst, s in ((GA, G), (SBv, G + 1), (CB1, G + 2), (XV, G + 3)): self.unpack(dst, dst + 1, s)
        a(f"v_add_f32 v{CB1}, 1.0, v{CB1}\nv_add_f32 v{CB1+1}, 1.0, v{CB1+1}\nv_cvt_pk_bf16_f32 v{U}, v{CB1}, v{CB1+1}")
        self.unpack(CB1, CB1 + 1, U)
        if self.lin:
            a(f"v_mov_b32 v{U+14}, v{U}\nv_mov_b32 v{U+15}, v{G+1}\nv_add_f32 v{S1}, v{XV}, v{XV+1}")
            self.unmask()
            self.dpp_red("v_add_f32", [S1], [self.X1, self.X2, self.R4, self.R8])
            self.allred_rows("v_add_f32", [S1], [S2])
            a(f"v_mul_f32 v{U+13}, {f32(1/80)}, v{S1}")
            a(f"v_mul_f32 v{U+16}, v{U+13}, v{CB1}\nv_mul_f32 v{U+17}, v{U+13}, v{CB1+1}")
            a(f"v_mov_b32 v{S1}, 0\nv_mov_b32 v{S2}, 0")
        assert GW == 8
        self.unmask()
        self.yrow(14, sTW, 13)
        a(f"s_add_u32 s14, s14, s{sSEL}\ns_add_u32 s15, s15, s{sSEL}")
        a(f"v_lshlrev_b32 v{U+7}, 4, v{LN}\ns_mul_i32 s13, s{sTW}, 2560\ns_add_u32 s13, s13, {VL}")
        a(f"v_add_u32 v{U+8}, s13, v{U+7}\nv_add_u32 v{T}, {VL}, v{T}")
        a(f"v_mov_b32 v{U+9}, 0x7fffffff\nv_cmp_gt_u32 vcc, 32, v{LN}\nv_cndmask_b32 v{U+9}, v{U+9}, v{U+7}, vcc")
        def loads():
            a(f"buffer_load_dwordx4 {vr(G,4)}, v{U+7}, {srd(SW)}, s14 offen sc1")
            a(f"buffer_load_dwordx4 {vr(G+4,4)}, v{U+7}, {srd(SW)}, s14 offen offset:1024 sc1")
            a(f"buffer_load_dwordx4 {vr(G+8,4)}, v{U+9}, {srd(SW)}, s14 offen offset:2048 sc1")
        if self.gdone:
            self.done_wait(U + 10, ACC)
            a(f"s_cbranch_execz L_wdone")
            self.wissued = 0; self.wmax = 20
            self.wloads(20, U + 12)
            a("L_wdone:")
        CBP, SBP, MC, AS, BS = U + 14, U + 15, U + 16, U + 18, U + 19
        def pre():
            X = G + 16
            for j in range(4): a(f"v_mov_b32 v{X+j}, 0")
            def after(p, P):
                if not self.lin: return
                for j in range(4): a(f"v_dot2c_f32_bf16_dpp v{X+j}, v{CBP}, v{P[j]} row_newbcast:{p} row_mask:0xf bank_mask:0xf")
                for j in range(4): a(f"v_dot2c_f32_bf16_dpp v{ACC+4+j}, v{SBP}, v{P[j]} row_newbcast:{p} row_mask:0xf bank_mask:0xf")
            PG_.extend(self.preperm4(W, 10, FREE, before=lambda p: a(f"s_waitcnt vmcnt({3 + 18 - 2*p})"), after=after))
            if not self.lin: return
            for j in range(4): a(f"v_mul_f32 v{ACC+j}, v{U+13}, v{X+j}")
            self.reduce4(list(range(X, X + 4))); self.reduce4(list(range(ACC + 4, ACC + 8)))
            a(f"ds_write_b32 v{VP}, v{X} offset:2048\nds_write_b32 v{VP}, v{ACC+4} offset:4096")
            self.barrier()
            a(f"v_add_u32 v{X+8}, 2048, v{T+14}\nv_add_u32 v{X+9}, 4096, v{T+14}")
            self.sum_parts(X, X + 8, 256); a(f"v_mov_b32 v{AS}, v{X}")
            self.sum_parts(X, X + 9, 256); a(f"v_mov_b32 v{BS}, v{X}")
        self.poll_pre(loads, 3, pre, lambda: self.inv_poison(range(G, G + 12), U), sleep=self.ps, prog=True)
        a(f"ds_write_b128 v{U+8}, {vr(G,4)}\nds_write_b128 v{U+8}, {vr(G+4,4)} offset:1024")
        self.mask(0xffffffff)
        a(f"ds_write_b128 v{U+8}, {vr(G+8,4)} offset:2048")
        self.unmask()
        self.barrier()
        self.stamp(2)
        self.mask(0x03ff03ff03ff03ff)
        for k in range(4): a(f"ds_read2st64_b64 {vr(G+4*k,4)}, v{T} offset0:{10*k} offset1:{10*k+5}")
        for k in range(4):
            a(f"s_waitcnt lgkmcnt({0 if self.stamps else 3-k})\nv_pk_add_f32 {vr(G+4*k,2)}, {vr(G+4*k,2)}, {vr(G+4*k+2,2)}")
            if k % 2: a(f"v_pk_add_f32 {vr(G+4*k-4,2)}, {vr(G+4*k-4,2)}, {vr(G+4*k,2)}")
        a(f"v_pk_add_f32 {vr(G,2)}, {vr(G,2)}, {vr(G+8,2)}")
        def rb2():
            a(f"v_cvt_pk_bf16_f32 v{U}, v{G}, v{G+1}"); self.unpack(G, G + 1, U)
        rb2()
        a(f"v_pk_mul_f32 {vr(G,2)}, {vr(G,2)}, {vr(GA,2)}"); rb2()
        a(f"v_pk_add_f32 {vr(G,2)}, {vr(G,2)}, {vr(XV,2)}"); rb2()
        if self.lin:
            a(f"v_pk_fma_f32 {vr(G+2,2)}, {vr(G,2)}, {vr(CB1,2)}, {vr(MC,2)} neg_lo:[0,0,1] neg_hi:[0,0,1]")
            a(f"v_add_f32 v{S1}, v{G}, v{G+1}\nv_cvt_pk_bf16_f32 v{U}, v{G+2}, v{G+3}\nv_mul_f32 v{S2}, v{G}, v{G}\nv_fmac_f32 v{S2}, v{G+1}, v{G+1}")
            self.unmask()
            side = [f"v_permlane32_swap_b32 v{S1}, v{S2}", f"v_add_f32 v{S1}, v{S1}, v{S2}", f"v_mov_b32 v{S2}, v{S1}", f"v_permlane16_swap_b32 v{S2}, v{S1}",
                    f"v_add_f32 v{S1}, v{S1}, v{S2}"] + [f"v_add_f32_dpp v{S1}, v{S1}, v{S1} {s} row_mask:0xf bank_mask:0xf" for s in (self.R8, self.R4, self.X2, self.X1)] + \
                   [f"ds_write_b32 v{U+4}, v{S1} offset:{STL}"]
            for p in range(10):
                for j in range(4): a(f"v_dot2c_f32_bf16_dpp v{ACC+j}, v{U}, v{PG_[p][j]} row_newbcast:{p} row_mask:0xf bank_mask:0xf")
                a(side[p])
            self.reduce4(list(range(ACC, ACC + 4)))
            a(f"ds_write_b32 v{VP}, v{ACC}")
            a(f"v_lshlrev_b32 v{T}, 1, v{LN}")
            self.barrier()
            a(f"s_cmp_lg_u32 s{sTW}, 0\ns_cbranch_scc1 L_fin")
            a(f"ds_read_b32 v{U+1}, v{U+5} offset:{STL}")
            for k in range(4): a(f"ds_read2st64_b32 {vr(G+2*k,2)}, v{T+14} offset0:{2*k} offset1:{2*k+1}")
            a(f"s_waitcnt lgkmcnt({0 if self.stamps else 4})")
            a(f"v_add_f32_dpp v{U+1}, v{U+1}, v{U+1} {self.X1} row_mask:0xf bank_mask:0xf")
            a(f"s_waitcnt lgkmcnt(2)\nv_add_f32 v{G}, v{G}, v{G+1}")
            a(f"v_add_f32_dpp v{U+1}, v{U+1}, v{U+1} {self.X2} row_mask:0xf bank_mask:0xf")
            a(f"v_add_f32 v{G+2}, v{G+2}, v{G+3}\ns_waitcnt lgkmcnt(0)")
            a(f"v_add_f32_dpp v{U+1}, v{U+1}, v{U+1} {self.HM} row_mask:0xf bank_mask:0xf")
            a(f"v_add_f32 v{G+4}, v{G+4}, v{G+5}\nv_add_f32 v{G+6}, v{G+6}, v{G+7}")
            a(f"v_mul_f32_dpp v{S1}, v{U+1}, v{U+6} row_newbcast:0 row_mask:0xf bank_mask:0xf")
            a(f"v_mul_f32_dpp v{S2}, v{U+1}, v{U+6} row_newbcast:8 row_mask:0xf bank_mask:0xf")
            a(f"v_fma_f32 v{S2}, -v{S1}, v{S1}, v{S2}\nv_max_f32 v{S2}, 0, v{S2}")
            a(f"v_cvt_pk_bf16_f32 v{U}, v{S1}, v{S2}")
            a(f"v_and_b32 v{S2}, s{sHIMASK}, v{U}\nv_lshlrev_b32 v{S1}, 16, v{U}")
            a(f"v_add_f32 v{S2}, {f32(1e-5)}, v{S2}")
            a(f"v_cvt_pk_bf16_f32 v{S2}, v{S2}, v{S2}\nv_and_b32 v{S2}, s{sHIMASK}, v{S2}")
            a(f"v_sqrt_f32 v{S2}, v{S2}\nv_add_f32 v{G}, v{G}, v{G+2}")
            a(f"v_cvt_pk_bf16_f32 v{S2}, v{S2}, v{S2}\nv_add_f32 v{G+4}, v{G+4}, v{G+6}\nv_and_b32 v{S2}, s{sHIMASK}, v{S2}")
            a(f"v_rcp_f32 v{S2}, v{S2}\nv_add_f32 v{G}, v{G}, v{G+4}")
            a(f"v_fma_f32 v{G}, -v{S1}, v{AS}, v{G}\nv_fma_f32 v{G}, v{G}, v{S2}, v{BS}")
        else:
            a(f"v_add_f32 v{S1}, v{G}, v{G+1}\nv_mul_f32 v{S2}, v{G}, v{G}\nv_fmac_f32 v{S2}, v{G+1}, v{G+1}")
            self.unmask()
            a(f"v_permlane32_swap_b32 v{S1}, v{S2}\nv_add_f32 v{S1}, v{S1}, v{S2}")
            a(f"v_mov_b32 v{S2}, v{S1}\nv_permlane16_swap_b32 v{S2}, v{S1}\nv_add_f32 v{S1}, v{S1}, v{S2}")
            self.dpp_red("v_add_f32", [S1], [self.R8, self.R4, self.X2, self.X1])
            self.mask(0x0000000100000001)
            a(f"ds_write_b32 v{U+4}, v{S1} offset:{STL}")
            self.unmask()
            self.barrier()
            a(f"ds_read_b32 v{U+1}, v{U+5} offset:{STL}\ns_waitcnt lgkmcnt(0)")
            self.dpp_red("v_add_f32", [U + 1], [self.X1, self.X2, self.HM])
            a(f"v_mul_f32_dpp v{S1}, v{U+1}, v{U+6} row_newbcast:0 row_mask:0xf bank_mask:0xf")
            a(f"v_mul_f32_dpp v{S2}, v{U+1}, v{U+6} row_newbcast:8 row_mask:0xf bank_mask:0xf")
            a(f"v_fma_f32 v{S2}, -v{S1}, v{S1}, v{S2}\nv_max_f32 v{S2}, 0, v{S2}")
            a(f"v_cvt_pk_bf16_f32 v{U}, v{S1}, v{S2}")
            a(f"v_and_b32 v{S2}, s{sHIMASK}, v{U}\nv_lshlrev_b32 v{S1}, 16, v{U}")
            a(f"v_add_f32 v{S2}, {f32(1e-5)}, v{S2}\nv_sub_f32 v{G}, v{G}, v{S1}")
            a(f"v_cvt_pk_bf16_f32 v{S2}, v{S2}, v{S2}\nv_sub_f32 v{G+1}, v{G+1}, v{S1}\nv_and_b32 v{S2}, s{sHIMASK}, v{S2}")
            a(f"v_sqrt_f32 v{S2}, v{S2}\nv_cvt_pk_bf16_f32 v{U}, v{G}, v{G+1}")
            a(f"v_cvt_pk_bf16_f32 v{S2}, v{S2}, v{S2}\nv_lshlrev_b32 v{G}, 16, v{U}\nv_and_b32 v{S2}, s{sHIMASK}, v{S2}")
            a(f"v_rcp_f32 v{S2}, v{S2}\nv_and_b32 v{G+1}, s{sHIMASK}, v{U}")
            a(f"v_mul_f32 v{G}, v{G}, v{S2}\nv_mul_f32 v{G+1}, v{G+1}, v{S2}"); rb2()
            a(f"v_pk_mul_f32 {vr(G,2)}, {vr(G,2)}, {vr(CB1,2)}"); rb2()
            a(f"v_pk_add_f32 {vr(G,2)}, {vr(G,2)}, {vr(SBv,2)}")
            a(f"v_cvt_pk_bf16_f32 v{U}, v{G}, v{G+1}")
            for p in range(10):
                for j in range(4): a(f"v_dot2c_f32_bf16_dpp v{ACC+j}, v{U}, v{PG_[p][j]} row_newbcast:{p} row_mask:0xf bank_mask:0xf")
            self.reduce4(list(range(ACC, ACC + 4)))
            a(f"ds_write_b32 v{VP}, v{ACC}")
            a(f"v_lshlrev_b32 v{T}, 1, v{LN}")
            self.barrier()
            a(f"s_cmp_lg_u32 s{sTW}, 0\ns_cbranch_scc1 L_fin")
            self.sum_parts(G, T + 14, 256)
        a(f"s_cmp_ge_u32 s{sRA}, 27\ns_cbranch_scc1 L_gu_up")
        self.rbf(G, G)
        self.silu(G, G, G + 1)
        a("L_gu_up:")
        a(f"v_mov_b32_dpp v{G+1}, v{G} {self.X1} row_mask:0xf bank_mask:0xf")
        a(f"v_cvt_pk_bf16_f32 v{G}, v{G}, v{G+1}\nv_min_u32 v{G}, 0xfffffffe, v{G}")
        self.mask(0x5555555555555555)
        self.mem(f"buffer_store_dword v{G}, v{T}, {srd(SW)}, s15 offen sc1")
        self.stamp(3)
        a("s_branch L_fin")
        a("L_dn:")
        GA, GB, XV, R = T + 8, T + 9, T + 10, T + 11
        self.mksrd(SA, P_WD, 0 if self.dbg & 1024 else 1728 * 1280)
        a(f"s_lshl_b32 s12, s{sRA}, 5\ns_add_u32 s13, s12, 5120")
        a(f"v_lshrrev_b32 v{T}, 1, v{TL}\nv_mul_u32_u24 v{T}, {8*1280}, v{T}\nv_and_b32 v{T+1}, 1, v{TL}\nv_lshl_add_u32 v{T}, v{T+1}, 4, v{T}")
        i0_ = self.din if self.dback >= 0 else 0
        if i0_ < 8: self.mem("\n".join(f"buffer_load_dwordx4 {vr(W+4*i,4)}, v{T}, {srd(SA)}, s{12+i//4} offen offset:{1280*(i%4)}{self.dpol}" for i in range(i0_, 8)))
        a(f"v_lshrrev_b32 v{VP}, 3, v{LN}\nv_lshl_add_u32 v{VP}, v{T+1}, 3, v{VP}\ns_lshl_b32 s11, s{sTW}, 6\ns_add_u32 s11, s11, {PW}")
        a(f"v_lshl_add_u32 v{VP}, v{VP}, 2, s11\nv_lshlrev_b32 v{VR_}, 2, v{LN}\nv_add_u32 v{VR_}, {PW}, v{VR_}")
        a(f"s_cmp_lg_u32 s{sTW}, 0\ns_cbranch_scc1 L_dn_x1done")
        self.mksrd(SB, P_X, 1280)
        a(f"v_lshrrev_b32 v{T}, 1, v{N16}\nv_lshlrev_b32 v{T}, 2, v{T}")
        a(f"s_add_u32 s13, s12, {MG}\ns_lshl_b32 s15, s{sRA}, 6\ns_add_u32 s15, s15, {YB}\ns_add_u32 s15, s15, s{sSEL}")
        self.mem(f"buffer_load_dword v{G+2}, v{T}, {srd(SB)}, s12 offen")
        def loads():
            a(f"buffer_load_dword v{G}, v{T}, {srd(SW)}, s13 offen sc1")
            a(f"buffer_load_dword v{G+1}, v{T}, {srd(SW)}, s13 offen offset:{3*1280} sc1")
        self.poll(loads, lambda: self.inv_poison([G, G + 1], T + 4), sleep=8, tail=True)
        a(f"v_cmp_eq_u32 vcc, 1, v{T+1}")
        for dst, s in ((GA, G), (GB, G + 1), (XV, G + 2)):
            self.unpack(T + 2, T + 3, s); a(f"v_cndmask_b32 v{dst}, v{T+2}, v{T+3}, vcc")
        for k in range(2):
            a(f"v_lshrrev_b32 v{T+2}, 4, v{LN}\nv_add_u32 v{T+2}, {4*k}, v{T+2}\nv_mul_u32_u24 v{T+3}, 11, v{T+2}\nv_lshrrev_b32 v{T+3}, 5, v{T+3}")
            a(f"v_mul_u32_u24 v{T+3}, 8704, v{T+3}\nv_mul_u32_u24 v{T+2}, 2560, v{T+2}\nv_add_u32 v{T+2}, v{T+2}, v{T+3}\nv_lshl_add_u32 v{T+6+k}, v{N16}, 2, v{T+2}")
        def loads():
            for k in range(2): a(f"buffer_load_dword v{G+k}, v{T+6+k}, {srd(SW)}, s15 offen sc1")
        self.poll(loads, lambda: self.inv_poison(range(G, G + 2), T + 2), sleep=2, tail=True)
        for k in range(1, GW // 4): a(f"v_add_f32 v{G}, v{G}, v{G+k}")
        self.allred_rows("v_add_f32", [G], [T])
        self.rbf(G, G)
        a(f"v_mul_f32 v{G}, v{GA}, v{G}")
        self.rbf(G, G)
        a(f"v_add_f32 v{XV}, v{XV}, v{G}")
        self.rbf(XV, XV)
        a(f"s_cmp_lg_u32 s{sRA}, 0\ns_cbranch_scc1 L_dn_x1done")
        a(f"s_mul_i32 s{sT}, s{sT}, 1664525\ns_add_u32 s{sT}, s{sT}, 1013904223")
        self.mask(1)
        a(f"v_mov_b32 v{G+1}, s{sT}\nv_mov_b32 v{T}, 0")
        self.mem(f"buffer_store_dword v{G+1}, v{T}, {srd(SW)}, 0 offen sc1")
        self.unmask()
        a("L_dn_x1done:")
        self.mksrd(SB, P_OUT, 1280)
        PD_ = []
        for i in range(4): a(f"v_mov_b32 v{G+i}, 0")
        a(f"v_lshlrev_b32 v{T}, 3, v{TL}\ns_add_u32 s13, s{sSEL}, {GUP}\nv_lshlrev_b32 v{T+5}, 1, v{LN}")
        def loads():
            a(f"buffer_load_dwordx2 {vr(G,2)}, v{T}, {srd(SW)}, s13 offen sc1")
            a(f"buffer_load_dwordx2 {vr(G+2,2)}, v{T}, {srd(SW)}, s13 offen offset:3456 sc1")
        self.poll_pre(loads, 2, lambda: PD_.extend(self.preperm(W, 4, FREE)), lambda: self.inv_poison(range(G, G + 4), T + 2), sleep=self.ps,
                      narrow=lambda: a(f"v_cmp_gt_u32 vcc, 432, v{TL}\ns_mov_b64 exec, vcc"))
        self.stamp(10)
        for i in range(4): self.unpack(G + 4 + 2 * i, G + 5 + 2 * i, G + i)
        a(f"v_pk_mul_f32 {vr(G+4,2)}, {vr(G+4,2)}, {vr(G+8,2)}\nv_pk_mul_f32 {vr(G+6,2)}, {vr(G+6,2)}, {vr(G+10,2)}")
        a(f"v_cvt_pk_bf16_f32 v{G}, v{G+4}, v{G+5}\nv_cvt_pk_bf16_f32 v{G+1}, v{G+6}, v{G+7}")
        for p in range(4):
            qp = "quad_perm:[0,0,2,2]" if p < 2 else "quad_perm:[1,1,3,3]"
            for j in range(8): a(f"v_dot2c_f32_bf16_dpp v{ACC+j}, v{G+p%2}, v{PD_[p][j]} {qp} row_mask:0xf bank_mask:0xf")
        self.reduce8(list(range(ACC, ACC + 8)), R)
        a(f"v_add_f32_dpp v{R}, v{R}, v{R} row_shl:4 row_mask:0xf bank_mask:0x5")
        self.dpp_red("v_add_f32", [R], [self.X2])
        self.mask(0x0303030303030303)
        a(f"ds_write_b32 v{VP}, v{R}")
        self.unmask()
        self.barrier()
        a(f"s_cmp_lg_u32 s{sTW}, 0\ns_cbranch_scc1 L_fin")
        self.mask(0xffff)
        self.sum_parts(G, VR_, 64)
        self.rbf(G, G)
        a(f"v_mul_f32 v{G}, v{GB}, v{G}")
        self.rbf(G, G)
        a(f"v_add_f32 v{G}, v{XV}, v{G}\nv_cvt_pk_bf16_f32 v{G}, v{G}, v{G}")
        self.mem(f"buffer_store_short v{G}, v{T+5}, {srd(SB)}, s12 offen{self.opol}")
        a("L_fin:")
        if self.dry: a("s_cbranch_execz L_dry_ret")
        if self.stamps:
            self.stamp(11)
            a(f"s_cmp_lg_u32 s{sTW}, 0\ns_cbranch_scc1 L_end")
            self.store_stamps((2, 3, 4, 5, 8, 9, 10, 11), 0)
        a("L_end:")
        a("s_endpgm")

    def build(self):
        a = self.a
        for l in HEADER.strip("\n").split("\n"): a.raw("; " + l if l else ";")
        a.raw(f"; @launch grid=(256,1,1) block=(768,1,1) lds={VL + 8 * 1024 * self.NL}")
        a.raw('.amdgcn_target "amdgcn-amd-amdhsa--gfx950"')
        a.raw(f".text\n.globl {NAME}_kernel\n.p2align 8\n.type {NAME}_kernel,@function\n{NAME}_kernel:")
        if self.stamps:
            for i in range(2, 24): a(f"s_mov_b32 s{STAMP0+i}, 0")
        self.stamp(0)
        VO, Q, MK, A0, D, T, S, RING = 1, 2, 6, 10, 18, 22, 31, 40
        a("s_load_dwordx16 s[16:31], s[0:1], 0\ns_load_dwordx8 s[32:39], s[0:1], 64\ns_load_dwordx2 s[42:43], s[0:1], 104")
        a(f"v_lshrrev_b32 v2, 6, v0\nv_and_b32 v1, 63, v0\nv_readfirstlane_b32 s{sWAVE}, v2")
        a("s_cmp_ge_u32 s2, 256\ns_cbranch_scc1 L_end")
        self.jitter(0, 63, 37)
        if self.amap == 1: a(f"s_and_b32 s{sCI}, s2, 7\ns_lshl_b32 s{sCI}, s{sCI}, 5\ns_lshr_b32 s11, s2, 3\ns_or_b32 s{sCI}, s{sCI}, s11")
        elif self.amap == 2:
            a(f"s_bfe_u32 s{sCI}, s2, 0x20001\ns_lshl_b32 s{sCI}, s{sCI}, 6\ns_lshr_b32 s11, s2, 5\ns_lshl_b32 s11, s11, 3\ns_or_b32 s{sCI}, s{sCI}, s11")
            a(f"s_and_b32 s11, s2, 1\ns_lshl_b32 s11, s11, 2\ns_or_b32 s{sCI}, s{sCI}, s11\ns_bfe_u32 s11, s2, 0x20003\ns_or_b32 s{sCI}, s{sCI}, s11")
        else: a(f"s_mov_b32 s{sCI}, s2")
        a(f"s_cmp_lt_u32 s{sWAVE}, 4\ns_cbranch_scc1 {'L_help0' if self.eb else 'L_help'}")
        a(f"s_sub_u32 s10, s{sWAVE}, 4\ns_lshl_b32 s9, s{sCI}, 18\ns_lshl_b32 s14, s10, 12\nv_lshl_add_u32 v{VO}, v1, 4, s9")
        if self.gx == 1: a("s_and_b32 s11, s2, 7\ns_lshl_b32 s11, s11, 15\ns_or_b32 s14, s14, s11")
        if self.gx == 2: a("s_bfe_u32 s11, s2, 0x30003\ns_lshl_b32 s11, s11, 15\ns_or_b32 s14, s14, s11")
        if self.gx == 3: a("s_lshr_b32 s11, s2, 3\ns_add_u32 s11, s11, s2\ns_and_b32 s11, s11, 7\ns_lshl_b32 s11, s11, 15\ns_or_b32 s14, s14, s11")
        if self.gx == 4: a("s_lshl_b32 s11, s10, 15\ns_or_b32 s14, s14, s11")
        a(f"s_mov_b32 s{SA+2}, 0x4000000\ns_mov_b32 s{SA+3}, 0x20000")
        a("s_waitcnt lgkmcnt(0)")
        a(f"s_mov_b32 s{SA}, s{P_K}\ns_and_b32 s{SA+1}, s{P_K+1}, 0xffff")
        for t in range(4):
            if self.early == t: a("s_barrier")
            a(f"buffer_load_dwordx4 {vr(RING+4*t,4)}, v{VO}, {srd(SA)}, s14 offen offset:{t*1024} nt")
        if self.early == 4: a("s_barrier")
        if self.eb:
            a("s_branch L_b2")
            a("L_help0:")
            a("v_lshlrev_b32 v2, 1, v0\nv_mov_b32 v3, -1\nds_write_b16 v2, v3\ns_waitcnt lgkmcnt(0)\ns_barrier\ns_branch L_help")
            a("L_b2:")
        self.mksrd(SB, P_V, 0x4000000)
        a(f"s_xor_b32 s15, s14, 8192\ns_mul_i32 s13, s10, {1024*self.NL}\ns_add_u32 s13, s13, {VL}")
        self.common_setup()
        self.masks(MK, T)
        for i in range(4): a(f"v_mov_b32 v{D+i}, 0")
        a(f"v_lshlrev_b32 v{T+1}, 4, v{T+1}")
        a(f"v_and_b32 v{T+7}, 63, v0\nv_lshl_add_u32 v{T+7}, v{T+7}, 4, s13")
        if self.early == 5: a("s_barrier")
        self.bulk(); self.tail()
        a("L_help:")
        a(f"s_setprio 3\ns_and_b32 s{sX}, s2, 7\ns_lshr_b32 s{sR}, s2, 3")
        a(f"s_cmp_eq_u32 s{sWAVE}, 2\ns_cbranch_scc1 L_h2")
        a("s_waitcnt lgkmcnt(0)")
        self.common_setup()
        a(f"s_cmp_eq_u32 s{sWAVE}, 1\ns_cbranch_scc1 L_h1\ns_cmp_eq_u32 s{sWAVE}, 3\ns_cbranch_scc1 L_h3")
        self.h0(); self.h1(); self.h2(); self.h3()
        a.raw(".p2align 6\n.type role_tbl,@object\nrole_tbl:")
        t = role_table(self.roles, self.GW)
        for i in range(0, 256, 8): a.raw("    .long " + ", ".join("0x%08x" % v for v in t[i:i+8]))
        a.raw(".size role_tbl, 1024")
        if self.dynr:
            a.raw(".type ord_tbl,@object\nord_tbl:")
            t = order_table(self.omode, self.sh)
            for i in range(0, 256, 8): a.raw("    .long " + ", ".join("0x%08x" % v for v in t[i:i+8]))
            a.raw(".size ord_tbl, 1024")
        a.raw('.section .rodata,"a"\n.p2align 6')
        a.raw(f".amdhsa_kernel {NAME}_kernel")
        a.raw("  .amdhsa_next_free_vgpr 168\n  .amdhsa_next_free_sgpr 102\n  .amdhsa_accum_offset 168\n  .amdhsa_group_segment_fixed_size 0")
        a.raw("  .amdhsa_kernarg_size 112\n  .amdhsa_user_sgpr_count 2\n  .amdhsa_user_sgpr_kernarg_segment_ptr 1\n  .amdhsa_system_sgpr_workgroup_id_x 1")
        a.raw("  .amdhsa_float_denorm_mode_32 3")
        a.raw(".end_amdhsa_kernel")
        return a.text()

if __name__ == "__main__":
    for spec in sys.argv[1:]:
        name, _, kw = spec.partition(":")
        kw = dict((k, int(v)) for k, v in (p.split("=") for p in kw.split(",") if p))
        open(f"work/{name}.s", "w").write(Gen(**kw).build())
        import numpy as np
        np.save(f"work/{name}.roles.npy", np.array(role_table(kw.get("roles", 6), kw.get("GW", 8)), dtype=np.uint32))
```

```python
import sys, struct
from asmlib import Asm
NAME = "adaLN_cond__gqa_block_cached__swiglu_ffn__decode"

def f32(x): return "0x%08x" % struct.unpack("<I", struct.pack("<f", x))[0]
LOG2E = f32(1.4426950408889634)
NLOG2E = f32(-1.4426950408889634)
SCALE = f32(128 ** -0.5)

PZ, MP, QP = 0x4000, 0x40000, 0x80000
YB = PZ
GUP = PZ + 3 * 16384
OA = PZ + 4 * 16384; REC = 640
MG = OA + 256 * REC
SG = MG + 5120
RC = SG + 128
assert RC + 2048 <= PZ + 240 * 1024 and MG % 128 == 0
WS_BYTES = 0xC0000
PG1 = 416
QL, MLW, ISS, F0L, CNT, DONE, SEL, ROL, OW = 0, 256, 384, 344, 356, 360, 364, 368, 512
STL, PW = 4608, 4736
MGL = 10880
VL = 16000
sWAVE, sX, sR, sCI, sT, sBUD, sTW = 3, 4, 5, 6, 7, 8, 10
P_X, P_K, P_V, P_WQ, P_WO, P_WG, P_WU, P_WD, P_C, P_WM, P_OUT, P_WS = 16, 18, 20, 22, 24, 28, 30, 32, 34, 36, 38, 42
sROLE, sTY, sRA, sRB = 26, 27, 40, 41
SA, SB, SW, SC = 44, 48, 52, 56
sWOFF, sWSTR, sFULL = 60, 61, 62
sWGT = 64
sEX = 72
sPERMLO, sPERMHI, sHIMASK, sWJMP = 74, 75, 76, 77
STAMP0 = 78
FULL = f"s[{sFULL}:{sFULL+1}]"

def srd(n): return f"s[{n}:{n+3}]"
def vr(a, n): return f"v[{a}:{a+n-1}]"

def role_table(mode, GW):
    B = lambda x, r: 8 * r + x
    even = [B(x, r) for r in range(32) for x in (0, 2, 4, 6)]
    odd = [B(x, r) for r in range(32) for x in (1, 3, 5, 7)]
    wo = [(1, k, g) for g in range(GW) for k in range(10)]
    gu = [(2, k, 0) for k in range(54)]
    role = {}
    if mode == 0: order = list(range(256)); dnx = list(range(8))
    elif mode == 1: order = even + odd; dnx = [1, 3, 5, 7]
    elif mode == 2: order = even + odd; dnx = [1, 3, 5, 7]
    elif mode == 3: order = even + odd; dnx = [0, 2, 4, 6]
    elif mode == 4: order = even + odd; dnx = [0, 2, 4, 6]
    SPEC = {8: ((0, 2), (1, 3), ((0, 2), (4, 6))),
            9: ((1, 3), (0, 2), ((4, 6), (0, 2), (1, 3))),
            10: ((4, 6), (1, 3), ((0, 2), (4, 6))),
            11: ((1, 3), (4, 6), ((0, 2), (4, 6), (1, 3))),
            12: ((0, 2, 4, 6), (1, 3), ((0, 2, 4, 6),)),
            13: ((0, 1, 2, 3), (0, 1, 2, 3), ((4, 6), (0, 2), (1, 3))),
            14: ((0, 2), (1, 3, 5), ((4, 6), (0, 2)))}
    if mode in SPEC:
        dnx = list(SPEC[mode][0])
        A = lambda xs: [B(x, r) for r in range(32) for x in xs]
        for b, rl in zip(A(SPEC[mode][1]), gu): role[b] = rl
        gu = []
        order = sum([A(xs) for xs in SPEC[mode][2]], [])
    if mode == 30:
        dnx = list(range(8)); order = list(range(256))
    if mode == 6:
        dnx = [0, 2]
        A = lambda xs: [B(x, r) for r in range(32) for x in xs]
        for b, rl in zip(A((1, 3)), gu): role[b] = rl
        gu = []
        order = A((4, 6)) + A((0, 2)) + A((5, 7))
    if mode == 7:
        dnx = [4, 6]
        A = lambda xs: [B(x, r) for r in range(32) for x in xs]
        for b, rl in zip(A((5, 7)), gu): role[b] = rl
        gu = []
        order = A((0, 2)) + A((4, 6)) + A((1, 3))
    for k in range(40):
        x = dnx[(k // 4) % len(dnx)]; r = 31 - (k % 4) - 4 * ((k // 4) // len(dnx))
        role[B(x, r)] = (3, k, 0)
    free = [b for b in order if b not in role]
    for b, rl in zip(free, (wo + gu) if mode not in (2, 4) else (gu + wo)): role[b] = rl
    assert len(role) == 40 + 54 + 10 * GW
    mg = {B(k % 8, 30 + (k // 8) % 2) if k < 16 else B(k % 8, 29): k for k in range(20)}
    t = []
    for b in range(256):
        ty, a_, b_ = role.get(b, (0, 0, 0))
        t.append(ty | (a_ << 8) | (b_ << 16) | (mg.get(b, 255) << 24))
    return t

def order_table(omode, sh=1):
    wo = [(1, k, g) for g in range(8) for k in range(10)]
    gu = [(2, k, 0) for k in range(54)]; dn = [(3, k, 0) for k in range(40)]
    if omode == 0: s0, s1 = dn + gu, wo
    elif omode == 1: s0, s1 = gu + dn, wo
    elif omode == 2: s0, s1 = wo[:16] + dn + gu, wo[16:]
    elif omode == 3: s0, s1 = wo[:16] + gu + dn, wo[16:]
    elif omode == 5: s0, s1 = gu, wo
    elif omode == 6: s0, s1 = wo[:16] + gu, wo[16:]
    elif omode == 7: s0, s1 = wo[:8] + gu, wo[8:]
    elif omode == 8: s0, s1 = gu + wo[:10], wo[10:]
    elif omode == 13: s0, s1 = wo[:16] + [(0, 0, 0)] * 18 + gu, wo[16:]
    elif omode == 14: s0, s1 = wo[:34] + gu, wo[34:]
    elif omode == 15: s0, s1 = wo[:24] + gu, wo[24:]
    elif omode == 16: s0, s1 = wo[:24] + [(0, 0, 0)] * 10 + gu, wo[24:]
    elif omode == 4:
        s0 = [x for p in zip(dn, gu) for x in p] + gu[40:]; s1 = wo
    t = []
    for s in (s0, s1):
        s = s + [(0, 0, 0)] * (128 - len(s))
        s = [x for k in range(sh) for x in s[k::sh]]
        t += [ty | (a << 8) | (b << 16) for ty, a, b in s]
    return t

HEADER = """
Fused adaLN + decode attention + SwiGLU FFN, ONE persistent launch (hand-written generator: work/gen8.py + asmlib.py).
256 workgroups (one per CU) x 12 waves: waves 4-11 stream K/V (1024 keys per workgroup), waves 0-3 are helpers.
 head : silu(c)@w_mod and h@wq as 80x128 K-split tiles (masked-A MFMA), exchanged through d_ws as {value,tag} granules;
        tag = LCG(epoch word found in d_ws), only used to tell this launch's hand-offs from an earlier launch's.
 main : QK via v_dot2 + DPP, per-wave true-max softmax, PV via masked-A MFMA; part of V is prefetched to LDS until q arrives.
 tail : split-softmax combine + wo, LayerNorm (folded into the GEMV) + gate/up, down + residual; hand-off slots are poisoned
        at the start of the launch (ordered by the q dependency chain), so every dword validates itself.
        wo / gate-up tiles go to the workgroups that finish their scores first (arrival counter); placement affects speed only.
 every spin is bounded.
"""

WREG = 40 + 4 * 14

class Gen:
    def __init__(self, stamps=0, budget=30000, D=4, NL=18, roles=6, dbg=0, pre1=0, pre2=0, DO=0, GW=8, WCH=4, dry=1, ps=0, extra=0, early=4, pad=-1, pick=-1, tlb=0, rot=1, l2pre=0, eb=0, wback=0, wgu=0, gdone=0, near=1, opol=0, gx=0, amap=1, ov=1, lin=1, jit=0, wsync=0, TD=0, prio=0, dsel=0, dynr=1, omode=7, trig=0, dback=-1, dper=1, dpol=0, din=8, dnd=0, dynm=0, P1=16, msides=1, sh=2, DE=0, kb=0, IQ=0):
        self.a = Asm(); self.stamps = stamps; self.budget = budget; self.D = D; self.NL = NL; self.DO = DO
        self.roles = roles; self.dbg = dbg; self.pre1 = pre1; self.pre2 = pre2; self.GW = GW; self.WCH = WCH; self.dry = dry; self.ps = ps; self.extra = extra; self.early = early; self.tlb = tlb; self.IQ = IQ; self.DE = DE; self.kb = kb; self.sh = sh; self.dynm = dynm; self.P1 = P1; self.msides = msides; self.din = din; self.dnd = dnd; self.dback = dback; self.dper = dper; self.dpol = ' nt' if dpol else ''; self.dynr = dynr; self.omode = omode; self.trig = trig; self.dsel = dsel; self.wsync = wsync; self.TD = TD; self.prio = prio; self.jit = jit; self.near_x = (4, 5, 6, 7) if roles == 7 else (0, 1, 2, 3); self.lin = lin; self.ov = ov; self.amap = amap; self.gx = gx; self.opol = ['', ' sc1', ' sc0 sc1', ' nt'][opol]; self.near = near; self.gdone = gdone; self.wback = wback; self.wgu = wgu; self.eb = eb; self.l2pre = l2pre; self.rot = rot; self.pad = pad; self.pick = pick

    def mksrd(self, s, p, nbytes):
        self.a(f"s_mov_b32 s{s}, s{p}\ns_and_b32 s{s+1}, s{p+1}, 0xffff\ns_mov_b32 s{s+2}, {nbytes}\ns_mov_b32 s{s+3}, 0x20000")

    def stamp(self, i, prog=False):
        if self.stamps == 5 and not prog and i != 0: return
        if prog and self.stamps != 5: return
        if self.stamps: self.a(f"s_memrealtime s[{STAMP0+2*i}:{STAMP0+2*i+1}]")

    def poll(self, loads, invalid, sleep=1, lds=False, tail=False):
        a = self.a
        L, D = a.label("L_poll"), a.label("L_pdone")
        a(f"s_mov_b64 s[{sEX}:{sEX+1}], exec")
        if tail: a(f"s_cbranch_execz {D}")
        a(f"{L}:")
        loads()
        a("s_waitcnt lgkmcnt(0)" if lds else "s_waitcnt vmcnt(0)")
        invalid()
        a(f"s_cbranch_vccz {D}")
        a(f"s_cmp_eq_u32 s{sBUD}, 0\ns_cbranch_scc1 {D}\ns_sub_u32 s{sBUD}, s{sBUD}, 1")
        a("s_mov_b64 exec, vcc")
        if sleep: a(f"s_sleep {sleep}")
        a(f"s_branch {L}")
        a(f"{D}:")
        a(f"s_mov_b64 exec, s[{sEX}:{sEX+1}]")

    def poll_pre(self, loads, nloads, pre, invalid, sleep=0, narrow=None, prog=False):
        a = self.a
        L, W, D, S = a.label("L_poll"), a.label("L_pw"), a.label("L_pdone"), a.label("L_ps")
        if narrow: narrow()
        a(f"s_mov_b64 s[{sEX}:{sEX+1}], exec")
        a(f"s_cbranch_execz {S}")
        loads()
        a((f"s_waitcnt vmcnt({nloads})\n" if not prog else "") + f"s_branch {S}2")
        a(f"{S}:")
        a("s_waitcnt vmcnt(0)")
        a(f"{S}2:")
        if narrow: self.unmask()
        pre()
        a(f"s_mov_b64 exec, s[{sEX}:{sEX+1}]")
        a(f"s_cbranch_execz {D}\ns_branch {W}")
        a(f"{L}:")
        loads()
        a(f"{W}:")
        a("s_waitcnt vmcnt(0)")
        invalid()
        a(f"s_cbranch_vccz {D}")
        a(f"s_cmp_eq_u32 s{sBUD}, 0\ns_cbranch_scc1 {D}\ns_sub_u32 s{sBUD}, s{sBUD}, 1")
        a("s_mov_b64 exec, vcc")
        if sleep: a(f"s_sleep {sleep}")
        a(f"s_branch {L}")
        a(f"{D}:")
        self.unmask()

    def lds_wait(self, off, n, T, sleep=4):
        a = self.a
        a(f"v_and_b32 v{T}, {n-1}, v1\nv_lshlrev_b32 v{T}, 2, v{T}")
        self.poll(lambda: a(f"ds_read_b32 v{T+1}, v{T} offset:{off}"), lambda: self.inv_poison([T + 1], T + 2), sleep=sleep, lds=True)

    def inv_tags(self, tagregs, tmp):
        a = self.a
        a(f"v_xor_b32 v{tmp}, s{sT}, v{tagregs[0]}")
        for t in tagregs[1:]:
            a(f"v_xor_b32 v{tmp+1}, s{sT}, v{t}\nv_or_b32 v{tmp}, v{tmp}, v{tmp+1}")
        a(f"v_cmp_ne_u32 vcc, 0, v{tmp}")

    def inv_poison(self, regs, tmp):
        a = self.a
        regs = list(regs)
        if len(regs) == 1:
            a(f"v_cmp_eq_u32 vcc, -1, v{regs[0]}"); return
        if len(regs) == 2:
            a(f"v_max_u32 v{tmp}, v{regs[0]}, v{regs[1]}"); rest = []
        else:
            a(f"v_max3_u32 v{tmp}, v{regs[0]}, v{regs[1]}, v{regs[2]}"); rest = regs[3:]
        while len(rest) >= 2:
            a(f"v_max3_u32 v{tmp}, v{tmp}, v{rest[0]}, v{rest[1]}"); rest = rest[2:]
        if rest: a(f"v_max_u32 v{tmp}, v{tmp}, v{rest[0]}")
        a(f"v_cmp_eq_u32 vcc, -1, v{tmp}")

    def reduce8(self, acc, t):
        a = self.a
        for j in range(4): a(f"v_permlane32_swap_b32 v{acc[j]}, v{acc[j+4]}")
        for j in range(4): a(f"v_add_f32 v{acc[j]}, v{acc[j]}, v{acc[j+4]}")
        for j in range(2): a(f"v_permlane16_swap_b32 v{acc[j]}, v{acc[j+2]}")
        for j in range(2): a(f"v_add_f32 v{acc[j]}, v{acc[j]}, v{acc[j+2]}")
        a(f"v_add_f32_dpp v{t}, v{acc[0]}, v{acc[0]} row_ror:8 row_mask:0xf bank_mask:0x3")
        a(f"v_add_f32_dpp v{t}, v{acc[1]}, v{acc[1]} row_ror:8 row_mask:0xf bank_mask:0xc")

    def allred_rows(self, op, regs, tmps):
        a = self.a
        for sw in ("v_permlane16_swap_b32", "v_permlane32_swap_b32"):
            for r, t in zip(regs, tmps): a(f"v_mov_b32 v{t}, v{r}")
            for r, t in zip(regs, tmps): a(f"{sw} v{t}, v{r}")
            for r, t in zip(regs, tmps): a(f"{op} v{r}, v{r}, v{t}")

    def dpp_red(self, op, regs, steps):
        for s in steps:
            for r in regs: self.a(f"{op}_dpp v{r}, v{r}, v{r} {s} row_mask:0xf bank_mask:0xf")

    X1, X2, HM, R4, R8 = "quad_perm:[1,0,3,2]", "quad_perm:[2,3,0,1]", "row_half_mirror", "row_ror:4", "row_ror:8"

    def rbf(self, d, s):
        self.a(f"v_cvt_pk_bf16_f32 v{d}, v{s}, v{s}\nv_and_b32 v{d}, s{sHIMASK}, v{d}")

    def silu(self, d, s, t):
        self.a(f"v_mul_f32 v{t}, {NLOG2E}, v{s}\nv_exp_f32 v{t}, v{t}\nv_add_f32 v{t}, 1.0, v{t}\nv_rcp_f32 v{t}, v{t}\nv_mul_f32 v{d}, v{s}, v{t}")

    def preperm(self, W, npairs, free):
        a = self.a
        PP = []
        for p in range(npairs):
            E = list(range(W + 8 * p, W + 8 * p + 4)); O = list(range(W + 8 * p + 4, W + 8 * p + 8))
            P = []
            for d in range(4):
                a(f"v_perm_b32 v{free}, v{O[d]}, v{E[d]}, s{sPERMLO}")
                a(f"v_perm_b32 v{O[d]}, v{O[d]}, v{E[d]}, s{sPERMHI}")
                P += [free, O[d]]
                free = E[d]
            PP.append(P)
        return PP

    def ln_scalars(self, s1, s2, t):
        a = self.a
        a(f"v_mul_f32 v{s1}, {f32(1/640)}, v{s1}\nv_mul_f32 v{s2}, {f32(1/640)}, v{s2}")
        a(f"v_fma_f32 v{s2}, -v{s1}, v{s1}, v{s2}\nv_max_f32 v{s2}, 0, v{s2}")
        a(f"v_cvt_pk_bf16_f32 v{t}, v{s1}, v{s2}")
        a(f"v_lshlrev_b32 v{s1}, 16, v{t}\nv_and_b32 v{s2}, s{sHIMASK}, v{t}")
        a(f"v_add_f32 v{s2}, {f32(1e-5)}, v{s2}")
        self.rbf(s2, s2)
        a(f"v_sqrt_f32 v{s2}, v{s2}")
        self.rbf(s2, s2)
        a(f"v_rcp_f32 v{s2}, v{s2}")

    def masks(self, MK, T):
        a = self.a
        a(f"v_and_b32 v{T+1}, 15, v0\nv_mov_b32 v{T+2}, 0xffff\nv_mov_b32 v{T+3}, 0xffff0000")
        for i in range(4):
            a(f"v_cmp_eq_u32 vcc, {2*i}, v{T+1}\nv_cndmask_b32 v{MK+i}, 0, v{T+2}, vcc")
            a(f"v_cmp_eq_u32 vcc, {2*i+1}, v{T+1}\nv_cndmask_b32 v{MK+i}, v{MK+i}, v{T+3}, vcc")

    def bulk(self):
        a = self.a
        if self.DO:
            if self.dsel:
                a(f"s_waitcnt lgkmcnt(0)\ns_and_b32 s11, s{sROLE}, 3\ns_bitcmp1_b32 {self.dsel}, s11\ns_cbranch_scc1 L_bulk_odd")
            else: a(f"s_bitcmp1_b32 s2, 0\ns_cbranch_scc1 L_bulk_odd")
            self.bulk_body(32, "e", self.D)
            a("L_bulk_odd:")
            self.bulk_body(32, "o", self.DO)
        else:
            self.bulk_body(32, "o")
        self.bulk_fin()

    def bulk_body(self, N, sfx, Dx=None):
        a = self.a
        Dx = Dx or self.D
        if Dx < 20: Dx *= 10
        D_ = (Dx + 9) // 10; NLS = self.NL
        depth0 = lambda i: ((i + 1) * Dx) // 10 - (i * Dx) // 10
        depth = lambda i: self.DE if (self.DE and i >= 32 + NLS) else depth0(i)
        self.known = -1
        VO, Q, MK, A0, D, T, S, RING = 1, 2, 6, 10, 18, 22, 31, 40
        NG = (N + 3) // 4
        assert NG <= 9 and N % 4 == 0
        dest = []
        for t in range(N): dest.append(("r", t) if t < 32 else ("l", t - 32))
        lnext = max(0, N - 32); spare = list(range(N, 32)); late = 0
        for t in range(N):
            if spare: dest.append(("r", spare.pop(0)))
            elif lnext < NLS: dest.append(("l", lnext)); lnext += 1
            else: dest.append(("R", late)); late += 1
        PRE = 2 * N - late
        scratch = [s for s in range(late, min(N, 32))]
        assert len(scratch) >= 8
        scratch = scratch[-8:]
        assert late <= 14 and scratch[0] >= 24
        self.issued = 0; self.m0 = None; self.s12 = None; self.wissued = 0; self.wpos = []
        after = lambda v: (self.issued - 1 - v) + sum(1 for p in self.wpos if p > v)
        def ld():
            i = self.issued
            if i >= 2 * N: return
            t = i % N
            kind, slot = dest[i]
            if i >= depth(i) and i - depth(i) > self.known:
                a(f"s_waitcnt vmcnt({after(i - depth(i))})"); self.known = i - depth(i)
            if self.s12 != t // 4:
                if self.rot == 1: a(f"s_xor_b32 s12, s{14 + (t//4) % 2}, {(t//4)*32768}")
                else: a(f"s_xor_b32 s12, s14, {(t//4)*32768 + [0,2,4,6,1,3,5,7][t//4]*4096}")
                self.s12 = t // 4
            s_ = srd(SA if i < N else SB)
            if kind == "l":
                m = slot * 1024 - (t % 4) * 1024
                if self.m0 != m: a(f"s_add_u32 m0, s13, {m}\ns_nop 0" if m >= 0 else f"s_sub_u32 m0, s13, {-m}\ns_nop 0"); self.m0 = m
                a(f"buffer_load_dwordx4 v{VO}, {s_}, s12 offen offset:{(t%4)*1024} nt lds")
            else:
                a(f"buffer_load_dwordx4 {vr(RING+4*slot,4)}, v{VO}, {s_}, s12 offen offset:{(t%4)*1024} nt")
            self.issued += 1
            if i in (9, 15, 21, 27, 33, 39, 45, 51, 57, 63): self.stamp((i - 3) // 6, prog=True)
            if self.dynm and i == self.P1:
                a(f"s_lshl_b32 s11, s10, 2\nv_mov_b32 v{T+8}, s11\nds_write_b32 v{T+8}, v{T+8} offset:{PG1}")
            if self.trig and i == self.trig:
                a(f"s_lshl_b32 s11, s10, 2\nv_mov_b32 v{T+8}, s11\nds_write_b32 v{T+8}, v{T+8} offset:{ISS}")
        def landed(i, may_issue):
            while self.issued < 2 * N and self.known < i and may_issue(self.issued): ld()
            if self.known < i: a(f"s_waitcnt vmcnt({after(i)})"); self.known = i
        self.issued = 4
        for t in range(4, self.IQ or PRE): ld()
        self.stamp(4)
        self.poll(lambda: a(f"ds_read_b128 {vr(Q,4)}, v{T+1} offset:{QL}"), lambda: self.inv_poison(range(Q, Q + 4), T + 2), sleep=2, lds=True)
        order = list(range(min(NG, 8)))
        if NG > 8: order = [7] + list(range(7)) + [8]
        done_slots = set()
        free_for = lambda i: dest[i][0] != 'R' or (dest[i][1] in done_slots and not (NG > 8 and dest[i][1] >= 28))
        for n, u in enumerate(order):
            tiles = [t for t in range(4 * u, 4 * u + 4) if t < N]
            landed(tiles[-1], free_for)
            if u == 8: a("s_waitcnt lgkmcnt(0)")
            for d in range(4):
                for b, t in enumerate(tiles):
                    k = RING + 4 * (t if t < 32 else t - 4) + d
                    if d == 0: a(f"v_dot2_f32_bf16 v{T+b}, v{k}, v{Q}, 0")
                    else: a(f"v_dot2_f32_bf16 v{T+b}, v{k}, v{Q+d}, v{T+b}")
            for b in range(len(tiles), 4): a(f"v_mov_b32 v{T+b}, 0xff800000")
            if u < 8: done_slots |= set(tiles)
            if NG > 8 and u == 7:
                landed(N - 1, lambda i: False)
                for t in range(32, N): a(f"ds_read_b128 {vr(RING+4*(t-4),4)}, v{T+7} offset:{1024*(t-32)}")
            if self.kb:
                while self.issued < 2 * N and free_for(self.issued) and self.issued - depth(self.issued) <= self.known: ld()
            if n in (1, 4, 7) and self.issued < 2 * N and free_for(self.issued): ld()
            a(f"v_add_f32_dpp v{T+4}, v{T}, v{T} row_ror:8 row_mask:0xf bank_mask:0x3")
            a(f"v_add_f32_dpp v{T+5}, v{T+1}, v{T+1} row_ror:8 row_mask:0xf bank_mask:0x3")
            a(f"v_add_f32_dpp v{T+4}, v{T+2}, v{T+2} row_ror:8 row_mask:0xf bank_mask:0xc")
            a(f"v_add_f32_dpp v{T+5}, v{T+3}, v{T+3} row_ror:8 row_mask:0xf bank_mask:0xc")
            a(f"v_add_f32_dpp v{S+u}, v{T+4}, v{T+4} row_shl:4 row_mask:0xf bank_mask:0x5")
            a(f"v_add_f32_dpp v{S+u}, v{T+5}, v{T+5} row_shr:4 row_mask:0xf bank_mask:0xa")
        Sr = list(range(S, S + NG))
        self.dpp_red("v_add_f32", Sr, [self.X2, self.X1])
        prs = [(Sr[i], Sr[min(i + 1, NG - 1)]) for i in range(0, NG, 2)]
        for rep in range(2):
            for k, (x, y) in enumerate(prs): a(f"v_cvt_pk_bf16_f32 v{T+k}, v{x}, v{y}")
            for k, (x, y) in enumerate(prs):
                a(f"v_lshlrev_b32 v{x}, 16, v{T+k}")
                if y != x: a(f"v_and_b32 v{y}, s{sHIMASK}, v{T+k}")
            if rep == 0:
                for r in Sr: a(f"v_mul_f32 v{r}, {SCALE}, v{r}")
        M, Ls = T + 4, T + 5
        a(f"v_max3_f32 v{M}, v{Sr[0]}, v{Sr[1]}, v{Sr[2]}")
        rest = Sr[3:]
        while len(rest) >= 2: a(f"v_max3_f32 v{M}, v{M}, v{rest[0]}, v{rest[1]}"); rest = rest[2:]
        if rest: a(f"v_max_f32 v{M}, v{M}, v{rest[0]}")
        self.dpp_red("v_max_f32", [M], [self.R4, self.R8])
        self.allred_rows("v_max_f32", [M], [T])
        ld()
        for r in Sr: a(f"v_sub_f32 v{r}, v{r}, v{M}")
        for r in Sr: a(f"v_mul_f32 v{r}, {LOG2E}, v{r}")
        for r in Sr: a(f"v_exp_f32 v{r}, v{r}")
        a(f"v_add_f32 v{Ls}, v{Sr[0]}, v{Sr[1]}")
        for r in Sr[2:]: a(f"v_add_f32 v{Ls}, v{Ls}, v{r}")
        for r in Sr: a(f"v_cvt_pk_bf16_f32 v{r}, v{r}, v{r}")
        self.dpp_red("v_add_f32", [Ls], [self.R4, self.R8])
        self.allred_rows("v_add_f32", [Ls], [T])
        a(f"v_min_u32 v{M}, 0xfffffffe, v{M}")
        a(f"s_lshl_b32 s11, s10, 3\nv_mov_b32 v{T}, s11")
        a("s_mov_b64 exec, 1")
        a(f"ds_write_b64 v{T}, {vr(M,2)} offset:{MLW}")
        a("s_mov_b64 exec, -1")
        a(f"v_and_b32 v{T}, 15, v0\nv_lshlrev_b32 v{T}, 5, v{T}\nv_and_b32 v{T+1}, 16, v0\nv_add_u32 v{T}, v{T}, v{T+1}")
        a(f"s_lshl_b32 s11, s10, 9\nv_add_u32 v{T}, s11, v{T}")
        yes = lambda i: True
        lt = [t for t in range(N) if dest[N + t][0] == "l"]
        chunks = [lt[i:i + 4] for i in range(0, len(lt), 4)]
        where = {}
        def lds_reads(c):
            if c >= len(chunks): return
            for k, t in enumerate(chunks[c]):
                landed(N + t, yes)
                where[t] = scratch[(c % 2) * 4 + k]
                a(f"ds_read_b128 {vr(RING+4*where[t],4)}, v{T+7} offset:{1024*dest[N+t][1]}")
        a("s_waitcnt lgkmcnt(0)")
        lds_reads(0)
        FW = T + 6
        got_f = False
        if not self.dynr: self.weight_setup(T + 8, Q)
        RG = 4096 // self.GW // 32
        def wloads(n, va=T+8):
            for k in range(n):
                i = self.wissued
                if i >= self.wmax: return
                a(f"buffer_load_dwordx2 {vr(WREG+2*i,2)}, v{va}, {srd(SC)}, s{sWOFF} offen nt")
                a(f"s_add_u32 s{sWOFF}, s{sWOFF}, s{sWSTR}")
                if i == RG - 1: a(f"s_add_u32 s{sWOFF}, s{sWOFF}, s{sWJMP}")
                self.wissued += 1; self.wpos.append(self.issued)
        self.wloads = wloads
        def step(t):
            A = A0 + 4 * (t % 2)
            for i in range(4):
                a(f"v_and_b32_dpp v{A+i}, v{S+t//4}, v{MK+i} row_newbcast:{4*(t%4)} row_mask:0xf bank_mask:0xf")
            if t in lt:
                c, k = divmod(lt.index(t), 4)
                if k == 0:
                    if c % 2 == 1: ld()
                    a("s_waitcnt lgkmcnt(0)")
                    lds_reads(c + 1)
                slot = where[t]
            else:
                landed(N + t, yes)
                slot = dest[N + t][1]
            a(f"v_mfma_f32_16x16x32_bf16 {vr(D,4)}, {vr(A,4)}, {vr(RING+4*slot,4)}, {vr(D,4)}")
        def getrole():
            if self.dynr:
                a(f"v_mov_b32 v{Q}, 0")
                self.poll(lambda: a(f"ds_read_b32 v{Q+1}, v{Q} offset:{ROL}"), lambda: self.inv_poison([Q + 1], Q + 2), sleep=1, lds=True)
                a(f"v_readfirstlane_b32 s{sROLE}, v{Q+1}")
                self.weight_setup(T + 8, Q)
        def getf():
            if self.prio: a("s_setprio 2")
            a(f"v_and_b32 v{T+2}, 7, v0\nv_lshlrev_b32 v{T+2}, 3, v{T+2}")
            self.poll(lambda: a(f"ds_read_b32 v{FW}, v{T+2} offset:{MLW}"), lambda: self.inv_poison([FW], T + 3), sleep=2, lds=True)
            self.dpp_red("v_max_f32", [FW], [self.X1, self.X2, self.HM])
            a(f"v_sub_f32 v{FW}, v{M}, v{FW}\nv_mul_f32 v{FW}, {LOG2E}, v{FW}\nv_exp_f32 v{FW}, v{FW}")
            a(f"s_mul_i32 s14, s{sCI}, {REC}\ns_add_u32 s14, s14, {OA}")
            a(f"v_and_b32 v{T+2}, 63, v0\nv_lshlrev_b32 v{T+2}, 3, v{T+2}\nv_mov_b32 v{T+3}, 0\nv_mov_b32 v{T+7}, 1")
        def rest(wch, t, fn=None):
            got = False
            for u in range(t, N):
                if self.issued == 2 * N and not got: getf(); got = True
                if wch: (fn or wloads)(wch if u < N - 1 else 20)
                step(u)
            assert got
        t = 0
        if self.dback >= 0:
            while not (self.issued >= 2 * N - self.dback and t > (lt[-1] if lt else 0)):
                step(t); t += 1
            getrole()
            L1 = a.label("L_nod")
            a(f"s_cmp_lg_u32 s{sTY}, 3\ns_cbranch_scc1 {L1}")
            self.mksrd(SA, P_WD, 1728 * 1280)
            a(f"s_lshl_b32 s{sWOFF}, s{sRA}, 5\ns_add_u32 s{sWSTR}, s{sWOFF}, 5120")
            a(f"v_subrev_u32 v{Q}, 256, v0\nv_lshrrev_b32 v{Q}, 1, v{Q}\nv_mul_u32_u24 v{T+8}, {8*1280}, v{Q}\nv_and_b32 v{Q}, 1, v0\nv_lshl_add_u32 v{T+8}, v{Q}, 4, v{T+8}")
            def dloads(n):
                for k in range(n):
                    i = self.wissued
                    if i >= self.din: return
                    a(f"buffer_load_dwordx4 {vr(WREG+4*i,4)}, v{T+8}, {srd(SA)}, s{sWOFF + i//4} offen offset:{1280*(i%4)}{self.dpol}")
                    self.wissued += 1; self.wpos.append(self.issued)
            save = (self.issued, self.s12, self.known)
            rest(self.dper, t, dloads)
            a("s_branch L_bulk_fin")
            a(f"{L1}:")
            self.issued, self.s12, self.known = save; self.wissued = 0; self.wpos = []
        while not (self.issued >= 2 * N - self.wback and t > (lt[-1] if lt else 0)):
            step(t); t += 1
        if self.dback < 0: getrole()
        if self.WCH:
            L0 = a.label("L_now")
            if self.wgu: a(f"s_cmp_eq_u32 s{SC+2}, 0\ns_cbranch_scc1 {L0}"); self.wmax = 20
            else: a(f"s_cmp_lg_u32 s{sTY}, 1\ns_cbranch_scc1 {L0}"); self.wmax = RG
            save = (self.issued, self.s12, self.known)
            if self.wsync:
                assert self.wback == 0
                a(f"s_lshl_b32 s11, s10, 2\nv_mov_b32 v{Q}, s11\nds_write_b32 v{Q}, v{Q} offset:{ISS}\nv_and_b32 v{Q}, 7, v0\nv_lshlrev_b32 v{Q}, 2, v{Q}")
                self.poll(lambda: a(f"ds_read_b32 v{Q+1}, v{Q} offset:{ISS}"), lambda: self.inv_poison([Q + 1], Q + 2), sleep=1, lds=True)
            rest(self.WCH, t)
            a(f"s_mov_b32 s{SC+2}, 0")
            a("s_branch L_bulk_fin")
            a(f"{L0}:")
            self.issued, self.s12, self.known = save; self.wissued = 0; self.wpos = []
        rest(0, t)
        if sfx == "e": a("s_branch L_bulk_fin")

    def bulk_fin(self):
        a = self.a
        VO, Q, MK, A0, D, T, S, RING = 1, 2, 6, 10, 18, 22, 31, 40
        FW = T + 6
        a("L_bulk_fin:")
        self.jitter(3, 31, 9)
        self.stamp(11, prog=True)
        if self.stamps == 6:
            a(f"s_memrealtime s[{STAMP0+2}:{STAMP0+3}]\ns_waitcnt lgkmcnt(0)\ns_mov_b64 exec, 1")
            a(f"s_add_u32 s{STAMP0+20}, s{P_WS}, 0x8000000\ns_addc_u32 s{STAMP0+21}, s{P_WS+1}, 0")
            a(f"s_mul_i32 s11, s2, 192\ns_lshl_b32 s12, s10, 3\nv_mov_b32 v3, s11\ns_add_u32 s11, s11, s12\nv_mov_b32 v2, s11")
            a(f"v_mov_b32 v4, s{STAMP0+2}\nv_mov_b32 v5, s{STAMP0+3}\nglobal_store_dwordx2 v2, v[4:5], s[{STAMP0+20}:{STAMP0+21}] offset:8\ns_nop 1")
            a(f"v_mov_b32 v4, s{STAMP0+8}\nv_mov_b32 v5, s{STAMP0+9}\nglobal_store_dwordx2 v2, v[4:5], s[{STAMP0+20}:{STAMP0+21}] offset:104\ns_nop 1")
            a(f"v_mov_b32 v4, s{STAMP0}\nv_mov_b32 v5, s{STAMP0+1}\nglobal_store_dwordx2 v3, v[4:5], s[{STAMP0+20}:{STAMP0+21}]\ns_nop 1")
            a("s_mov_b64 exec, -1")
        a("s_mov_b32 exec_hi, 0")
        for i in range(4): a(f"v_mul_f32 v{D+i}, v{FW}, v{D+i}")
        a(f"ds_write_b128 v{T}, {vr(D,4)} offset:{OW}")
        a("s_mov_b64 exec, 1")
        a(f"ds_add_rtn_u32 v{T+1}, v{T+3}, v{T+7} offset:{CNT}")
        a("s_mov_b64 exec, -1")
        a("s_waitcnt lgkmcnt(0)")
        a(f"v_readfirstlane_b32 s11, v{T+1}")
        LN = a.label("L_notlast")
        a(f"s_cmp_lg_u32 s11, 6\ns_cbranch_scc1 {LN}")
        self.stamp(6)
        for w in range(8): a(f"ds_read_b64 {vr(RING+2*w,2)}, v{T+2} offset:{OW+512*w}")
        for n, wt in ((0, 6), (2, 4), (4, 2), (6, 0)):
            a(f"s_waitcnt lgkmcnt({0 if self.stamps else wt})")
            a(f"v_pk_add_f32 {vr(RING+2*n,2)}, {vr(RING+2*n,2)}, {vr(RING+2*n+2,2)}")
            if n: a(f"v_pk_add_f32 {vr(RING,2)}, {vr(RING,2)}, {vr(RING+2*n,2)}")
        a(f"v_min_u32 v{RING}, 0xfffffffe, v{RING}\nv_min_u32 v{RING+1}, 0xfffffffe, v{RING+1}")
        a(f"buffer_store_dwordx2 {vr(RING,2)}, v{T+2}, {srd(SW)}, s14 offen sc1")
        a(f"ds_write_b32 v{T+3}, v{T+3} offset:{DONE}")
        if self.stamps:
            self.stamp(7)
            self.store_stamps((6, 7), 0)
            a("s_mov_b64 exec, -1")
        a(f"{LN}:")
        if not (self.WCH and self.wgu) and not self.gdone:
            a(f"s_cmp_eq_u32 s{SC+2}, 0\ns_cbranch_scc1 L_tail")
            self.wissued = 0; self.wmax = 20
            if self.prio: a("s_setprio 0")
            for k in range(20):
                if self.TD and k >= self.TD: a(f"s_waitcnt vmcnt({self.TD-1})")
                self.wloads(1)

    def store_stamps(self, idx, slot):
        a = self.a
        if self.stamps == 6: return
        if self.stamps == 5:
            if 11 not in idx: return
            idx = range(12)
        if self.stamps == 4:
            a("s_waitcnt lgkmcnt(0)\ns_mov_b64 exec, 1\nv_mov_b32 v2, 0")
            for i in idx: a(f"v_mov_b32 v4, s{STAMP0+2*i}\nds_write_b32 v2, v4 offset:{400+4*i}")
            a("s_waitcnt lgkmcnt(0)")
            if 11 in idx:
                t = role_table(self.roles, self.GW)
                pick = [b for b in range(240) if (t[b] & 3) == 3][0] if self.pick < 0 else self.pick
                a(f"s_cmp_lg_u32 s2, {pick}\ns_cbranch_scc1 L_end")
                a(f"ds_read_b32 v4, v2 offset:{400+4*self.pad}\ns_waitcnt lgkmcnt(0)\nv_readfirstlane_b32 s11, v4")
                a(f"s_sub_u32 s11, s11, s{STAMP0}\ns_mul_i32 s11, s11, 2\ns_add_u32 s11, s11, 5000\ns_min_u32 s11, s11, 20000")
                a(f"L_padloop:\ns_memrealtime s[12:13]\ns_waitcnt lgkmcnt(0)\ns_sub_u32 s12, s12, s{STAMP0}\ns_cmp_lt_u32 s12, s11\ns_cbranch_scc1 L_padloop")
            return
        if self.stamps == 3:
            t = role_table(self.roles, self.GW)
            pick = {ty: [b for b in range(240) if (t[b] & 3) == ty][0] for ty in (1, 2, 3)}
            a("s_load_dwordx2 s[12:13], s[0:1], 96\ns_waitcnt lgkmcnt(0)\ns_mov_b64 exec, 1\nv_mov_b32 v2, 0")
            for i in idx:
                for ty, slot in (((1, i), (2, i + 5)) if i in (8, 9) else ((3, i),)):
                    L = a.label("L_st")
                    a(f"s_cmp_lg_u32 s2, {pick[ty]}\ns_cbranch_scc1 {L}\nv_mov_b32 v4, s{STAMP0+2*i}\nglobal_store_dword v2, v4, s[12:13] offset:{4*slot}\n{L}:")
            return
        if self.stamps == 2:
            a("s_load_dwordx2 s[12:13], s[0:1], 96\ns_waitcnt lgkmcnt(0)\ns_mov_b64 exec, 1\nv_mov_b32 v2, 0")
            for i in idx:
                if i == 0: a(f"s_not_b32 s11, s{STAMP0}\nv_mov_b32 v4, s11\nglobal_atomic_umax v2, v4, s[12:13] offset:48\ns_nop 1")
                if i in (8, 9):
                    a(f"s_cmp_eq_u32 s{sTY}, 2\ns_cselect_b32 s11, 20, 0\nv_mov_b32 v3, s11\nv_mov_b32 v4, s{STAMP0+2*i}\nglobal_atomic_umax v3, v4, s[12:13] offset:{4*i}\ns_nop 1")
                else:
                    a(f"v_mov_b32 v4, s{STAMP0+2*i}\nglobal_atomic_umax v2, v4, s[12:13] offset:{4*i}\ns_nop 1")
            return
        a("s_waitcnt lgkmcnt(0)\ns_mov_b64 exec, 1")
        a(f"s_add_u32 s12, s{P_WS}, 0x8000000\ns_addc_u32 s13, s{P_WS+1}, 0")
        a(f"s_mul_i32 s11, s2, 192\nv_mov_b32 v2, s11")
        for i in idx:
            a(f"v_mov_b32 v4, s{STAMP0+2*i}\nv_mov_b32 v5, s{STAMP0+2*i+1}\nglobal_store_dwordx2 v2, v[4:5], s[12:13] offset:{8*i+96*slot}\ns_nop 1")

    def common_setup(self):
        a = self.a
        L = a.label("L_pc")
        a(f"s_load_dword s{sT}, s[{P_WS}:{P_WS+1}], 0")
        a(f"s_getpc_b64 s[{sEX}:{sEX+1}]")
        a(f"{L}:")
        a(f"s_lshl_b32 s11, s2, 2\ns_add_u32 s11, s11, role_tbl-{L}")
        a(f"s_load_dword s{sROLE}, s[{sEX}:{sEX+1}], s11")
        self.mksrd(SW, P_WS, WS_BYTES)
        a(f"s_mov_b32 s{sBUD}, {self.budget}\ns_mov_b32 s{sPERMLO}, 0x05040100\ns_mov_b32 s{sPERMHI}, 0x07060302\ns_mov_b32 s{sHIMASK}, 0xffff0000")
        a(f"s_mov_b64 {FULL}, -1")

    def role_decode(self):
        a = self.a
        a(f"s_and_b32 s{sTY}, s{sROLE}, 3\ns_bfe_u32 s{sRA}, s{sROLE}, 0x80008\ns_bfe_u32 s{sRB}, s{sROLE}, 0x80010")
        if self.dbg & 2: a(f"s_mov_b32 s{sTY}, 0")

    def weight_setup(self, VW, T):
        a = self.a
        RG = 4096 // self.GW // 32
        self.role_decode()
        a(f"s_sub_u32 s11, s{sRA}, 27\ns_cmp_lt_u32 s{sRA}, 27\ns_cselect_b32 s{SC}, s{P_WG}, s{P_WU}\ns_cselect_b32 s{SC+1}, s{P_WG+1}, s{P_WU+1}\ns_cselect_b32 s11, s{sRA}, s11")
        a(f"s_lshl_b32 s{sWOFF}, s11, 7")
        a(f"s_mul_i32 s11, s{sRB}, {RG*32*1280}\ns_lshl_b32 s{sWSTR}, s{sRA}, 7\ns_add_u32 s11, s11, s{sWSTR}")
        a(f"s_cmp_eq_u32 s{sTY}, 2\ns_cselect_b32 s{SC+2}, {640*3456}, 0")
        a(f"s_cmp_eq_u32 s{sTY}, 1\ns_cselect_b32 s{SC}, s{P_WO}, s{SC}\ns_cselect_b32 s{SC+1}, s{P_WO+1}, s{SC+1}\ns_cselect_b32 s{SC+2}, {4096*1280}, s{SC+2}")
        a(f"s_cselect_b32 s{sWOFF}, s11, s{sWOFF}\ns_cselect_b32 s{sWJMP}, 0x40000000, 0")
        a(f"s_mov_b32 s{sWSTR}, 3456\ns_cselect_b32 s{sWSTR}, 1280, s{sWSTR}\ns_mov_b32 s11, {20*3456}\ns_cselect_b32 s11, {RG*1280}, s11")
        if self.dbg & 256: a(f"s_cmp_eq_u32 s{sTY}, 1\ns_cselect_b32 s{SC+2}, 0, s{SC+2}")
        if self.dbg & 512: a(f"s_cmp_eq_u32 s{sTY}, 2\ns_cselect_b32 s{SC+2}, 0, s{SC+2}")
        a(f"s_and_b32 s{SC+1}, s{SC+1}, 0xffff\ns_mov_b32 s{SC+3}, 0x20000")
        a(f"v_subrev_u32 v{T}, 256, v0\nv_lshrrev_b32 v{T}, 4, v{T}\nv_mul_lo_u32 v{VW}, v{T}, s11\nv_and_b32 v{T}, 15, v0\nv_lshl_add_u32 v{VW}, v{T}, 3, v{VW}")

    def tile_mfma(self, W, AE, AO, MK, A0, D, PB, waits):
        a = self.a
        for t in range(20):
            A = A0 + 4 * (t % 2)
            for i in range(4):
                a(f"v_and_b32_dpp v{A+i}, v{AO if t % 2 else AE}, v{MK+i} row_newbcast:{t//2} row_mask:0xf bank_mask:0xf")
            if waits: a(f"s_waitcnt vmcnt({19-t})")
            if t < 2: a(f"v_mov_b32 v{PB+2*t+1}, s{sT}")
            a(f"v_mfma_f32_16x16x32_bf16 {vr(D,4)}, {vr(A,4)}, {vr(W+4*t,4)}, {vr(D,4)}")

    def tile_publish(self, D, PB, VA, soff):
        a = self.a
        a(f"v_permlane32_swap_b32 v{D}, v{D+2}\nv_permlane32_swap_b32 v{D+1}, v{D+3}")
        a(f"v_mov_b32 v{PB}, v{D}\nv_mov_b32 v{PB+2}, v{D+1}")
        a(f"buffer_store_dwordx4 {vr(PB,4)}, v{VA}, {srd(SW)}, s{soff} offen sc1")

    def pos2pair(self, dst, src, T):
        a = self.a
        a(f"v_and_b32 v{T}, 15, v{src}\nv_bfe_u32 v{T+1}, v{src}, 4, 1\nv_lshlrev_b32 v{T}, 2, v{T}\nv_lshl_add_u32 v{T}, v{T+1}, 1, v{T}")
        a(f"v_bfe_u32 v{T+1}, v{src}, 5, 1\nv_and_b32 v{dst}, 0xffc0, v{src}\nv_add3_u32 v{dst}, v{dst}, v{T}, v{T+1}")

    def tag(self):
        self.a(f"s_waitcnt lgkmcnt(0)\ns_mul_i32 s{sT}, s{sT}, 1664525\ns_add_u32 s{sT}, s{sT}, 1013904223")

    def pair_index(self, dst, T):
        self.a(f"v_lshrrev_b32 v{T}, 4, v1\nv_mul_u32_u24 v{T}, 10, v{T}\nv_and_b32 v{dst}, 15, v1\nv_add_u32 v{dst}, v{dst}, v{T}")

    def sum8(self, G):
        for n in (16, 8, 4):
            for i in range(0, n, 2): self.a(f"v_add_f32 v{G+i}, v{G+i}, v{G+n+i}")
        self.a(f"v_cvt_pk_bf16_f32 v{G}, v{G}, v{G+2}")

    def gather8(self, G, VO, sbase, gstride, T, sleep=1):
        a = self.a
        for g in range(8): a(f"s_add_u32 s{sWGT+g}, s{sbase}, {g*gstride}")
        def loads():
            for g in range(8): a(f"buffer_load_dwordx4 {vr(G+4*g,4)}, v{VO}, {srd(SW)}, s{sWGT+g} offen sc1")
        self.poll(loads, lambda: self.inv_tags([G + 2 * i + 1 for i in range(16)], T), sleep=sleep)
        self.sum8(G)

    def h0(self):
        a = self.a
        T, MK, D, VA, AE, AO, W, G = 2, 8, 12, 16, 17, 18, 24, 104
        A0, PB = G + 8, G + 16
        a("L_h0:")
        if self.dbg & 4: a("s_branch L_h0_none")
        sPASS = 9
        a(f"s_mov_b32 s{sPASS}, 0\ns_cmp_ge_u32 s{sR}, {10 if self.dynm else 30}\ns_cbranch_scc1 L_h0_none")
        a("L_h0_tile:")
        self.mksrd(SA, P_WM, 640 * 7680); self.mksrd(SB, P_C, 1280)
        self.pair_index(AE, T)
        a(f"v_lshlrev_b32 v{AE}, 2, v{AE}\ns_mul_i32 s13, s{sX}, 160\nv_lshlrev_b32 v{VA}, 4, v1")
        a(f"buffer_load_dword v{AE}, v{AE}, {srd(SB)}, s13 offen")
        a(f"s_mul_i32 s12, s{sX}, {80*7680}\ns_lshl_b32 s13, s{sR}, 8\ns_add_u32 s12, s12, s13")
        a(f"v_lshrrev_b32 v{T}, 4, v1\nv_mul_u32_u24 v{T}, {20*7680}, v{T}\nv_and_b32 v{T+1}, 15, v1\nv_lshl_add_u32 v{T}, v{T+1}, 4, v{T}")
        for t in range(20):
            a(f"buffer_load_dwordx4 {vr(W+4*t,4)}, v{T}, {srd(SA)}, s12 offen nt")
            if t < 19: a(f"s_add_u32 s12, s12, 7680")
        if self.dynm: a(f"s_cmp_lg_u32 s{sPASS}, 0\ns_cbranch_scc1 L_h0_p2")
        if self.dbg & 16: a("s_branch L_h0_np")
        self.jitter(1, 255, 11)
        a(f"s_cmp_ge_u32 s2, 80\ns_cbranch_scc1 L_h0_np")
        for i in range(4): a(f"v_mov_b32 v{PB+i}, -1")
        a(f"s_mul_i32 s13, s2, 3072\ns_add_u32 s13, s13, {PZ}")
        for i in range(3): a(f"buffer_store_dwordx4 {vr(PB,4)}, v{VA}, {srd(SW)}, s13 offen offset:{1024*i} sc1")
        a("L_h0_np:")
        if not self.eb: a("s_barrier")
        self.tag()
        a("L_h0_p2:")
        self.masks(MK, T)
        for i in range(4): a(f"v_mov_b32 v{D+i}, 0")
        a(f"s_mul_i32 s15, s{sX}, {3840*8}\ns_lshl_b32 s13, s{sR}, 10\ns_add_u32 s15, s15, s13\ns_add_u32 s15, s15, {MP}")
        a("s_waitcnt vmcnt(20)")
        a(f"v_and_b32 v{AO}, s{sHIMASK}, v{AE}\nv_lshlrev_b32 v{AE}, 16, v{AE}")
        self.silu(AE, AE, T); self.silu(AO, AO, T + 1)
        a(f"v_cvt_pk_bf16_f32 v{AE}, v{AE}, v{AE}\nv_cvt_pk_bf16_f32 v{AO}, v{AO}, v{AO}")
        self.tile_mfma(W, AE, AO, MK, A0, D, PB + 4, True)
        if not (self.dbg & 8): self.tile_publish(D, PB + 4, VA, 15)
        self.stamp(1)
        if self.dynm: a(f"s_cmp_lg_u32 s{sPASS}, 0\ns_cbranch_scc1 L_hend")
        a("s_waitcnt vmcnt(0)")
        a("s_branch L_h0_flag")
        a("L_h0_none:")
        if not self.eb: a("s_barrier")
        self.tag()
        if self.dynm: self.lds_wait(PG1, 1, T, sleep=4)
        a("L_h0_flag:")
        a(f"v_mov_b32 v{T}, 0\nds_write_b32 v{T}, v{T} offset:{F0L}")
        if self.dynm:
            a("s_load_dwordx2 s[12:13], s[0:1], 96")
            self.lds_wait(PG1, 8, T, sleep=4)
            if self.msides == 2: a("s_bfe_u32 s15, s2, 0x10002\ns_lshl_b32 s11, s15, 7")
            else: a("s_mov_b32 s15, 0\ns_mov_b32 s11, 0")
            a("s_mov_b32 s14, 1\ns_atomic_add s14, s[12:13], s11 glc\ns_waitcnt lgkmcnt(0)")
            a(f"s_cmp_ge_u32 s14, {160 // self.msides}\ns_cbranch_scc1 L_hend")
            a(f"s_mul_i32 s15, s15, 80\ns_add_u32 s14, s14, s15\ns_and_b32 s{sX}, s14, 7\ns_lshr_b32 s{sR}, s14, 3\ns_add_u32 s{sR}, s{sR}, 10\ns_mov_b32 s{sPASS}, 1")
            a("s_branch L_h0_tile")
        a("s_branch L_hend")

    def h1(self):
        a = self.a
        T, MK, D, VA, AE, AO, VG, VG2, RO, C16, W, G = 2, 8, 12, 16, 17, 18, 19, 20, 21, 22, 24, 104
        A0, PB, XS = G + 8, G + 16, G
        a("L_h1:")
        if self.dbg & 4:
            if not self.eb: a("s_barrier")
            self.tag()
            a(f"v_lshlrev_b32 v{VG2}, 2, v1\nv_mov_b32 v{W}, 0\nds_write_b32 v{VG2}, v{W} offset:{QL}\ns_branch L_hend")
        self.mksrd(SA, P_WQ, 640 * 8192); self.mksrd(SC, P_X, 1280)
        a(f"s_and_b32 s14, s2, 7\ns_mul_i32 s13, s14, 40")
        self.pair_index(VG, T)
        a(f"v_add_u32 v{VG}, s13, v{VG}")
        self.pos2pair(RO, VG, T)
        a(f"v_lshlrev_b32 v{AE}, 2, v{RO}\nv_lshlrev_b32 v{RO}, 14, v{RO}\nv_lshlrev_b32 v{T+2}, 2, v1")
        a(f"v_and_b32 v{C16}, 15, v1\nv_lshlrev_b32 v{C16}, 4, v{C16}")
        a(f"buffer_load_dword v{AE}, v{AE}, {srd(SC)}, 0 offen")
        for i in range(5): a(f"buffer_load_dword v{XS+i}, v{T+2}, {srd(SC)}, 0 offen offset:{256*i}")
        a(f"s_lshr_b32 s12, s2, 3\ns_lshl_b32 s12, s12, 8\ns_add_u32 s13, s12, 8192")
        for n in range(10):
            a(f"v_add_u32_dpp v{T+n%2}, v{RO}, v{C16} row_newbcast:{n} row_mask:0xf bank_mask:0xf")
            a(f"buffer_load_dwordx4 {vr(W+8*n,4)}, v{T+n%2}, {srd(SA)}, s12 offen nt")
            a(f"buffer_load_dwordx4 {vr(W+8*n+4,4)}, v{T+n%2}, {srd(SA)}, s13 offen nt")
        if not self.eb: a("s_barrier")
        self.masks(MK, T)
        for i in range(4): a(f"v_mov_b32 v{D+i}, 0")
        a(f"v_lshlrev_b32 v{VA}, 4, v1")
        self.tag()
        a("s_waitcnt vmcnt(20)")
        S1, S2 = XS + 6, XS + 7
        a(f"v_mov_b32 v{S1}, 0\nv_mov_b32 v{S2}, 0")
        for i in range(5):
            a(f"v_lshlrev_b32 v{T}, 16, v{XS+i}\nv_and_b32 v{T+1}, s{sHIMASK}, v{XS+i}")
            a(f"v_add_f32 v{S1}, v{S1}, v{T}\nv_fmac_f32 v{S2}, v{T}, v{T}\nv_add_f32 v{S1}, v{S1}, v{T+1}\nv_fmac_f32 v{S2}, v{T+1}, v{T+1}")
        self.dpp_red("v_add_f32", [S1, S2], [self.X1, self.X2, self.R4, self.R8])
        self.allred_rows("v_add_f32", [S1, S2], [T, T + 1])
        self.ln_scalars(S1, S2, T)
        a(f"v_and_b32 v{AO}, s{sHIMASK}, v{AE}\nv_lshlrev_b32 v{AE}, 16, v{AE}")
        for r in (AE, AO):
            a(f"v_sub_f32 v{r}, v{r}, v{S1}"); self.rbf(r, r)
            a(f"v_mul_f32 v{r}, v{r}, v{S2}"); self.rbf(r, r)
        a(f"v_lshlrev_b32 v{VG}, 4, v{VG}\nv_add_u32 v{VG2}, 5120, v{VG}")
        for g in range(8): a(f"s_mov_b32 s{sWGT+g}, {MP+g*3840*8}")
        a(f"s_lshl_b32 s15, s2, 10\ns_add_u32 s15, s15, {QP}")
        if self.dbg & 8:
            a(f"v_lshlrev_b32 v{VG2}, 2, v1\nv_mov_b32 v{T}, 0\nds_write_b32 v{VG2}, v{T} offset:{QL}\ns_waitcnt vmcnt(0)\ns_branch L_hend")
        self.lds_wait(F0L, 2, T)
        a("s_mov_b32 exec_lo, 0x03ff03ff\ns_mov_b32 exec_hi, 0x03ff03ff")
        def loads():
            for g in range(8):
                a(f"buffer_load_dwordx4 {vr(G+4*g,4)}, v{VG}, {srd(SW)}, s{sWGT+g} offen sc1")
                a(f"buffer_load_dwordx4 {vr(G+32+4*g,4)}, v{VG2}, {srd(SW)}, s{sWGT+g} offen sc1")
        for k in range(self.pre1 // 100): a("s_sleep 100")
        if self.pre1 % 100: a(f"s_sleep {self.pre1 % 100}")
        if self.dbg & 32: a("s_waitcnt vmcnt(0)")
        else: self.poll(loads, lambda: self.inv_tags([G + 2 * i + 1 for i in range(32)], T), sleep=8)
        self.stamp(2)
        self.sum8(G); self.sum8(G + 32)
        a(f"v_lshlrev_b32 v{T}, 16, v{G+32}\nv_and_b32 v{T+1}, s{sHIMASK}, v{G+32}")
        a(f"v_add_f32 v{T}, 1.0, v{T}\nv_add_f32 v{T+1}, 1.0, v{T+1}\nv_cvt_pk_bf16_f32 v{T+2}, v{T}, v{T+1}")
        a(f"v_lshlrev_b32 v{T}, 16, v{T+2}\nv_and_b32 v{T+1}, s{sHIMASK}, v{T+2}")
        a(f"v_mul_f32 v{T}, v{AE}, v{T}\nv_mul_f32 v{T+1}, v{AO}, v{T+1}\nv_cvt_pk_bf16_f32 v{T+2}, v{T}, v{T+1}")
        a(f"v_lshlrev_b32 v{T}, 16, v{T+2}\nv_and_b32 v{T+1}, s{sHIMASK}, v{T+2}")
        a(f"v_lshlrev_b32 v{AE}, 16, v{G}\nv_and_b32 v{AO}, s{sHIMASK}, v{G}")
        a(f"v_add_f32 v{AE}, v{AE}, v{T}\nv_add_f32 v{AO}, v{AO}, v{T+1}")
        a(f"v_cvt_pk_bf16_f32 v{AE}, v{AE}, v{AE}\nv_cvt_pk_bf16_f32 v{AO}, v{AO}, v{AO}")
        a("s_mov_b64 exec, -1")
        self.tile_mfma(W, AE, AO, MK, A0, D, PB, False)
        self.tile_publish(D, PB, VA, 15)
        a(f"s_lshr_b32 s15, s{sCI}, 3\ns_lshl_b32 s15, s15, 13\ns_add_u32 s15, s15, {QP}")
        self.pos2pair(VG2, 1, T)
        a(f"v_lshlrev_b32 v{VG2}, 2, v{VG2}")
        a("s_waitcnt vmcnt(0)")
        for k in range(self.pre2 // 100): a("s_sleep 100")
        if self.pre2 % 100: a(f"s_sleep {self.pre2 % 100}")
        if not (self.dbg & 64): self.gather8(W, VA, 15, 1024, T, sleep=8)
        a(f"v_min_u32 v{W}, 0xfffffffe, v{W}")
        a(f"ds_write_b32 v{VG2}, v{W} offset:{QL}")
        self.stamp(3)
        a("s_branch L_hend")

    def h2(self):
        a = self.a
        T, G = 2, 8
        OCT = [self.X1, self.X2, self.HM]
        a("L_h2:")
        if self.eb: a("s_waitcnt lgkmcnt(0)")
        else:
            a("v_mov_b32 v4, -1\nv_mov_b32 v5, -1\nv_lshlrev_b32 v2, 3, v1")
            a(f"ds_write_b64 v2, v[4:5] offset:0")
            a("s_waitcnt lgkmcnt(0)\ns_barrier")
        self.common_setup()
        if self.dynr:
            a(f"s_getpc_b64 s[12:13]\nL_pc2:\ns_bfe_u32 s14, s2, 0x10002\ns_lshl_b32 s15, s14, 9\ns_add_u32 s15, s15, ord_tbl-L_pc2\nv_lshl_add_u32 v2, v1, 2, s15")
            a("global_load_dword v160, v2, s[12:13]\nglobal_load_dword v161, v2, s[12:13] offset:256")
            a(f"s_and_b32 s{sWSTR}, s{sR}, {self.sh-1}\ns_mul_i32 s14, s14, {self.sh}\ns_add_u32 s14, s14, s{sWSTR}\ns_mul_i32 s{sWSTR}, s{sWSTR}, {128//self.sh}")
            a(f"s_lshl_b32 s{sWOFF}, s14, 7\ns_add_u32 s{sWOFF}, s{sWOFF}, {RC}")
        if self.dry:
            for v in range(2, 20): a(f"v_mov_b32 v{v}, 0")
            a("s_waitcnt lgkmcnt(0)")
            if self.dynr: a(f"s_mov_b32 s{sTY}, 1\ns_mov_b32 s{sRA}, 0\ns_mov_b32 s{sRB}, 0")
            else: self.role_decode()
            for v in list(range(44, 56)) + list(range(68, 90)): a(f"v_mov_b32 v{v}, 0")
            a(f"s_mov_b32 s{sTW}, 0\ns_mov_b64 {FULL}, 0\ns_mov_b64 exec, 0\ns_branch L_tail")
            a("L_dry_ret:")
            if self.dynr:
                a(f"s_bitcmp1_b32 s2, 2\ns_cbranch_scc1 L_dry_end\ns_add_u32 s{sTY}, s{sTY}, 1\ns_cmp_lt_u32 s{sTY}, 4\ns_cbranch_scc1 L_tail")
                a("L_dry_end:")
            self.jitter(5, 15, 5)
            a("s_mov_b64 exec, -1")
        MW, LW, PB = G, G + 1, G + 2
        a(f"v_and_b32 v{T}, 7, v1\nv_lshlrev_b32 v{T+1}, 3, v{T}")
        a(f"s_mul_i32 s12, s{sCI}, {REC}\ns_add_u32 s12, s12, {OA}")
        self.poll(lambda: a(f"ds_read_b64 {vr(MW,2)}, v{T+1} offset:{MLW}"), lambda: self.inv_poison([MW], T + 2), sleep=4, lds=True)
        claim = f"s_mov_b32 s14, 1\ns_atomic_add s14, s[{P_WS}:{P_WS+1}], s{sWOFF} glc"
        if self.omode >= 5: claim = f"s_and_b32 s13, s{sROLE}, 3\ns_cmp_eq_u32 s13, 3\ns_cbranch_scc1 L_noclaim\n" + claim + "\nL_noclaim:"
        if self.dynr and not self.trig: a(claim)
        a(f"v_mov_b32 v{PB}, v{MW}")
        self.dpp_red("v_max_f32", [PB], OCT)
        a(f"v_sub_f32 v{T+2}, v{MW}, v{PB}\nv_mul_f32 v{T+2}, {LOG2E}, v{T+2}\nv_exp_f32 v{T+2}, v{T+2}")
        a(f"v_mul_f32 v{PB+1}, v{T+2}, v{LW}")
        self.dpp_red("v_add_f32", [PB + 1], OCT)
        a(f"v_min_u32 v{PB}, 0xfffffffe, v{PB}\nv_min_u32 v{PB+1}, 0xfffffffe, v{PB+1}\nv_mov_b32 v{T+2}, 0")
        a("s_mov_b64 exec, 1")
        a(f"buffer_store_dwordx2 {vr(PB,2)}, v{T+2}, {srd(SW)}, s12 offen offset:512 sc1")
        a("s_mov_b64 exec, -1")
        a(f"v_mov_b32 v{T+4}, 0\nv_mov_b32 v{T+5}, 0")
        if self.dynr:
            if self.trig:
                self.lds_wait(ISS, 8, T, sleep=2)
                a(claim)
            if self.omode >= 5: a(f"s_and_b32 s{sROLE}, s{sROLE}, 0xffffff\ns_cmp_eq_u32 s13, 3\ns_cbranch_scc1 L_rolset")
            a(f"s_waitcnt lgkmcnt(0) vmcnt(1)\ns_add_u32 s14, s14, 1\ns_min_u32 s14, s14, {128//self.sh-1}\ns_add_u32 s14, s14, s{sWSTR}\ns_and_b32 s15, s14, 63")
            a(f"v_readlane_b32 s{sROLE}, v160, s15\nv_readlane_b32 s13, v161, s15")
            a(f"s_bitcmp1_b32 s14, 6\ns_cselect_b32 s{sROLE}, s13, s{sROLE}\ns_cmp_lt_u32 s14, 128\ns_cselect_b32 s{sROLE}, s{sROLE}, 0")
            a("L_rolset:")
            a(f"v_mov_b32 v{T+2}, s{sROLE}\nds_write_b32 v{T+4}, v{T+2} offset:{ROL}")
        if self.dynr or not self.dry: self.role_decode()
        a(f"s_cmp_eq_u32 s{sTY}, 0\ns_cbranch_scc1 L_end")
        if self.near:
            a(f"s_mov_b32 s12, {SG}")
            self.poll(lambda: a(f"buffer_load_dword v{T+5}, v{T+4}, {srd(SW)}, s12 offen sc1"), lambda: self.inv_poison([T + 5], T + 2), sleep=8)
        a(f"s_cmp_lg_u32 s{sTY}, 2\ns_cbranch_scc1 L_h2_sel")
        self.mksrd(SA, P_X, 1280)
        a(f"v_lshlrev_b32 v{T}, 2, v1\ns_mov_b32 s12, {MG}")
        for k in range(5): a(f"buffer_load_dword v{40+15+k}, v{T}, {srd(SA)}, 0 offen offset:{256*k}")
        def loads():
            for k in range(15): a(f"buffer_load_dword v{40+k}, v{T}, {srd(SW)}, s12 offen offset:{256*k} sc1")
        self.poll(loads, lambda: self.inv_poison(range(40, 55), T + 2), sleep=8)
        for k in range(20): a(f"ds_write_b32 v{T}, v{40+k} offset:{MGL+256*k}")
        a("L_h2_sel:")
        a(f"ds_write_b32 v{T+4}, v{T+5} offset:{SEL}")
        a("s_endpgm")

    def h3(self):
        a = self.a
        T, G = 2, 40
        a("L_h3:")
        self.jitter(2, 7, 3)
        if self.l2pre:
            a(f"s_getpc_b64 s[12:13]\nL_pc3:\ns_sub_u32 s12, s12, L_pc3-{NAME}_kernel\ns_subb_u32 s13, s13, 0")
            a(f"s_lshl_b32 s14, s{sR}, 10\ns_cmp_ge_u32 s14, role_tbl-{NAME}_kernel\ns_cbranch_scc1 L_h3_np")
            a(f"v_lshl_add_u32 v10, v1, 4, s14")
            a(f"global_load_dwordx4 v[164:167], v10, s[12:13]")
            a("L_h3_np:")
        if not self.eb: a("s_barrier")
        if self.tlb:
            a("s_mov_b64 exec, 1")
            a(f"s_lshl_b32 s12, s2, 18\nv_mov_b32 v10, s12\nv_mov_b32 v11, 0\nv_mov_b32 v12, 0x200000\nv_mov_b32 v13, 0x400000")
            a(f"global_load_dword v20, v10, s[{P_V}:{P_V+1}] nt")
            if self.tlb > 1:
                for p, n in ((P_WO, 3), (P_WG, 2), (P_WU, 2), (P_WD, 2), (P_OUT, 1), (P_WS, 1)):
                    for k in range(n): a(f"global_load_dword v21, v{11+k}, s[{p}:{p+1}] offset:{1024 if p != P_OUT else 0} nt")
            a("s_mov_b64 exec, -1\ns_waitcnt vmcnt(0)")
        self.tag()
        a(f"v_mov_b32 v2, 0\nds_write_b32 v2, v2 offset:{F0L+4}")
        if self.near:
            t = role_table(self.roles, self.GW)
            dec = [b for b in range(256) if (t[b] & 3) == 0 and (t[b] >> 24) == 255 and (b & 7) in self.near_x][0]
            a(f"s_cmp_lg_u32 s2, {dec}\ns_cbranch_scc1 L_nodec")
            a(f"s_add_u32 s12, s{P_WS}, 0x100000\ns_addc_u32 s13, s{P_WS+1}, 0\ns_mov_b32 s14, 0")
            if self.near == 1:
                for k in range(8):
                    ph = (k ^ (k >> 1)) & 1
                    a(f"s_memtime s[{sWGT}:{sWGT+1}]\ns_waitcnt lgkmcnt(0)")
                    for j in range(4): a(f"s_load_dword s{SA+j}, s[12:13], {ph*8192 + (k//2)*16384 + j*1024 + (j%2)*4096}")
                    a(f"s_waitcnt lgkmcnt(3)\ns_memtime s[{sWGT+2}:{sWGT+3}]\ns_waitcnt lgkmcnt(0)")
                    a(f"s_sub_u32 s15, s{sWGT+2}, s{sWGT}\ns_min_u32 s15, s15, 4000")
                    a("s_add_u32 s14, s14, s15" if ph else "s_sub_u32 s14, s14, s15")
                a("s_cmp_gt_i32 s14, 0\ns_cselect_b32 s14, 0, 8192")
            else: a(f"s_mov_b32 s14, {(self.near - 2) * 8192}")
            self.lds_wait(QL, 1, T, sleep=8)
            a(f"v_mov_b32 v2, 0\nv_mov_b32 v3, s14\ns_mov_b32 s12, {SG}\ns_mov_b64 exec, 1")
            a(f"buffer_store_dword v3, v2, {srd(SW)}, s12 offen sc1")
            if self.stamps == 7:
                a("s_load_dwordx2 s[12:13], s[0:1], 96\ns_waitcnt lgkmcnt(0)\nglobal_store_dword v2, v3, s[12:13]")
            a("s_endpgm")
            a("L_nodec:")
        if self.dbg & (12 | 128): a("s_endpgm")
        a(f"s_lshr_b32 s14, s{sROLE}, 24\ns_cmp_eq_u32 s14, 255\ns_cbranch_scc1 L_end")
        self.lds_wait(QL, 1, T, sleep=8)
        a(f"s_lshl_b32 s15, s14, 10\ns_add_u32 s15, s15, {MP+1280*8}")
        a(f"v_lshlrev_b32 v8, 4, v1")
        self.pos2pair(9, 1, T)
        a("v_lshlrev_b32 v9, 2, v9")
        self.gather8(G, 8, 15, 3840 * 8, T, sleep=8)
        a(f"v_min_u32 v{G}, 0xfffffffe, v{G}\ns_lshl_b32 s15, s14, 8\ns_add_u32 s15, s15, {MG}")
        a(f"buffer_store_dword v{G}, v9, {srd(SW)}, s15 offen sc1")
        a("s_endpgm")
        a("L_hend:")
        if self.stamps:
            a(f"s_cmp_eq_u32 s{sWAVE}, 1\ns_cbranch_scc1 L_hend1")
            self.store_stamps((0, 1), 0); a("s_endpgm")
            a("L_hend1:")
            self.store_stamps((0, 2, 3), 1)
        a("s_endpgm")

    def done_wait(self, t, zero):
        self.poll(lambda: self.a(f"ds_read_b32 v{t}, v{zero} offset:{DONE}"), lambda: self.inv_poison([t], t + 1), sleep=2, lds=True, tail=True)
    def jitter(self, bit, m, v):
        if not (self.jit >> bit) & 1: return
        L = self.a.label("L_jit")
        self.a(f"s_and_b32 s11, s2, {m}\ns_cmp_lg_u32 s11, {v}\ns_cbranch_scc1 {L}")
        for k in range(10): self.a("s_sleep 127")
        self.a(f"{L}:")
    def yrow(self, dst, g, tmp):
        self.a(f"s_mul_i32 s{tmp}, s{g}, 11\ns_lshr_b32 s{tmp}, s{tmp}, 5\ns_mul_i32 s{tmp}, s{tmp}, 8704\ns_mul_i32 s{dst}, s{g}, 2560\ns_add_u32 s{dst}, s{dst}, s{tmp}\ns_add_u32 s{dst}, s{dst}, {YB}")
    def mask(self, m):
        self.a(f"s_and_b32 exec_lo, s{sFULL}, {hex(m & 0xffffffff)}\ns_and_b32 exec_hi, s{sFULL}, {hex(m >> 32)}")
    def unmask(self): self.a(f"s_mov_b64 exec, {FULL}")
    def barrier(self):
        L = self.a.label("L_nb")
        self.a(f"s_waitcnt lgkmcnt(0)\ns_cbranch_execz {L}\ns_barrier\n{L}:")
    def mem(self, txt):
        L = self.a.label("L_nm")
        self.a(f"s_cbranch_execz {L}\n{txt}\n{L}:")
    def preperm4(self, W, npairs, free, before=None, after=None):
        a = self.a
        PP = []
        for p in range(npairs):
            if before: before(p)
            P = []
            for d in range(2):
                E, O = W + 4 * p + d, W + 4 * p + 2 + d
                a(f"v_perm_b32 v{free}, v{O}, v{E}, s{sPERMLO}\nv_perm_b32 v{O}, v{O}, v{E}, s{sPERMHI}")
                P += [free, O]; free = E
            PP.append(P)
            if after: after(p, P)
        return PP
    def reduce4(self, acc):
        a = self.a
        a(f"v_permlane32_swap_b32 v{acc[0]}, v{acc[2]}\nv_permlane32_swap_b32 v{acc[1]}, v{acc[3]}")
        a(f"v_add_f32 v{acc[0]}, v{acc[0]}, v{acc[2]}\nv_add_f32 v{acc[1]}, v{acc[1]}, v{acc[3]}")
        a(f"v_permlane16_swap_b32 v{acc[0]}, v{acc[1]}\nv_add_f32 v{acc[0]}, v{acc[0]}, v{acc[1]}")
    def sum_parts(self, G, VA, st):
        a = self.a
        for k in range(4):
            if st == 256: a(f"ds_read2st64_b32 {vr(G+2*k,2)}, v{VA} offset0:{2*k} offset1:{2*k+1}")
            else: a(f"ds_read2_b32 {vr(G+2*k,2)}, v{VA} offset0:{2*k*st//4} offset1:{(2*k+1)*st//4}")
        for k in range(4):
            a(f"s_waitcnt lgkmcnt({0 if self.stamps else 3-k})\nv_add_f32 v{G+2*k}, v{G+2*k}, v{G+2*k+1}")
            if k % 2: a(f"v_add_f32 v{G+2*k-2}, v{G+2*k-2}, v{G+2*k}")
        a(f"v_add_f32 v{G}, v{G}, v{G+4}")
    def unpack(self, lo, hi, src):
        self.a(f"v_lshlrev_b32 v{lo}, 16, v{src}\nv_and_b32 v{hi}, s{sHIMASK}, v{src}")

    def tail(self):
        a = self.a
        GW = self.GW
        TL, LN, N16, T, ACC, G, FREE, W = 1, 2, 3, 4, 20, 28, 92, WREG
        VP, VR_ = T + 12, T + 13
        a("L_tail:")
        self.jitter(4, 15, 2)
        self.stamp(5)
        a(f"s_cmp_eq_u32 s{sTY}, 0\ns_cbranch_scc1 L_fin")
        a(f"v_subrev_u32 v{TL}, 256, v0\nv_and_b32 v{LN}, 63, v0\nv_and_b32 v{N16}, 15, v0")
        for j in range(8): a(f"v_mov_b32 v{ACC+j}, 0")
        sSEL = 9
        a(f"v_mov_b32 v{G+52}, v30")
        self.poll(lambda: a(f"ds_read_b32 v{T+3}, v{ACC} offset:{SEL}"), lambda: self.inv_poison([T + 3], T + 4), sleep=2, lds=True, tail=True)
        a(f"v_readfirstlane_b32 s{sSEL}, v{T+3}\ns_and_b32 s{sSEL}, s{sSEL}, 8192")
        if self.gdone: a(f"s_cmp_eq_u32 s{sTY}, 2\ns_cbranch_scc1 L_nodone")
        if self.dnd: a(f"s_cmp_eq_u32 s{sTY}, 3\ns_cbranch_scc1 L_dn")
        self.done_wait(T + 3, ACC)
        a("L_nodone:")
        a(f"s_cmp_eq_u32 s{sTY}, 3\ns_cbranch_scc1 L_dn")
        a(f"v_lshrrev_b32 v{VP}, 4, v{LN}\nv_lshl_add_u32 v{VP}, v{N16}, 2, v{VP}\ns_lshl_b32 s11, s{sTW}, 8\ns_add_u32 s11, s11, {PW}")
        a(f"v_lshl_add_u32 v{VP}, v{VP}, 2, s11\nv_lshlrev_b32 v{VR_}, 2, v{LN}\nv_add_u32 v{T+14}, {PW}, v{VR_}")
        a(f"s_cmp_eq_u32 s{sTY}, 2\ns_cbranch_scc1 L_gu")
        NP = 4096 // GW // 64; NS = NP // 2; HPT = 32 // GW
        lg = NP.bit_length() - 1
        steps = [self.R4, self.R8] if NP == 4 else [self.R8]
        ML, F = G + 16, T + 4
        a(f"s_lshr_b32 s12, s{sTW}, {3 - (HPT.bit_length() - 1)}\ns_mul_i32 s13, s{sRB}, {HPT}\ns_add_u32 s12, s12, s13\ns_mul_i32 s12, s12, {8*REC}\ns_add_u32 s12, s12, {OA}")
        self.yrow(15, sRB, 13)
        a(f"s_lshl_b32 s13, s{sRA}, 8\ns_add_u32 s15, s15, s13\ns_add_u32 s15, s15, s{sSEL}")
        a(f"v_lshrrev_b32 v{T+1}, {lg}, v{N16}\nv_mul_u32_u24 v{T+1}, {NS*REC}, v{T+1}")
        a(f"v_bfe_u32 v{T}, v{TL}, 4, {(32 // HPT).bit_length() - 1}\nv_lshlrev_b32 v{T}, {lg+3}, v{T}\nv_and_b32 v{T+2}, {NP-1}, v{N16}")
        a(f"v_lshl_add_u32 v{T}, v{T+2}, 3, v{T}\nv_add_u32 v{T}, v{T}, v{T+1}")
        PW_ = []
        def loads_oa():
            for k in range(NS): a(f"buffer_load_dwordx2 {vr(G+2*k,2)}, v{T}, {srd(SW)}, s12 offen offset:{REC*k} sc1")
        def loads():
            for k in range(NS): a(f"buffer_load_dwordx2 {vr(ML+2*k,2)}, v{T+1}, {srd(SW)}, s12 offen offset:{512+REC*k} sc1")
            loads_oa()
        self.poll_pre(loads, 2 * NS, lambda: PW_.extend(self.preperm4(W, NP, FREE)), lambda: self.inv_poison(range(ML, ML + 2 * NS), T + 2), sleep=2)
        a(f"v_max_f32 v{T+2}, v{ML}, v{ML+2}")
        if NS == 4: a(f"v_max3_f32 v{T+2}, v{T+2}, v{ML+4}, v{ML+6}")
        self.dpp_red("v_max_f32", [T + 2], steps)
        for k in range(NS): a(f"v_sub_f32 v{F+k}, v{ML+2*k}, v{T+2}")
        for k in range(NS): a(f"v_mul_f32 v{F+k}, {LOG2E}, v{F+k}")
        for k in range(NS): a(f"v_exp_f32 v{F+k}, v{F+k}")
        a(f"v_mul_f32 v{T+2}, v{F}, v{ML+1}")
        for k in range(1, NS): a(f"v_fmac_f32 v{T+2}, v{F+k}, v{ML+2*k+1}")
        self.dpp_red("v_add_f32", [T + 2], steps)
        a(f"v_rcp_f32 v{T+2}, v{T+2}")
        for k in range(NS): a(f"v_mul_f32 v{F+k}, v{F+k}, v{T+2}")
        self.inv_poison(range(G, G + 2 * NS), T + 2)
        a("s_cbranch_vccz L_oa_ok")
        self.poll(loads_oa, lambda: self.inv_poison(range(G, G + 2 * NS), T + 2), sleep=self.ps, tail=True)
        a("L_oa_ok:")
        self.stamp(8)
        a(f"v_mul_f32 v{T+2}, v{F}, v{G}\nv_mul_f32 v{T+3}, v{F}, v{G+1}")
        for k in range(1, NS): a(f"v_fmac_f32 v{T+2}, v{F+k}, v{G+2*k}\nv_fmac_f32 v{T+3}, v{F+k}, v{G+2*k+1}")
        self.dpp_red("v_add_f32", [T + 2, T + 3], steps)
        a(f"v_cvt_pk_bf16_f32 v{T+2}, v{T+2}, v{T+3}")
        for p in range(NP):
            for j in range(4): a(f"v_dot2c_f32_bf16_dpp v{ACC+j}, v{T+2}, v{PW_[p][j]} row_newbcast:{p} row_mask:0xf bank_mask:0xf")
        self.reduce4(list(range(ACC, ACC + 4)))
        a(f"ds_write_b32 v{VP}, v{ACC}")
        self.barrier()
        a(f"s_cmp_lg_u32 s{sTW}, 0\ns_cbranch_scc1 L_fin")
        self.sum_parts(G, T + 14, 256)
        a(f"v_min_u32 v{G}, 0xfffffffe, v{G}")
        self.mem(f"buffer_store_dword v{G}, v{VR_}, {srd(SW)}, s15 offen sc1")
        self.stamp(9)
        a("s_branch L_fin")
        a("L_gu:")
        GA, SBv, CB1, XV, S1, S2 = T + 2, T + 4, T + 6, T + 8, T + 10, T + 11
        U = G + 40
        a(f"v_lshrrev_b32 v{T}, 4, v{TL}\nv_mul_u32_u24 v{T}, 10, v{T}\nv_add_u32 v{T}, v{T}, v{N16}\nv_lshlrev_b32 v{T+1}, 2, v{T}\nv_lshlrev_b32 v{T}, 3, v{T}")
        a(f"v_mov_b32 v{S1}, 0\nv_mov_b32 v{S2}, 0")
        a(f"v_and_b32 v{U+4}, 32, v{LN}\ns_lshl_b32 s11, s{sTW}, 2\nv_add_u32 v{U+4}, s11, v{U+4}\nv_lshlrev_b32 v{U+5}, 2, v{N16}")
        a(f"s_lshl_b32 s15, s{sRA}, 7\ns_add_u32 s15, s15, {GUP}\ns_mov_b32 s12, {MG}")
        a(f"v_mov_b32 v{U+6}, {f32(1/640)}")
        PG_ = []
        self.mask(0x03ff03ff03ff03ff)
        for k in range(4): a(f"ds_read_b32 v{G+k}, v{T+1} offset:{MGL+1280*k}")
        a("s_waitcnt lgkmcnt(0)")
        for dst, s in ((GA, G), (SBv, G + 1), (CB1, G + 2), (XV, G + 3)): self.unpack(dst, dst + 1, s)
        a(f"v_add_f32 v{CB1}, 1.0, v{CB1}\nv_add_f32 v{CB1+1}, 1.0, v{CB1+1}\nv_cvt_pk_bf16_f32 v{U}, v{CB1}, v{CB1+1}")
        self.unpack(CB1, CB1 + 1, U)
        if self.lin:
            a(f"v_mov_b32 v{U+14}, v{U}\nv_mov_b32 v{U+15}, v{G+1}\nv_add_f32 v{S1}, v{XV}, v{XV+1}")
            self.unmask()
            self.dpp_red("v_add_f32", [S1], [self.X1, self.X2, self.R4, self.R8])
            self.allred_rows("v_add_f32", [S1], [S2])
            a(f"v_mul_f32 v{U+13}, {f32(1/80)}, v{S1}")
            a(f"v_mul_f32 v{U+16}, v{U+13}, v{CB1}\nv_mul_f32 v{U+17}, v{U+13}, v{CB1+1}")
            a(f"v_mov_b32 v{S1}, 0\nv_mov_b32 v{S2}, 0")
        assert GW == 8
        self.unmask()
        self.yrow(14, sTW, 13)
        a(f"s_add_u32 s14, s14, s{sSEL}\ns_add_u32 s15, s15, s{sSEL}")
        a(f"v_lshlrev_b32 v{U+7}, 4, v{LN}\ns_mul_i32 s13, s{sTW}, 2560\ns_add_u32 s13, s13, {VL}")
        a(f"v_add_u32 v{U+8}, s13, v{U+7}\nv_add_u32 v{T}, {VL}, v{T}")
        a(f"v_mov_b32 v{U+9}, 0x7fffffff\nv_cmp_gt_u32 vcc, 32, v{LN}\nv_cndmask_b32 v{U+9}, v{U+9}, v{U+7}, vcc")
        def loads():
            a(f"buffer_load_dwordx4 {vr(G,4)}, v{U+7}, {srd(SW)}, s14 offen sc1")
            a(f"buffer_load_dwordx4 {vr(G+4,4)}, v{U+7}, {srd(SW)}, s14 offen offset:1024 sc1")
            a(f"buffer_load_dwordx4 {vr(G+8,4)}, v{U+9}, {srd(SW)}, s14 offen offset:2048 sc1")
        if self.gdone:
            self.done_wait(U + 10, ACC)
            a(f"s_cbranch_execz L_wdone")
            self.wissued = 0; self.wmax = 20
            self.wloads(20, U + 12)
            a("L_wdone:")
        CBP, SBP, MC, AS, BS = U + 14, U + 15, U + 16, U + 18, U + 19
        def pre():
            X = G + 16
            for j in range(4): a(f"v_mov_b32 v{X+j}, 0")
            def after(p, P):
                if not self.lin: return
                for j in range(4): a(f"v_dot2c_f32_bf16_dpp v{X+j}, v{CBP}, v{P[j]} row_newbcast:{p} row_mask:0xf bank_mask:0xf")
                for j in range(4): a(f"v_dot2c_f32_bf16_dpp v{ACC+4+j}, v{SBP}, v{P[j]} row_newbcast:{p} row_mask:0xf bank_mask:0xf")
            PG_.extend(self.preperm4(W, 10, FREE, before=lambda p: a(f"s_waitcnt vmcnt({3 + 18 - 2*p})"), after=after))
            if not self.lin: return
            for j in range(4): a(f"v_mul_f32 v{ACC+j}, v{U+13}, v{X+j}")
            self.reduce4(list(range(X, X + 4))); self.reduce4(list(range(ACC + 4, ACC + 8)))
            a(f"ds_write_b32 v{VP}, v{X} offset:2048\nds_write_b32 v{VP}, v{ACC+4} offset:4096")
            self.barrier()
            a(f"v_add_u32 v{X+8}, 2048, v{T+14}\nv_add_u32 v{X+9}, 4096, v{T+14}")
            self.sum_parts(X, X + 8, 256); a(f"v_mov_b32 v{AS}, v{X}")
            self.sum_parts(X, X + 9, 256); a(f"v_mov_b32 v{BS}, v{X}")
        self.poll_pre(loads, 3, pre, lambda: self.inv_poison(range(G, G + 12), U), sleep=self.ps, prog=True)
        a(f"ds_write_b128 v{U+8}, {vr(G,4)}\nds_write_b128 v{U+8}, {vr(G+4,4)} offset:1024")
        self.mask(0xffffffff)
        a(f"ds_write_b128 v{U+8}, {vr(G+8,4)} offset:2048")
        self.unmask()
        self.barrier()
        self.stamp(2)
        self.mask(0x03ff03ff03ff03ff)
        for k in range(4): a(f"ds_read2st64_b64 {vr(G+4*k,4)}, v{T} offset0:{10*k} offset1:{10*k+5}")
        for k in range(4):
            a(f"s_waitcnt lgkmcnt({0 if self.stamps else 3-k})\nv_pk_add_f32 {vr(G+4*k,2)}, {vr(G+4*k,2)}, {vr(G+4*k+2,2)}")
            if k % 2: a(f"v_pk_add_f32 {vr(G+4*k-4,2)}, {vr(G+4*k-4,2)}, {vr(G+4*k,2)}")
        a(f"v_pk_add_f32 {vr(G,2)}, {vr(G,2)}, {vr(G+8,2)}")
        def rb2():
            a(f"v_cvt_pk_bf16_f32 v{U}, v{G}, v{G+1}"); self.unpack(G, G + 1, U)
        rb2()
        a(f"v_pk_mul_f32 {vr(G,2)}, {vr(G,2)}, {vr(GA,2)}"); rb2()
        a(f"v_pk_add_f32 {vr(G,2)}, {vr(G,2)}, {vr(XV,2)}"); rb2()
        if self.lin:
            a(f"v_pk_fma_f32 {vr(G+2,2)}, {vr(G,2)}, {vr(CB1,2)}, {vr(MC,2)} neg_lo:[0,0,1] neg_hi:[0,0,1]")
            a(f"v_add_f32 v{S1}, v{G}, v{G+1}\nv_cvt_pk_bf16_f32 v{U}, v{G+2}, v{G+3}\nv_mul_f32 v{S2}, v{G}, v{G}\nv_fmac_f32 v{S2}, v{G+1}, v{G+1}")
            self.unmask()
            side = [f"v_permlane32_swap_b32 v{S1}, v{S2}", f"v_add_f32 v{S1}, v{S1}, v{S2}", f"v_mov_b32 v{S2}, v{S1}", f"v_permlane16_swap_b32 v{S2}, v{S1}",
                    f"v_add_f32 v{S1}, v{S1}, v{S2}"] + [f"v_add_f32_dpp v{S1}, v{S1}, v{S1} {s} row_mask:0xf bank_mask:0xf" for s in (self.R8, self.R4, self.X2, self.X1)] + \
                   [f"ds_write_b32 v{U+4}, v{S1} offset:{STL}"]
            for p in range(10):
                for j in range(4): a(f"v_dot2c_f32_bf16_dpp v{ACC+j}, v{U}, v{PG_[p][j]} row_newbcast:{p} row_mask:0xf bank_mask:0xf")
                a(side[p])
            self.reduce4(list(range(ACC, ACC + 4)))
            a(f"ds_write_b32 v{VP}, v{ACC}")
            a(f"v_lshlrev_b32 v{T}, 1, v{LN}")
            self.barrier()
            a(f"s_cmp_lg_u32 s{sTW}, 0\ns_cbranch_scc1 L_fin")
            a(f"ds_read_b32 v{U+1}, v{U+5} offset:{STL}")
            for k in range(4): a(f"ds_read2st64_b32 {vr(G+2*k,2)}, v{T+14} offset0:{2*k} offset1:{2*k+1}")
            a(f"s_waitcnt lgkmcnt({0 if self.stamps else 4})")
            a(f"v_add_f32_dpp v{U+1}, v{U+1}, v{U+1} {self.X1} row_mask:0xf bank_mask:0xf")
            a(f"s_waitcnt lgkmcnt(2)\nv_add_f32 v{G}, v{G}, v{G+1}")
            a(f"v_add_f32_dpp v{U+1}, v{U+1}, v{U+1} {self.X2} row_mask:0xf bank_mask:0xf")
            a(f"v_add_f32 v{G+2}, v{G+2}, v{G+3}\ns_waitcnt lgkmcnt(0)")
            a(f"v_add_f32_dpp v{U+1}, v{U+1}, v{U+1} {self.HM} row_mask:0xf bank_mask:0xf")
            a(f"v_add_f32 v{G+4}, v{G+4}, v{G+5}\nv_add_f32 v{G+6}, v{G+6}, v{G+7}")
            a(f"v_mul_f32_dpp v{S1}, v{U+1}, v{U+6} row_newbcast:0 row_mask:0xf bank_mask:0xf")
            a(f"v_mul_f32_dpp v{S2}, v{U+1}, v{U+6} row_newbcast:8 row_mask:0xf bank_mask:0xf")
            a(f"v_fma_f32 v{S2}, -v{S1}, v{S1}, v{S2}\nv_max_f32 v{S2}, 0, v{S2}")
            a(f"v_cvt_pk_bf16_f32 v{U}, v{S1}, v{S2}")
            a(f"v_and_b32 v{S2}, s{sHIMASK}, v{U}\nv_lshlrev_b32 v{S1}, 16, v{U}")
            a(f"v_add_f32 v{S2}, {f32(1e-5)}, v{S2}")
            a(f"v_cvt_pk_bf16_f32 v{S2}, v{S2}, v{S2}\nv_and_b32 v{S2}, s{sHIMASK}, v{S2}")
            a(f"v_sqrt_f32 v{S2}, v{S2}\nv_add_f32 v{G}, v{G}, v{G+2}")
            a(f"v_cvt_pk_bf16_f32 v{S2}, v{S2}, v{S2}\nv_add_f32 v{G+4}, v{G+4}, v{G+6}\nv_and_b32 v{S2}, s{sHIMASK}, v{S2}")
            a(f"v_rcp_f32 v{S2}, v{S2}\nv_add_f32 v{G}, v{G}, v{G+4}")
            a(f"v_fma_f32 v{G}, -v{S1}, v{AS}, v{G}\nv_fma_f32 v{G}, v{G}, v{S2}, v{BS}")
        else:
            a(f"v_add_f32 v{S1}, v{G}, v{G+1}\nv_mul_f32 v{S2}, v{G}, v{G}\nv_fmac_f32 v{S2}, v{G+1}, v{G+1}")
            self.unmask()
            a(f"v_permlane32_swap_b32 v{S1}, v{S2}\nv_add_f32 v{S1}, v{S1}, v{S2}")
            a(f"v_mov_b32 v{S2}, v{S1}\nv_permlane16_swap_b32 v{S2}, v{S1}\nv_add_f32 v{S1}, v{S1}, v{S2}")
            self.dpp_red("v_add_f32", [S1], [self.R8, self.R4, self.X2, self.X1])
            self.mask(0x0000000100000001)
            a(f"ds_write_b32 v{U+4}, v{S1} offset:{STL}")
            self.unmask()
            self.barrier()
            a(f"ds_read_b32 v{U+1}, v{U+5} offset:{STL}\ns_waitcnt lgkmcnt(0)")
            self.dpp_red("v_add_f32", [U + 1], [self.X1, self.X2, self.HM])
            a(f"v_mul_f32_dpp v{S1}, v{U+1}, v{U+6} row_newbcast:0 row_mask:0xf bank_mask:0xf")
            a(f"v_mul_f32_dpp v{S2}, v{U+1}, v{U+6} row_newbcast:8 row_mask:0xf bank_mask:0xf")
            a(f"v_fma_f32 v{S2}, -v{S1}, v{S1}, v{S2}\nv_max_f32 v{S2}, 0, v{S2}")
            a(f"v_cvt_pk_bf16_f32 v{U}, v{S1}, v{S2}")
            a(f"v_and_b32 v{S2}, s{sHIMASK}, v{U}\nv_lshlrev_b32 v{S1}, 16, v{U}")
            a(f"v_add_f32 v{S2}, {f32(1e-5)}, v{S2}\nv_sub_f32 v{G}, v{G}, v{S1}")
            a(f"v_cvt_pk_bf16_f32 v{S2}, v{S2}, v{S2}\nv_sub_f32 v{G+1}, v{G+1}, v{S1}\nv_and_b32 v{S2}, s{sHIMASK}, v{S2}")
            a(f"v_sqrt_f32 v{S2}, v{S2}\nv_cvt_pk_bf16_f32 v{U}, v{G}, v{G+1}")
            a(f"v_cvt_pk_bf16_f32 v{S2}, v{S2}, v{S2}\nv_lshlrev_b32 v{G}, 16, v{U}\nv_and_b32 v{S2}, s{sHIMASK}, v{S2}")
            a(f"v_rcp_f32 v{S2}, v{S2}\nv_and_b32 v{G+1}, s{sHIMASK}, v{U}")
            a(f"v_mul_f32 v{G}, v{G}, v{S2}\nv_mul_f32 v{G+1}, v{G+1}, v{S2}"); rb2()
            a(f"v_pk_mul_f32 {vr(G,2)}, {vr(G,2)}, {vr(CB1,2)}"); rb2()
            a(f"v_pk_add_f32 {vr(G,2)}, {vr(G,2)}, {vr(SBv,2)}")
            a(f"v_cvt_pk_bf16_f32 v{U}, v{G}, v{G+1}")
            for p in range(10):
                for j in range(4): a(f"v_dot2c_f32_bf16_dpp v{ACC+j}, v{U}, v{PG_[p][j]} row_newbcast:{p} row_mask:0xf bank_mask:0xf")
            self.reduce4(list(range(ACC, ACC + 4)))
            a(f"ds_write_b32 v{VP}, v{ACC}")
            a(f"v_lshlrev_b32 v{T}, 1, v{LN}")
            self.barrier()
            a(f"s_cmp_lg_u32 s{sTW}, 0\ns_cbranch_scc1 L_fin")
            self.sum_parts(G, T + 14, 256)
        a(f"s_cmp_ge_u32 s{sRA}, 27\ns_cbranch_scc1 L_gu_up")
        self.rbf(G, G)
        self.silu(G, G, G + 1)
        a("L_gu_up:")
        a(f"v_mov_b32_dpp v{G+1}, v{G} {self.X1} row_mask:0xf bank_mask:0xf")
        a(f"v_cvt_pk_bf16_f32 v{G}, v{G}, v{G+1}\nv_min_u32 v{G}, 0xfffffffe, v{G}")
        self.mask(0x5555555555555555)
        self.mem(f"buffer_store_dword v{G}, v{T}, {srd(SW)}, s15 offen sc1")
        self.stamp(3)
        a("s_branch L_fin")
        a("L_dn:")
        GA, GB, XV, R = T + 8, T + 9, T + 10, T + 11
        self.mksrd(SA, P_WD, 0 if self.dbg & 1024 else 1728 * 1280)
        a(f"s_lshl_b32 s12, s{sRA}, 5\ns_add_u32 s13, s12, 5120")
        a(f"v_lshrrev_b32 v{T}, 1, v{TL}\nv_mul_u32_u24 v{T}, {8*1280}, v{T}\nv_and_b32 v{T+1}, 1, v{TL}\nv_lshl_add_u32 v{T}, v{T+1}, 4, v{T}")
        i0_ = self.din if self.dback >= 0 else 0
        if i0_ < 8: self.mem("\n".join(f"buffer_load_dwordx4 {vr(W+4*i,4)}, v{T}, {srd(SA)}, s{12+i//4} offen offset:{1280*(i%4)}{self.dpol}" for i in range(i0_, 8)))
        a(f"v_lshrrev_b32 v{VP}, 3, v{LN}\nv_lshl_add_u32 v{VP}, v{T+1}, 3, v{VP}\ns_lshl_b32 s11, s{sTW}, 6\ns_add_u32 s11, s11, {PW}")
        a(f"v_lshl_add_u32 v{VP}, v{VP}, 2, s11\nv_lshlrev_b32 v{VR_}, 2, v{LN}\nv_add_u32 v{VR_}, {PW}, v{VR_}")
        a(f"s_cmp_lg_u32 s{sTW}, 0\ns_cbranch_scc1 L_dn_x1done")
        self.mksrd(SB, P_X, 1280)
        a(f"v_lshrrev_b32 v{T}, 1, v{N16}\nv_lshlrev_b32 v{T}, 2, v{T}")
        a(f"s_add_u32 s13, s12, {MG}\ns_lshl_b32 s15, s{sRA}, 6\ns_add_u32 s15, s15, {YB}\ns_add_u32 s15, s15, s{sSEL}")
        self.mem(f"buffer_load_dword v{G+2}, v{T}, {srd(SB)}, s12 offen")
        def loads():
            a(f"buffer_load_dword v{G}, v{T}, {srd(SW)}, s13 offen sc1")
            a(f"buffer_load_dword v{G+1}, v{T}, {srd(SW)}, s13 offen offset:{3*1280} sc1")
        self.poll(loads, lambda: self.inv_poison([G, G + 1], T + 4), sleep=8, tail=True)
        a(f"v_cmp_eq_u32 vcc, 1, v{T+1}")
        for dst, s in ((GA, G), (GB, G + 1), (XV, G + 2)):
            self.unpack(T + 2, T + 3, s); a(f"v_cndmask_b32 v{dst}, v{T+2}, v{T+3}, vcc")
        for k in range(2):
            a(f"v_lshrrev_b32 v{T+2}, 4, v{LN}\nv_add_u32 v{T+2}, {4*k}, v{T+2}\nv_mul_u32_u24 v{T+3}, 11, v{T+2}\nv_lshrrev_b32 v{T+3}, 5, v{T+3}")
            a(f"v_mul_u32_u24 v{T+3}, 8704, v{T+3}\nv_mul_u32_u24 v{T+2}, 2560, v{T+2}\nv_add_u32 v{T+2}, v{T+2}, v{T+3}\nv_lshl_add_u32 v{T+6+k}, v{N16}, 2, v{T+2}")
        def loads():
            for k in range(2): a(f"buffer_load_dword v{G+k}, v{T+6+k}, {srd(SW)}, s15 offen sc1")
        self.poll(loads, lambda: self.inv_poison(range(G, G + 2), T + 2), sleep=2, tail=True)
        for k in range(1, GW // 4): a(f"v_add_f32 v{G}, v{G}, v{G+k}")
        self.allred_rows("v_add_f32", [G], [T])
        self.rbf(G, G)
        a(f"v_mul_f32 v{G}, v{GA}, v{G}")
        self.rbf(G, G)
        a(f"v_add_f32 v{XV}, v{XV}, v{G}")
        self.rbf(XV, XV)
        a(f"s_cmp_lg_u32 s{sRA}, 0\ns_cbranch_scc1 L_dn_x1done")
        a(f"s_mul_i32 s{sT}, s{sT}, 1664525\ns_add_u32 s{sT}, s{sT}, 1013904223")
        self.mask(1)
        a(f"v_mov_b32 v{G+1}, s{sT}\nv_mov_b32 v{T}, 0")
        self.mem(f"buffer_store_dword v{G+1}, v{T}, {srd(SW)}, 0 offen sc1")
        self.unmask()
        a("L_dn_x1done:")
        self.mksrd(SB, P_OUT, 1280)
        PD_ = []
        for i in range(4): a(f"v_mov_b32 v{G+i}, 0")
        a(f"v_lshlrev_b32 v{T}, 3, v{TL}\ns_add_u32 s13, s{sSEL}, {GUP}\nv_lshlrev_b32 v{T+5}, 1, v{LN}")
        def loads():
            a(f"buffer_load_dwordx2 {vr(G,2)}, v{T}, {srd(SW)}, s13 offen sc1")
            a(f"buffer_load_dwordx2 {vr(G+2,2)}, v{T}, {srd(SW)}, s13 offen offset:3456 sc1")
        self.poll_pre(loads, 2, lambda: PD_.extend(self.preperm(W, 4, FREE)), lambda: self.inv_poison(range(G, G + 4), T + 2), sleep=self.ps,
                      narrow=lambda: a(f"v_cmp_gt_u32 vcc, 432, v{TL}\ns_mov_b64 exec, vcc"))
        self.stamp(10)
        for i in range(4): self.unpack(G + 4 + 2 * i, G + 5 + 2 * i, G + i)
        a(f"v_pk_mul_f32 {vr(G+4,2)}, {vr(G+4,2)}, {vr(G+8,2)}\nv_pk_mul_f32 {vr(G+6,2)}, {vr(G+6,2)}, {vr(G+10,2)}")
        a(f"v_cvt_pk_bf16_f32 v{G}, v{G+4}, v{G+5}\nv_cvt_pk_bf16_f32 v{G+1}, v{G+6}, v{G+7}")
        for p in range(4):
            qp = "quad_perm:[0,0,2,2]" if p < 2 else "quad_perm:[1,1,3,3]"
            for j in range(8): a(f"v_dot2c_f32_bf16_dpp v{ACC+j}, v{G+p%2}, v{PD_[p][j]} {qp} row_mask:0xf bank_mask:0xf")
        self.reduce8(list(range(ACC, ACC + 8)), R)
        a(f"v_add_f32_dpp v{R}, v{R}, v{R} row_shl:4 row_mask:0xf bank_mask:0x5")
        self.dpp_red("v_add_f32", [R], [self.X2])
        self.mask(0x0303030303030303)
        a(f"ds_write_b32 v{VP}, v{R}")
        self.unmask()
        self.barrier()
        a(f"s_cmp_lg_u32 s{sTW}, 0\ns_cbranch_scc1 L_fin")
        self.mask(0xffff)
        self.sum_parts(G, VR_, 64)
        self.rbf(G, G)
        a(f"v_mul_f32 v{G}, v{GB}, v{G}")
        self.rbf(G, G)
        a(f"v_add_f32 v{G}, v{XV}, v{G}\nv_cvt_pk_bf16_f32 v{G}, v{G}, v{G}")
        self.mem(f"buffer_store_short v{G}, v{T+5}, {srd(SB)}, s12 offen{self.opol}")
        a("L_fin:")
        if self.dry: a("s_cbranch_execz L_dry_ret")
        if self.stamps:
            self.stamp(11)
            a(f"s_cmp_lg_u32 s{sTW}, 0\ns_cbranch_scc1 L_end")
            self.store_stamps((2, 3, 4, 5, 8, 9, 10, 11), 0)
        a("L_end:")
        a("s_endpgm")

    def build(self):
        a = self.a
        for l in HEADER.strip("\n").split("\n"): a.raw("; " + l if l else ";")
        a.raw(f"; @launch grid=(256,1,1) block=(768,1,1) lds={VL + 8 * 1024 * self.NL}")
        a.raw('.amdgcn_target "amdgcn-amd-amdhsa--gfx950"')
        a.raw(f".text\n.globl {NAME}_kernel\n.p2align 8\n.type {NAME}_kernel,@function\n{NAME}_kernel:")
        if self.stamps:
            for i in range(2, 24): a(f"s_mov_b32 s{STAMP0+i}, 0")
        self.stamp(0)
        VO, Q, MK, A0, D, T, S, RING = 1, 2, 6, 10, 18, 22, 31, 40
        a("s_load_dwordx16 s[16:31], s[0:1], 0\ns_load_dwordx8 s[32:39], s[0:1], 64\ns_load_dwordx2 s[42:43], s[0:1], 104")
        a(f"v_lshrrev_b32 v2, 6, v0\nv_and_b32 v1, 63, v0\nv_readfirstlane_b32 s{sWAVE}, v2")
        a("s_cmp_ge_u32 s2, 256\ns_cbranch_scc1 L_end")
        self.jitter(0, 63, 37)
        if self.amap == 1: a(f"s_and_b32 s{sCI}, s2, 7\ns_lshl_b32 s{sCI}, s{sCI}, 5\ns_lshr_b32 s11, s2, 3\ns_or_b32 s{sCI}, s{sCI}, s11")
        elif self.amap == 2:
            a(f"s_bfe_u32 s{sCI}, s2, 0x20001\ns_lshl_b32 s{sCI}, s{sCI}, 6\ns_lshr_b32 s11, s2, 5\ns_lshl_b32 s11, s11, 3\ns_or_b32 s{sCI}, s{sCI}, s11")
            a(f"s_and_b32 s11, s2, 1\ns_lshl_b32 s11, s11, 2\ns_or_b32 s{sCI}, s{sCI}, s11\ns_bfe_u32 s11, s2, 0x20003\ns_or_b32 s{sCI}, s{sCI}, s11")
        else: a(f"s_mov_b32 s{sCI}, s2")
        a(f"s_cmp_lt_u32 s{sWAVE}, 4\ns_cbranch_scc1 {'L_help0' if self.eb else 'L_help'}")
        a(f"s_sub_u32 s10, s{sWAVE}, 4\ns_lshl_b32 s9, s{sCI}, 18\ns_lshl_b32 s14, s10, 12\nv_lshl_add_u32 v{VO}, v1, 4, s9")
        if self.gx == 1: a("s_and_b32 s11, s2, 7\ns_lshl_b32 s11, s11, 15\ns_or_b32 s14, s14, s11")
        if self.gx == 2: a("s_bfe_u32 s11, s2, 0x30003\ns_lshl_b32 s11, s11, 15\ns_or_b32 s14, s14, s11")
        if self.gx == 3: a("s_lshr_b32 s11, s2, 3\ns_add_u32 s11, s11, s2\ns_and_b32 s11, s11, 7\ns_lshl_b32 s11, s11, 15\ns_or_b32 s14, s14, s11")
        if self.gx == 4: a("s_lshl_b32 s11, s10, 15\ns_or_b32 s14, s14, s11")
        a(f"s_mov_b32 s{SA+2}, 0x4000000\ns_mov_b32 s{SA+3}, 0x20000")
        a("s_waitcnt lgkmcnt(0)")
        a(f"s_mov_b32 s{SA}, s{P_K}\ns_and_b32 s{SA+1}, s{P_K+1}, 0xffff")
        for t in range(4):
            if self.early == t: a("s_barrier")
            a(f"buffer_load_dwordx4 {vr(RING+4*t,4)}, v{VO}, {srd(SA)}, s14 offen offset:{t*1024} nt")
        if self.early == 4: a("s_barrier")
        if self.eb:
            a("s_branch L_b2")
            a("L_help0:")
            a("v_lshlrev_b32 v2, 1, v0\nv_mov_b32 v3, -1\nds_write_b16 v2, v3\ns_waitcnt lgkmcnt(0)\ns_barrier\ns_branch L_help")
            a("L_b2:")
        self.mksrd(SB, P_V, 0x4000000)
        a(f"s_xor_b32 s15, s14, 8192\ns_mul_i32 s13, s10, {1024*self.NL}\ns_add_u32 s13, s13, {VL}")
        self.common_setup()
        self.masks(MK, T)
        for i in range(4): a(f"v_mov_b32 v{D+i}, 0")
        a(f"v_lshlrev_b32 v{T+1}, 4, v{T+1}")
        a(f"v_and_b32 v{T+7}, 63, v0\nv_lshl_add_u32 v{T+7}, v{T+7}, 4, s13")
        if self.early == 5: a("s_barrier")
        self.bulk(); self.tail()
        a("L_help:")
        a(f"s_setprio 3\ns_and_b32 s{sX}, s2, 7\ns_lshr_b32 s{sR}, s2, 3")
        a(f"s_cmp_eq_u32 s{sWAVE}, 2\ns_cbranch_scc1 L_h2")
        a("s_waitcnt lgkmcnt(0)")
        self.common_setup()
        a(f"s_cmp_eq_u32 s{sWAVE}, 1\ns_cbranch_scc1 L_h1\ns_cmp_eq_u32 s{sWAVE}, 3\ns_cbranch_scc1 L_h3")
        self.h0(); self.h1(); self.h2(); self.h3()
        a.raw(".p2align 6\n.type role_tbl,@object\nrole_tbl:")
        t = role_table(self.roles, self.GW)
        for i in range(0, 256, 8): a.raw("    .long " + ", ".join("0x%08x" % v for v in t[i:i+8]))
        a.raw(".size role_tbl, 1024")
        if self.dynr:
            a.raw(".type ord_tbl,@object\nord_tbl:")
            t = order_table(self.omode, self.sh)
            for i in range(0, 256, 8): a.raw("    .long " + ", ".join("0x%08x" % v for v in t[i:i+8]))
            a.raw(".size ord_tbl, 1024")
        a.raw('.section .rodata,"a"\n.p2align 6')
        a.raw(f".amdhsa_kernel {NAME}_kernel")
        a.raw("  .amdhsa_next_free_vgpr 168\n  .amdhsa_next_free_sgpr 102\n  .amdhsa_accum_offset 168\n  .amdhsa_group_segment_fixed_size 0")
        a.raw("  .amdhsa_kernarg_size 112\n  .amdhsa_user_sgpr_count 2\n  .amdhsa_user_sgpr_kernarg_segment_ptr 1\n  .amdhsa_system_sgpr_workgroup_id_x 1")
        a.raw("  .amdhsa_float_denorm_mode_32 3")
        a.raw(".end_amdhsa_kernel")
        return a.text()

if __name__ == "__main__":
    for spec in sys.argv[1:]:
        name, _, kw = spec.partition(":")
        kw = dict((k, int(v)) for k, v in (p.split("=") for p in kw.split(",") if p))
        open(f"work/{name}.s", "w").write(Gen(**kw).build())
        import numpy as np
        np.save(f"work/{name}.roles.npy", np.array(role_table(kw.get("roles", 6), kw.get("GW", 8)), dtype=np.uint32))
```

```python
import sys, struct
from asmlib import Asm
NAME = "adaLN_cond__gqa_block_cached__swiglu_ffn__decode"

def f32(x): return "0x%08x" % struct.unpack("<I", struct.pack("<f", x))[0]
LOG2E = f32(1.4426950408889634)
NLOG2E = f32(-1.4426950408889634)
SCALE = f32(128 ** -0.5)

PZ, MP, QP = 0x4000, 0x40000, 0x80000
YB = PZ
GUP = PZ + 3 * 16384
OA = PZ + 4 * 16384; REC = 640
MG = OA + 256 * REC
SG = MG + 5120
RC = SG + 128
assert RC + 2048 <= PZ + 240 * 1024 and MG % 128 == 0
WS_BYTES = 0xC0000
PG1 = 416
QL, MLW, ISS, F0L, CNT, DONE, SEL, ROL, OW = 0, 256, 384, 344, 356, 360, 364, 368, 512
STL, PW = 4608, 4736
MGL = 10880
VL = 16000
sWAVE, sX, sR, sCI, sT, sBUD, sTW = 3, 4, 5, 6, 7, 8, 10
P_X, P_K, P_V, P_WQ, P_WO, P_WG, P_WU, P_WD, P_C, P_WM, P_OUT, P_WS = 16, 18, 20, 22, 24, 28, 30, 32, 34, 36, 38, 42
sROLE, sTY, sRA, sRB = 26, 27, 40, 41
SA, SB, SW, SC = 44, 48, 52, 56
sWOFF, sWSTR, sFULL = 60, 61, 62
sWGT = 64
sEX = 72
sPERMLO, sPERMHI, sHIMASK, sWJMP = 74, 75, 76, 77
STAMP0 = 78
FULL = f"s[{sFULL}:{sFULL+1}]"

def srd(n): return f"s[{n}:{n+3}]"
def vr(a, n): return f"v[{a}:{a+n-1}]"

def role_table(mode, GW):
    B = lambda x, r: 8 * r + x
    even = [B(x, r) for r in range(32) for x in (0, 2, 4, 6)]
    odd = [B(x, r) for r in range(32) for x in (1, 3, 5, 7)]
    wo = [(1, k, g) for g in range(GW) for k in range(10)]
    gu = [(2, k, 0) for k in range(54)]
    role = {}
    if mode == 0: order = list(range(256)); dnx = list(range(8))
    elif mode == 1: order = even + odd; dnx = [1, 3, 5, 7]
    elif mode == 2: order = even + odd; dnx = [1, 3, 5, 7]
    elif mode == 3: order = even + odd; dnx = [0, 2, 4, 6]
    elif mode == 4: order = even + odd; dnx = [0, 2, 4, 6]
    SPEC = {8: ((0, 2), (1, 3), ((0, 2), (4, 6))),
            9: ((1, 3), (0, 2), ((4, 6), (0, 2), (1, 3))),
            10: ((4, 6), (1, 3), ((0, 2), (4, 6))),
            11: ((1, 3), (4, 6), ((0, 2), (4, 6), (1, 3))),
            12: ((0, 2, 4, 6), (1, 3), ((0, 2, 4, 6),)),
            13: ((0, 1, 2, 3), (0, 1, 2, 3), ((4, 6), (0, 2), (1, 3))),
            14: ((0, 2), (1, 3, 5), ((4, 6), (0, 2))),
            15: ((5, 7), (1, 3), ((0, 2), (4, 6))),
            16: ((1, 3, 5, 7), (0, 2), ((4, 6), (0, 2), (1, 3)))}
    if mode in SPEC:
        dnx = list(SPEC[mode][0])
        A = lambda xs: [B(x, r) for r in range(32) for x in xs]
        for b, rl in zip(A(SPEC[mode][1]), gu): role[b] = rl
        gu = []
        order = sum([A(xs) for xs in SPEC[mode][2]], [])
    if mode == 30:
        dnx = list(range(8)); order = list(range(256))
    if mode == 6:
        dnx = [0, 2]
        A = lambda xs: [B(x, r) for r in range(32) for x in xs]
        for b, rl in zip(A((1, 3)), gu): role[b] = rl
        gu = []
        order = A((4, 6)) + A((0, 2)) + A((5, 7))
    if mode == 7:
        dnx = [4, 6]
        A = lambda xs: [B(x, r) for r in range(32) for x in xs]
        for b, rl in zip(A((5, 7)), gu): role[b] = rl
        gu = []
        order = A((0, 2)) + A((4, 6)) + A((1, 3))
    for k in range(40):
        x = dnx[(k // 4) % len(dnx)]; r = 31 - (k % 4) - 4 * ((k // 4) // len(dnx))
        role[B(x, r)] = (3, k, 0)
    free = [b for b in order if b not in role]
    for b, rl in zip(free, (wo + gu) if mode not in (2, 4) else (gu + wo)): role[b] = rl
    assert len(role) == 40 + 54 + 10 * GW
    mg = {B(k % 8, 30 + (k // 8) % 2) if k < 16 else B(k % 8, 29): k for k in range(20)}
    t = []
    for b in range(256):
        ty, a_, b_ = role.get(b, (0, 0, 0))
        t.append(ty | (a_ << 8) | (b_ << 16) | (mg.get(b, 255) << 24))
    return t

def order_table(omode, sh=1):
    wo = [(1, k, g) for g in range(8) for k in range(10)]
    gu = [(2, k, 0) for k in range(54)]; dn = [(3, k, 0) for k in range(40)]
    if omode == 0: s0, s1 = dn + gu, wo
    elif omode == 1: s0, s1 = gu + dn, wo
    elif omode == 2: s0, s1 = wo[:16] + dn + gu, wo[16:]
    elif omode == 3: s0, s1 = wo[:16] + gu + dn, wo[16:]
    elif omode == 5: s0, s1 = gu, wo
    elif omode == 6: s0, s1 = wo[:16] + gu, wo[16:]
    elif omode == 7: s0, s1 = wo[:8] + gu, wo[8:]
    elif omode == 8: s0, s1 = gu + wo[:10], wo[10:]
    elif omode == 13: s0, s1 = wo[:16] + [(0, 0, 0)] * 18 + gu, wo[16:]
    elif omode == 14: s0, s1 = wo[:34] + gu, wo[34:]
    elif omode == 15: s0, s1 = wo[:24] + gu, wo[24:]
    elif omode == 16: s0, s1 = wo[:24] + [(0, 0, 0)] * 10 + gu, wo[24:]
    elif omode == 17: s0, s1 = gu + wo[:24], wo[24:]
    elif omode == 18: s0, s1 = wo[:30] + gu, wo[30:]
    elif omode == 4:
        s0 = [x for p in zip(dn, gu) for x in p] + gu[40:]; s1 = wo
    t = []
    for s in (s0, s1):
        s = s + [(0, 0, 0)] * (128 - len(s))
        s = [x for k in range(sh) for x in s[k::sh]]
        t += [ty | (a << 8) | (b << 16) for ty, a, b in s]
    return t

HEADER = """
Fused adaLN + decode attention + SwiGLU FFN, ONE persistent launch (hand-written generator: work/gen8.py + asmlib.py).
256 workgroups (one per CU) x 12 waves: waves 4-11 stream K/V (1024 keys per workgroup), waves 0-3 are helpers.
 head : silu(c)@w_mod and h@wq as 80x128 K-split tiles (masked-A MFMA), exchanged through d_ws as {value,tag} granules;
        tag = LCG(epoch word found in d_ws), only used to tell this launch's hand-offs from an earlier launch's.
 main : QK via v_dot2 + DPP, per-wave true-max softmax, PV via masked-A MFMA; part of V is prefetched to LDS until q arrives.
 tail : split-softmax combine + wo, LayerNorm (folded into the GEMV) + gate/up, down + residual; hand-off slots are poisoned
        at the start of the launch (ordered by the q dependency chain), so every dword validates itself.
        wo / gate-up tiles go to the workgroups that finish their scores first (arrival counter); placement affects speed only.
 every spin is bounded.
"""

WREG = 40 + 4 * 14

class Gen:
    def __init__(self, stamps=0, budget=30000, D=4, NL=18, roles=6, dbg=0, pre1=0, pre2=0, DO=0, GW=8, WCH=4, dry=1, ps=0, extra=0, early=4, pad=-1, pick=-1, tlb=0, rot=1, l2pre=0, eb=0, wback=0, wgu=0, gdone=0, near=1, opol=0, gx=0, amap=1, ov=1, lin=1, jit=0, wsync=0, TD=0, prio=0, dsel=0, dynr=1, omode=7, trig=0, dback=-1, dper=1, dpol=0, din=8, dnd=0, dynm=0, P1=16, msides=1, sh=2, DE=0, kb=0, IQ=0, HT0=0, HT1=0, w4=0, smod=0):
        self.a = Asm(); self.stamps = stamps; self.budget = budget; self.D = D; self.NL = NL; self.DO = DO
        self.roles = roles; self.dbg = dbg; self.pre1 = pre1; self.pre2 = pre2; self.GW = GW; self.WCH = WCH; self.dry = dry; self.ps = ps; self.extra = extra; self.early = early; self.tlb = tlb; self.smod = smod; self.w4 = w4; self.HT0 = HT0; self.HT1 = HT1; self.IQ = IQ; self.DE = DE; self.kb = kb; self.sh = sh; self.dynm = dynm; self.P1 = P1; self.msides = msides; self.din = din; self.dnd = dnd; self.dback = dback; self.dper = dper; self.dpol = ' nt' if dpol else ''; self.dynr = dynr; self.omode = omode; self.trig = trig; self.dsel = dsel; self.wsync = wsync; self.TD = TD; self.prio = prio; self.jit = jit; self.near_x = (4, 5, 6, 7) if roles == 7 else (0, 1, 2, 3); self.lin = lin; self.ov = ov; self.amap = amap; self.gx = gx; self.opol = ['', ' sc1', ' sc0 sc1', ' nt'][opol]; self.near = near; self.gdone = gdone; self.wback = wback; self.wgu = wgu; self.eb = eb; self.l2pre = l2pre; self.rot = rot; self.pad = pad; self.pick = pick

    def mksrd(self, s, p, nbytes):
        self.a(f"s_mov_b32 s{s}, s{p}\ns_and_b32 s{s+1}, s{p+1}, 0xffff\ns_mov_b32 s{s+2}, {nbytes}\ns_mov_b32 s{s+3}, 0x20000")

    def stamp(self, i, prog=False):
        if self.stamps == 5 and not prog and i != 0: return
        if prog and self.stamps != 5: return
        if self.stamps: self.a(f"s_memrealtime s[{STAMP0+2*i}:{STAMP0+2*i+1}]")

    def poll(self, loads, invalid, sleep=1, lds=False, tail=False):
        a = self.a
        L, D = a.label("L_poll"), a.label("L_pdone")
        a(f"s_mov_b64 s[{sEX}:{sEX+1}], exec")
        if tail: a(f"s_cbranch_execz {D}")
        a(f"{L}:")
        loads()
        a("s_waitcnt lgkmcnt(0)" if lds else "s_waitcnt vmcnt(0)")
        invalid()
        a(f"s_cbranch_vccz {D}")
        a(f"s_cmp_eq_u32 s{sBUD}, 0\ns_cbranch_scc1 {D}\ns_sub_u32 s{sBUD}, s{sBUD}, 1")
        a("s_mov_b64 exec, vcc")
        if sleep: a(f"s_sleep {sleep}")
        a(f"s_branch {L}")
        a(f"{D}:")
        a(f"s_mov_b64 exec, s[{sEX}:{sEX+1}]")

    def poll_pre(self, loads, nloads, pre, invalid, sleep=0, narrow=None, prog=False):
        a = self.a
        L, W, D, S = a.label("L_poll"), a.label("L_pw"), a.label("L_pdone"), a.label("L_ps")
        if narrow: narrow()
        a(f"s_mov_b64 s[{sEX}:{sEX+1}], exec")
        a(f"s_cbranch_execz {S}")
        loads()
        a((f"s_waitcnt vmcnt({nloads})\n" if not prog else "") + f"s_branch {S}2")
        a(f"{S}:")
        a("s_waitcnt vmcnt(0)")
        a(f"{S}2:")
        if narrow: self.unmask()
        pre()
        a(f"s_mov_b64 exec, s[{sEX}:{sEX+1}]")
        a(f"s_cbranch_execz {D}\ns_branch {W}")
        a(f"{L}:")
        loads()
        a(f"{W}:")
        a("s_waitcnt vmcnt(0)")
        invalid()
        a(f"s_cbranch_vccz {D}")
        a(f"s_cmp_eq_u32 s{sBUD}, 0\ns_cbranch_scc1 {D}\ns_sub_u32 s{sBUD}, s{sBUD}, 1")
        a("s_mov_b64 exec, vcc")
        if sleep: a(f"s_sleep {sleep}")
        a(f"s_branch {L}")
        a(f"{D}:")
        self.unmask()

    def lds_wait(self, off, n, T, sleep=4):
        a = self.a
        a(f"v_and_b32 v{T}, {n-1}, v1\nv_lshlrev_b32 v{T}, 2, v{T}")
        self.poll(lambda: a(f"ds_read_b32 v{T+1}, v{T} offset:{off}"), lambda: self.inv_poison([T + 1], T + 2), sleep=sleep, lds=True)

    def inv_tags(self, tagregs, tmp):
        a = self.a
        a(f"v_xor_b32 v{tmp}, s{sT}, v{tagregs[0]}")
        for t in tagregs[1:]:
            a(f"v_xor_b32 v{tmp+1}, s{sT}, v{t}\nv_or_b32 v{tmp}, v{tmp}, v{tmp+1}")
        a(f"v_cmp_ne_u32 vcc, 0, v{tmp}")

    def inv_poison(self, regs, tmp):
        a = self.a
        regs = list(regs)
        if len(regs) == 1:
            a(f"v_cmp_eq_u32 vcc, -1, v{regs[0]}"); return
        if len(regs) == 2:
            a(f"v_max_u32 v{tmp}, v{regs[0]}, v{regs[1]}"); rest = []
        else:
            a(f"v_max3_u32 v{tmp}, v{regs[0]}, v{regs[1]}, v{regs[2]}"); rest = regs[3:]
        while len(rest) >= 2:
            a(f"v_max3_u32 v{tmp}, v{tmp}, v{rest[0]}, v{rest[1]}"); rest = rest[2:]
        if rest: a(f"v_max_u32 v{tmp}, v{tmp}, v{rest[0]}")
        a(f"v_cmp_eq_u32 vcc, -1, v{tmp}")

    def reduce8(self, acc, t):
        a = self.a
        for j in range(4): a(f"v_permlane32_swap_b32 v{acc[j]}, v{acc[j+4]}")
        for j in range(4): a(f"v_add_f32 v{acc[j]}, v{acc[j]}, v{acc[j+4]}")
        for j in range(2): a(f"v_permlane16_swap_b32 v{acc[j]}, v{acc[j+2]}")
        for j in range(2): a(f"v_add_f32 v{acc[j]}, v{acc[j]}, v{acc[j+2]}")
        a(f"v_add_f32_dpp v{t}, v{acc[0]}, v{acc[0]} row_ror:8 row_mask:0xf bank_mask:0x3")
        a(f"v_add_f32_dpp v{t}, v{acc[1]}, v{acc[1]} row_ror:8 row_mask:0xf bank_mask:0xc")

    def allred_rows(self, op, regs, tmps):
        a = self.a
        for sw in ("v_permlane16_swap_b32", "v_permlane32_swap_b32"):
            for r, t in zip(regs, tmps): a(f"v_mov_b32 v{t}, v{r}")
            for r, t in zip(regs, tmps): a(f"{sw} v{t}, v{r}")
            for r, t in zip(regs, tmps): a(f"{op} v{r}, v{r}, v{t}")

    def dpp_red(self, op, regs, steps):
        for s in steps:
            for r in regs: self.a(f"{op}_dpp v{r}, v{r}, v{r} {s} row_mask:0xf bank_mask:0xf")

    X1, X2, HM, R4, R8 = "quad_perm:[1,0,3,2]", "quad_perm:[2,3,0,1]", "row_half_mirror", "row_ror:4", "row_ror:8"

    def rbf(self, d, s):
        self.a(f"v_cvt_pk_bf16_f32 v{d}, v{s}, v{s}\nv_and_b32 v{d}, s{sHIMASK}, v{d}")

    def silu(self, d, s, t):
        self.a(f"v_mul_f32 v{t}, {NLOG2E}, v{s}\nv_exp_f32 v{t}, v{t}\nv_add_f32 v{t}, 1.0, v{t}\nv_rcp_f32 v{t}, v{t}\nv_mul_f32 v{d}, v{s}, v{t}")

    def preperm(self, W, npairs, free):
        a = self.a
        PP = []
        for p in range(npairs):
            E = list(range(W + 8 * p, W + 8 * p + 4)); O = list(range(W + 8 * p + 4, W + 8 * p + 8))
            P = []
            for d in range(4):
                a(f"v_perm_b32 v{free}, v{O[d]}, v{E[d]}, s{sPERMLO}")
                a(f"v_perm_b32 v{O[d]}, v{O[d]}, v{E[d]}, s{sPERMHI}")
                P += [free, O[d]]
                free = E[d]
            PP.append(P)
        return PP

    def ln_scalars(self, s1, s2, t):
        a = self.a
        a(f"v_mul_f32 v{s1}, {f32(1/640)}, v{s1}\nv_mul_f32 v{s2}, {f32(1/640)}, v{s2}")
        a(f"v_fma_f32 v{s2}, -v{s1}, v{s1}, v{s2}\nv_max_f32 v{s2}, 0, v{s2}")
        a(f"v_cvt_pk_bf16_f32 v{t}, v{s1}, v{s2}")
        a(f"v_lshlrev_b32 v{s1}, 16, v{t}\nv_and_b32 v{s2}, s{sHIMASK}, v{t}")
        a(f"v_add_f32 v{s2}, {f32(1e-5)}, v{s2}")
        self.rbf(s2, s2)
        a(f"v_sqrt_f32 v{s2}, v{s2}")
        self.rbf(s2, s2)
        a(f"v_rcp_f32 v{s2}, v{s2}")

    def masks(self, MK, T):
        a = self.a
        a(f"v_and_b32 v{T+1}, 15, v0\nv_mov_b32 v{T+2}, 0xffff\nv_mov_b32 v{T+3}, 0xffff0000")
        for i in range(4):
            a(f"v_cmp_eq_u32 vcc, {2*i}, v{T+1}\nv_cndmask_b32 v{MK+i}, 0, v{T+2}, vcc")
            a(f"v_cmp_eq_u32 vcc, {2*i+1}, v{T+1}\nv_cndmask_b32 v{MK+i}, v{MK+i}, v{T+3}, vcc")

    def bulk(self):
        a = self.a
        if self.DO:
            if self.dsel:
                a(f"s_waitcnt lgkmcnt(0)\ns_and_b32 s11, s{sROLE}, 3\ns_bitcmp1_b32 {self.dsel}, s11\ns_cbranch_scc1 L_bulk_odd")
            else: a(f"s_bitcmp1_b32 s2, 0\ns_cbranch_scc1 L_bulk_odd")
            self.bulk_body(32, "e", self.D)
            a("L_bulk_odd:")
            self.bulk_body(32, "o", self.DO)
        else:
            self.bulk_body(32, "o")
        self.bulk_fin()

    def bulk_body(self, N, sfx, Dx=None):
        a = self.a
        Dx = Dx or self.D
        if Dx < 20: Dx *= 10
        D_ = (Dx + 9) // 10; NLS = self.NL
        depth0 = lambda i: ((i + 1) * Dx) // 10 - (i * Dx) // 10
        depth = lambda i: self.DE if (self.DE and i >= 32 + NLS) else depth0(i)
        self.known = -1
        VO, Q, MK, A0, D, T, S, RING = 1, 2, 6, 10, 18, 22, 31, 40
        NG = (N + 3) // 4
        assert NG <= 9 and N % 4 == 0
        dest = []
        for t in range(N): dest.append(("r", t) if t < 32 else ("l", t - 32))
        lnext = max(0, N - 32); spare = list(range(N, 32)); late = 0
        for t in range(N):
            if spare: dest.append(("r", spare.pop(0)))
            elif lnext < NLS: dest.append(("l", lnext)); lnext += 1
            else: dest.append(("R", late)); late += 1
        PRE = 2 * N - late
        scratch = [s for s in range(late, min(N, 32))]
        assert len(scratch) >= 8
        scratch = scratch[-8:]
        assert late <= 14 and scratch[0] >= 24
        self.issued = 0; self.m0 = None; self.s12 = None; self.wissued = 0; self.wpos = []
        after = lambda v: (self.issued - 1 - v) + sum(1 for p in self.wpos if p > v)
        def ld():
            i = self.issued
            if i >= 2 * N: return
            t = i % N
            kind, slot = dest[i]
            if i >= depth(i) and i - depth(i) > self.known:
                a(f"s_waitcnt vmcnt({after(i - depth(i))})"); self.known = i - depth(i)
            if self.s12 != t // 4:
                if self.rot == 1: a(f"s_xor_b32 s12, s{14 + (t//4) % 2}, {(t//4)*32768}")
                else: a(f"s_xor_b32 s12, s14, {(t//4)*32768 + [0,2,4,6,1,3,5,7][t//4]*4096}")
                self.s12 = t // 4
            s_ = srd(SA if i < N else SB)
            if kind == "l":
                m = slot * 1024 - (t % 4) * 1024
                if self.m0 != m: a(f"s_add_u32 m0, s13, {m}\ns_nop 0" if m >= 0 else f"s_sub_u32 m0, s13, {-m}\ns_nop 0"); self.m0 = m
                a(f"buffer_load_dwordx4 v{VO}, {s_}, s12 offen offset:{(t%4)*1024} nt lds")
            else:
                a(f"buffer_load_dwordx4 {vr(RING+4*slot,4)}, v{VO}, {s_}, s12 offen offset:{(t%4)*1024} nt")
            self.issued += 1
            if i in (9, 15, 21, 27, 33, 39, 45, 51, 57, 63): self.stamp((i - 3) // 6, prog=True)
            if (self.dynm or self.smod) and i == self.P1:
                a(f"s_lshl_b32 s11, s10, 2\nv_mov_b32 v{T+8}, s11\nds_write_b32 v{T+8}, v{T+8} offset:{PG1}")
            if self.trig and i == self.trig:
                a(f"s_lshl_b32 s11, s10, 2\nv_mov_b32 v{T+8}, s11\nds_write_b32 v{T+8}, v{T+8} offset:{ISS}")
        def landed(i, may_issue):
            while self.issued < 2 * N and self.known < i and may_issue(self.issued): ld()
            if self.known < i: a(f"s_waitcnt vmcnt({after(i)})"); self.known = i
        self.issued = 4
        for t in range(4, self.IQ or PRE): ld()
        self.stamp(4)
        self.poll(lambda: a(f"ds_read_b128 {vr(Q,4)}, v{T+1} offset:{QL}"), lambda: self.inv_poison(range(Q, Q + 4), T + 2), sleep=2, lds=True)
        order = list(range(min(NG, 8)))
        if NG > 8: order = [7] + list(range(7)) + [8]
        done_slots = set()
        free_for = lambda i: dest[i][0] != 'R' or (dest[i][1] in done_slots and not (NG > 8 and dest[i][1] >= 28))
        for n, u in enumerate(order):
            tiles = [t for t in range(4 * u, 4 * u + 4) if t < N]
            landed(tiles[-1], free_for)
            if u == 8: a("s_waitcnt lgkmcnt(0)")
            for d in range(4):
                for b, t in enumerate(tiles):
                    k = RING + 4 * (t if t < 32 else t - 4) + d
                    if d == 0: a(f"v_dot2_f32_bf16 v{T+b}, v{k}, v{Q}, 0")
                    else: a(f"v_dot2_f32_bf16 v{T+b}, v{k}, v{Q+d}, v{T+b}")
            for b in range(len(tiles), 4): a(f"v_mov_b32 v{T+b}, 0xff800000")
            if u < 8: done_slots |= set(tiles)
            if NG > 8 and u == 7:
                landed(N - 1, lambda i: False)
                for t in range(32, N): a(f"ds_read_b128 {vr(RING+4*(t-4),4)}, v{T+7} offset:{1024*(t-32)}")
            if self.kb:
                while self.issued < 2 * N and free_for(self.issued) and self.issued - depth(self.issued) <= self.known: ld()
            if n in (1, 4, 7) and self.issued < 2 * N and free_for(self.issued): ld()
            a(f"v_add_f32_dpp v{T+4}, v{T}, v{T} row_ror:8 row_mask:0xf bank_mask:0x3")
            a(f"v_add_f32_dpp v{T+5}, v{T+1}, v{T+1} row_ror:8 row_mask:0xf bank_mask:0x3")
            a(f"v_add_f32_dpp v{T+4}, v{T+2}, v{T+2} row_ror:8 row_mask:0xf bank_mask:0xc")
            a(f"v_add_f32_dpp v{T+5}, v{T+3}, v{T+3} row_ror:8 row_mask:0xf bank_mask:0xc")
            a(f"v_add_f32_dpp v{S+u}, v{T+4}, v{T+4} row_shl:4 row_mask:0xf bank_mask:0x5")
            a(f"v_add_f32_dpp v{S+u}, v{T+5}, v{T+5} row_shr:4 row_mask:0xf bank_mask:0xa")
        Sr = list(range(S, S + NG))
        self.dpp_red("v_add_f32", Sr, [self.X2, self.X1])
        prs = [(Sr[i], Sr[min(i + 1, NG - 1)]) for i in range(0, NG, 2)]
        for rep in range(2):
            for k, (x, y) in enumerate(prs): a(f"v_cvt_pk_bf16_f32 v{T+k}, v{x}, v{y}")
            for k, (x, y) in enumerate(prs):
                a(f"v_lshlrev_b32 v{x}, 16, v{T+k}")
                if y != x: a(f"v_and_b32 v{y}, s{sHIMASK}, v{T+k}")
            if rep == 0:
                for r in Sr: a(f"v_mul_f32 v{r}, {SCALE}, v{r}")
        M, Ls = T + 4, T + 5
        a(f"v_max3_f32 v{M}, v{Sr[0]}, v{Sr[1]}, v{Sr[2]}")
        rest = Sr[3:]
        while len(rest) >= 2: a(f"v_max3_f32 v{M}, v{M}, v{rest[0]}, v{rest[1]}"); rest = rest[2:]
        if rest: a(f"v_max_f32 v{M}, v{M}, v{rest[0]}")
        self.dpp_red("v_max_f32", [M], [self.R4, self.R8])
        self.allred_rows("v_max_f32", [M], [T])
        ld()
        for r in Sr: a(f"v_sub_f32 v{r}, v{r}, v{M}")
        for r in Sr: a(f"v_mul_f32 v{r}, {LOG2E}, v{r}")
        for r in Sr: a(f"v_exp_f32 v{r}, v{r}")
        a(f"v_add_f32 v{Ls}, v{Sr[0]}, v{Sr[1]}")
        for r in Sr[2:]: a(f"v_add_f32 v{Ls}, v{Ls}, v{r}")
        for r in Sr: a(f"v_cvt_pk_bf16_f32 v{r}, v{r}, v{r}")
        self.dpp_red("v_add_f32", [Ls], [self.R4, self.R8])
        self.allred_rows("v_add_f32", [Ls], [T])
        a(f"v_min_u32 v{M}, 0xfffffffe, v{M}")
        a(f"s_lshl_b32 s11, s10, 3\nv_mov_b32 v{T}, s11")
        a("s_mov_b64 exec, 1")
        a(f"ds_write_b64 v{T}, {vr(M,2)} offset:{MLW}")
        a("s_mov_b64 exec, -1")
        a(f"v_and_b32 v{T}, 15, v0\nv_lshlrev_b32 v{T}, 5, v{T}\nv_and_b32 v{T+1}, 16, v0\nv_add_u32 v{T}, v{T}, v{T+1}")
        a(f"s_lshl_b32 s11, s10, 9\nv_add_u32 v{T}, s11, v{T}")
        yes = lambda i: True
        lt = [t for t in range(N) if dest[N + t][0] == "l"]
        chunks = [lt[i:i + 4] for i in range(0, len(lt), 4)]
        where = {}
        def lds_reads(c):
            if c >= len(chunks): return
            for k, t in enumerate(chunks[c]):
                landed(N + t, yes)
                where[t] = scratch[(c % 2) * 4 + k]
                a(f"ds_read_b128 {vr(RING+4*where[t],4)}, v{T+7} offset:{1024*dest[N+t][1]}")
        a("s_waitcnt lgkmcnt(0)")
        lds_reads(0)
        FW = T + 6
        got_f = False
        if not self.dynr: self.weight_setup(T + 8, Q)
        RG = 4096 // self.GW // 32
        def wloads(n, va=T+8):
            for k in range(n):
                i = self.wissued
                if i >= (self.wmax // 2 if self.w4 else self.wmax): return
                if self.w4: a(f"buffer_load_dwordx4 {vr(WREG+4*i,4)}, v{va}, {srd(SC)}, s{sWOFF} offen nt")
                else: a(f"buffer_load_dwordx2 {vr(WREG+2*i,2)}, v{va}, {srd(SC)}, s{sWOFF} offen nt")
                a(f"s_add_u32 s{sWOFF}, s{sWOFF}, s{sWSTR}")
                if i == (RG // 2 if self.w4 else RG) - 1: a(f"s_add_u32 s{sWOFF}, s{sWOFF}, s{sWJMP}")
                self.wissued += 1; self.wpos.append(self.issued)
        self.wloads = wloads
        def step(t):
            A = A0 + 4 * (t % 2)
            for i in range(4):
                a(f"v_and_b32_dpp v{A+i}, v{S+t//4}, v{MK+i} row_newbcast:{4*(t%4)} row_mask:0xf bank_mask:0xf")
            if t in lt:
                c, k = divmod(lt.index(t), 4)
                if k == 0:
                    if c % 2 == 1: ld()
                    a("s_waitcnt lgkmcnt(0)")
                    lds_reads(c + 1)
                slot = where[t]
            else:
                landed(N + t, yes)
                slot = dest[N + t][1]
            a(f"v_mfma_f32_16x16x32_bf16 {vr(D,4)}, {vr(A,4)}, {vr(RING+4*slot,4)}, {vr(D,4)}")
        def getrole():
            if self.dynr:
                a(f"v_mov_b32 v{Q}, 0")
                self.poll(lambda: a(f"ds_read_b32 v{Q+1}, v{Q} offset:{ROL}"), lambda: self.inv_poison([Q + 1], Q + 2), sleep=1, lds=True)
                a(f"v_readfirstlane_b32 s{sROLE}, v{Q+1}")
                self.weight_setup(T + 8, Q)
        def getf():
            if self.prio: a("s_setprio 2")
            a(f"v_and_b32 v{T+2}, 7, v0\nv_lshlrev_b32 v{T+2}, 3, v{T+2}")
            self.poll(lambda: a(f"ds_read_b32 v{FW}, v{T+2} offset:{MLW}"), lambda: self.inv_poison([FW], T + 3), sleep=2, lds=True)
            self.dpp_red("v_max_f32", [FW], [self.X1, self.X2, self.HM])
            a(f"v_sub_f32 v{FW}, v{M}, v{FW}\nv_mul_f32 v{FW}, {LOG2E}, v{FW}\nv_exp_f32 v{FW}, v{FW}")
            a(f"s_mul_i32 s14, s{sCI}, {REC}\ns_add_u32 s14, s14, {OA}")
            a(f"v_and_b32 v{T+2}, 63, v0\nv_lshlrev_b32 v{T+2}, 3, v{T+2}\nv_mov_b32 v{T+3}, 0\nv_mov_b32 v{T+7}, 1")
        def rest(wch, t, fn=None):
            got = False
            for u in range(t, N):
                if self.issued == 2 * N and not got: getf(); got = True
                if wch: (fn or wloads)(wch if u < N - 1 else 20)
                step(u)
            assert got
        t = 0
        if self.dback >= 0:
            while not (self.issued >= 2 * N - self.dback and t > (lt[-1] if lt else 0)):
                step(t); t += 1
            getrole()
            L1 = a.label("L_nod")
            a(f"s_cmp_lg_u32 s{sTY}, 3\ns_cbranch_scc1 {L1}")
            self.mksrd(SA, P_WD, 1728 * 1280)
            a(f"s_lshl_b32 s{sWOFF}, s{sRA}, 5\ns_add_u32 s{sWSTR}, s{sWOFF}, 5120")
            a(f"v_subrev_u32 v{Q}, 256, v0\nv_lshrrev_b32 v{Q}, 1, v{Q}\nv_mul_u32_u24 v{T+8}, {8*1280}, v{Q}\nv_and_b32 v{Q}, 1, v0\nv_lshl_add_u32 v{T+8}, v{Q}, 4, v{T+8}")
            def dloads(n):
                for k in range(n):
                    i = self.wissued
                    if i >= self.din: return
                    a(f"buffer_load_dwordx4 {vr(WREG+4*i,4)}, v{T+8}, {srd(SA)}, s{sWOFF + i//4} offen offset:{1280*(i%4)}{self.dpol}")
                    self.wissued += 1; self.wpos.append(self.issued)
            save = (self.issued, self.s12, self.known)
            rest(self.dper, t, dloads)
            a("s_branch L_bulk_fin")
            a(f"{L1}:")
            self.issued, self.s12, self.known = save; self.wissued = 0; self.wpos = []
        while not (self.issued >= 2 * N - self.wback and t > (lt[-1] if lt else 0)):
            step(t); t += 1
        if self.dback < 0: getrole()
        if self.WCH:
            L0 = a.label("L_now")
            if self.wgu: a(f"s_cmp_eq_u32 s{SC+2}, 0\ns_cbranch_scc1 {L0}"); self.wmax = 20
            else: a(f"s_cmp_lg_u32 s{sTY}, 1\ns_cbranch_scc1 {L0}"); self.wmax = RG
            save = (self.issued, self.s12, self.known)
            if self.wsync:
                assert self.wback == 0
                a(f"s_lshl_b32 s11, s10, 2\nv_mov_b32 v{Q}, s11\nds_write_b32 v{Q}, v{Q} offset:{ISS}\nv_and_b32 v{Q}, 7, v0\nv_lshlrev_b32 v{Q}, 2, v{Q}")
                self.poll(lambda: a(f"ds_read_b32 v{Q+1}, v{Q} offset:{ISS}"), lambda: self.inv_poison([Q + 1], Q + 2), sleep=1, lds=True)
            rest(self.WCH, t)
            a(f"s_mov_b32 s{SC+2}, 0")
            a("s_branch L_bulk_fin")
            a(f"{L0}:")
            self.issued, self.s12, self.known = save; self.wissued = 0; self.wpos = []
        rest(0, t)
        if sfx == "e": a("s_branch L_bulk_fin")

    def bulk_fin(self):
        a = self.a
        VO, Q, MK, A0, D, T, S, RING = 1, 2, 6, 10, 18, 22, 31, 40
        FW = T + 6
        a("L_bulk_fin:")
        self.jitter(3, 31, 9)
        self.stamp(11, prog=True)
        if self.stamps == 6:
            a(f"s_memrealtime s[{STAMP0+2}:{STAMP0+3}]\ns_waitcnt lgkmcnt(0)\ns_mov_b64 exec, 1")
            a(f"s_add_u32 s{STAMP0+20}, s{P_WS}, 0x8000000\ns_addc_u32 s{STAMP0+21}, s{P_WS+1}, 0")
            a(f"s_mul_i32 s11, s2, 192\ns_lshl_b32 s12, s10, 3\nv_mov_b32 v3, s11\ns_add_u32 s11, s11, s12\nv_mov_b32 v2, s11")
            a(f"v_mov_b32 v4, s{STAMP0+2}\nv_mov_b32 v5, s{STAMP0+3}\nglobal_store_dwordx2 v2, v[4:5], s[{STAMP0+20}:{STAMP0+21}] offset:8\ns_nop 1")
            a(f"v_mov_b32 v4, s{STAMP0+8}\nv_mov_b32 v5, s{STAMP0+9}\nglobal_store_dwordx2 v2, v[4:5], s[{STAMP0+20}:{STAMP0+21}] offset:104\ns_nop 1")
            a(f"v_mov_b32 v4, s{STAMP0}\nv_mov_b32 v5, s{STAMP0+1}\nglobal_store_dwordx2 v3, v[4:5], s[{STAMP0+20}:{STAMP0+21}]\ns_nop 1")
            a("s_mov_b64 exec, -1")
        a("s_mov_b32 exec_hi, 0")
        for i in range(4): a(f"v_mul_f32 v{D+i}, v{FW}, v{D+i}")
        a(f"ds_write_b128 v{T}, {vr(D,4)} offset:{OW}")
        a("s_mov_b64 exec, 1")
        a(f"ds_add_rtn_u32 v{T+1}, v{T+3}, v{T+7} offset:{CNT}")
        a("s_mov_b64 exec, -1")
        a("s_waitcnt lgkmcnt(0)")
        a(f"v_readfirstlane_b32 s11, v{T+1}")
        LN = a.label("L_notlast")
        a(f"s_cmp_lg_u32 s11, 6\ns_cbranch_scc1 {LN}")
        self.stamp(6)
        for w in range(8): a(f"ds_read_b64 {vr(RING+2*w,2)}, v{T+2} offset:{OW+512*w}")
        for n, wt in ((0, 6), (2, 4), (4, 2), (6, 0)):
            a(f"s_waitcnt lgkmcnt({0 if self.stamps else wt})")
            a(f"v_pk_add_f32 {vr(RING+2*n,2)}, {vr(RING+2*n,2)}, {vr(RING+2*n+2,2)}")
            if n: a(f"v_pk_add_f32 {vr(RING,2)}, {vr(RING,2)}, {vr(RING+2*n,2)}")
        a(f"v_min_u32 v{RING}, 0xfffffffe, v{RING}\nv_min_u32 v{RING+1}, 0xfffffffe, v{RING+1}")
        a(f"buffer_store_dwordx2 {vr(RING,2)}, v{T+2}, {srd(SW)}, s14 offen sc1")
        a(f"ds_write_b32 v{T+3}, v{T+3} offset:{DONE}")
        if self.stamps:
            self.stamp(7)
            self.store_stamps((6, 7), 0)
            a("s_mov_b64 exec, -1")
        a(f"{LN}:")
        if not (self.WCH and self.wgu) and not self.gdone:
            a(f"s_cmp_eq_u32 s{SC+2}, 0\ns_cbranch_scc1 L_tail")
            self.wissued = 0; self.wmax = 20
            if self.prio: a("s_setprio 0")
            for k in range(20):
                if self.TD and k >= self.TD: a(f"s_waitcnt vmcnt({self.TD-1})")
                self.wloads(1)

    def store_stamps(self, idx, slot):
        a = self.a
        if self.stamps == 6: return
        if self.stamps == 5:
            if 11 not in idx: return
            idx = range(12)
        if self.stamps == 4:
            a("s_waitcnt lgkmcnt(0)\ns_mov_b64 exec, 1\nv_mov_b32 v2, 0")
            for i in idx: a(f"v_mov_b32 v4, s{STAMP0+2*i}\nds_write_b32 v2, v4 offset:{400+4*i}")
            a("s_waitcnt lgkmcnt(0)")
            if 11 in idx:
                t = role_table(self.roles, self.GW)
                pick = [b for b in range(240) if (t[b] & 3) == 3][0] if self.pick < 0 else self.pick
                a(f"s_cmp_lg_u32 s2, {pick}\ns_cbranch_scc1 L_end")
                a(f"ds_read_b32 v4, v2 offset:{400+4*self.pad}\ns_waitcnt lgkmcnt(0)\nv_readfirstlane_b32 s11, v4")
                a(f"s_sub_u32 s11, s11, s{STAMP0}\ns_mul_i32 s11, s11, 2\ns_add_u32 s11, s11, 5000\ns_min_u32 s11, s11, 20000")
                a(f"L_padloop:\ns_memrealtime s[12:13]\ns_waitcnt lgkmcnt(0)\ns_sub_u32 s12, s12, s{STAMP0}\ns_cmp_lt_u32 s12, s11\ns_cbranch_scc1 L_padloop")
            return
        if self.stamps == 3:
            t = role_table(self.roles, self.GW)
            pick = {ty: [b for b in range(240) if (t[b] & 3) == ty][0] for ty in (1, 2, 3)}
            a("s_load_dwordx2 s[12:13], s[0:1], 96\ns_waitcnt lgkmcnt(0)\ns_mov_b64 exec, 1\nv_mov_b32 v2, 0")
            for i in idx:
                for ty, slot in (((1, i), (2, i + 5)) if i in (8, 9) else ((3, i),)):
                    L = a.label("L_st")
                    a(f"s_cmp_lg_u32 s2, {pick[ty]}\ns_cbranch_scc1 {L}\nv_mov_b32 v4, s{STAMP0+2*i}\nglobal_store_dword v2, v4, s[12:13] offset:{4*slot}\n{L}:")
            return
        if self.stamps == 2:
            a("s_load_dwordx2 s[12:13], s[0:1], 96\ns_waitcnt lgkmcnt(0)\ns_mov_b64 exec, 1\nv_mov_b32 v2, 0")
            for i in idx:
                if i == 0: a(f"s_not_b32 s11, s{STAMP0}\nv_mov_b32 v4, s11\nglobal_atomic_umax v2, v4, s[12:13] offset:48\ns_nop 1")
                if i in (8, 9):
                    a(f"s_cmp_eq_u32 s{sTY}, 2\ns_cselect_b32 s11, 20, 0\nv_mov_b32 v3, s11\nv_mov_b32 v4, s{STAMP0+2*i}\nglobal_atomic_umax v3, v4, s[12:13] offset:{4*i}\ns_nop 1")
                else:
                    a(f"v_mov_b32 v4, s{STAMP0+2*i}\nglobal_atomic_umax v2, v4, s[12:13] offset:{4*i}\ns_nop 1")
            return
        a("s_waitcnt lgkmcnt(0)\ns_mov_b64 exec, 1")
        a(f"s_add_u32 s12, s{P_WS}, 0x8000000\ns_addc_u32 s13, s{P_WS+1}, 0")
        a(f"s_mul_i32 s11, s2, 192\nv_mov_b32 v2, s11")
        for i in idx:
            a(f"v_mov_b32 v4, s{STAMP0+2*i}\nv_mov_b32 v5, s{STAMP0+2*i+1}\nglobal_store_dwordx2 v2, v[4:5], s[12:13] offset:{8*i+96*slot}\ns_nop 1")

    def common_setup(self):
        a = self.a
        L = a.label("L_pc")
        a(f"s_load_dword s{sT}, s[{P_WS}:{P_WS+1}], 0")
        a(f"s_getpc_b64 s[{sEX}:{sEX+1}]")
        a(f"{L}:")
        a(f"s_lshl_b32 s11, s2, 2\ns_add_u32 s11, s11, role_tbl-{L}")
        a(f"s_load_dword s{sROLE}, s[{sEX}:{sEX+1}], s11")
        self.mksrd(SW, P_WS, WS_BYTES)
        a(f"s_mov_b32 s{sBUD}, {self.budget}\ns_mov_b32 s{sPERMLO}, 0x05040100\ns_mov_b32 s{sPERMHI}, 0x07060302\ns_mov_b32 s{sHIMASK}, 0xffff0000")
        a(f"s_mov_b64 {FULL}, -1")

    def role_decode(self):
        a = self.a
        a(f"s_and_b32 s{sTY}, s{sROLE}, 3\ns_bfe_u32 s{sRA}, s{sROLE}, 0x80008\ns_bfe_u32 s{sRB}, s{sROLE}, 0x80010")
        if self.dbg & 2: a(f"s_mov_b32 s{sTY}, 0")

    def weight_setup(self, VW, T):
        a = self.a
        RG = 4096 // self.GW // 32
        self.role_decode()
        a(f"s_sub_u32 s11, s{sRA}, 27\ns_cmp_lt_u32 s{sRA}, 27\ns_cselect_b32 s{SC}, s{P_WG}, s{P_WU}\ns_cselect_b32 s{SC+1}, s{P_WG+1}, s{P_WU+1}\ns_cselect_b32 s11, s{sRA}, s11")
        a(f"s_lshl_b32 s{sWOFF}, s11, 7")
        a(f"s_mul_i32 s11, s{sRB}, {RG*32*1280}\ns_lshl_b32 s{sWSTR}, s{sRA}, 7\ns_add_u32 s11, s11, s{sWSTR}")
        a(f"s_cmp_eq_u32 s{sTY}, 2\ns_cselect_b32 s{SC+2}, {640*3456}, 0")
        a(f"s_cmp_eq_u32 s{sTY}, 1\ns_cselect_b32 s{SC}, s{P_WO}, s{SC}\ns_cselect_b32 s{SC+1}, s{P_WO+1}, s{SC+1}\ns_cselect_b32 s{SC+2}, {4096*1280}, s{SC+2}")
        a(f"s_cselect_b32 s{sWOFF}, s11, s{sWOFF}\ns_cselect_b32 s{sWJMP}, 0x40000000, 0")
        a(f"s_mov_b32 s{sWSTR}, 3456\ns_cselect_b32 s{sWSTR}, 1280, s{sWSTR}\ns_mov_b32 s11, {20*3456}\ns_cselect_b32 s11, {RG*1280}, s11")
        if self.dbg & 256: a(f"s_cmp_eq_u32 s{sTY}, 1\ns_cselect_b32 s{SC+2}, 0, s{SC+2}")
        if self.dbg & 512: a(f"s_cmp_eq_u32 s{sTY}, 2\ns_cselect_b32 s{SC+2}, 0, s{SC+2}")
        a(f"s_and_b32 s{SC+1}, s{SC+1}, 0xffff\ns_mov_b32 s{SC+3}, 0x20000")
        if self.w4:
            a(f"v_subrev_u32 v{T}, 256, v0\nv_lshrrev_b32 v{T}, 4, v{T}\nv_mul_lo_u32 v{VW}, v{T}, s11\nv_and_b32 v{T}, 7, v0\nv_lshl_add_u32 v{VW}, v{T}, 4, v{VW}")
            a(f"v_bfe_u32 v{T}, v0, 3, 1\nv_mad_u32_u24 v{VW}, v{T}, s{sWSTR}, v{VW}\ns_lshl_b32 s{sWSTR}, s{sWSTR}, 1")
        else:
            a(f"v_subrev_u32 v{T}, 256, v0\nv_lshrrev_b32 v{T}, 4, v{T}\nv_mul_lo_u32 v{VW}, v{T}, s11\nv_and_b32 v{T}, 15, v0\nv_lshl_add_u32 v{VW}, v{T}, 3, v{VW}")

    def tile_mfma(self, W, AE, AO, MK, A0, D, PB, waits):
        a = self.a
        for t in range(20):
            A = A0 + 4 * (t % 2)
            for i in range(4):
                a(f"v_and_b32_dpp v{A+i}, v{AO if t % 2 else AE}, v{MK+i} row_newbcast:{t//2} row_mask:0xf bank_mask:0xf")
            if waits: a(f"s_waitcnt vmcnt({19-t})")
            if t < 2: a(f"v_mov_b32 v{PB+2*t+1}, s{sT}")
            a(f"v_mfma_f32_16x16x32_bf16 {vr(D,4)}, {vr(A,4)}, {vr(W+4*t,4)}, {vr(D,4)}")

    def tile_publish(self, D, PB, VA, soff):
        a = self.a
        a(f"v_permlane32_swap_b32 v{D}, v{D+2}\nv_permlane32_swap_b32 v{D+1}, v{D+3}")
        a(f"v_mov_b32 v{PB}, v{D}\nv_mov_b32 v{PB+2}, v{D+1}")
        a(f"buffer_store_dwordx4 {vr(PB,4)}, v{VA}, {srd(SW)}, s{soff} offen sc1")

    def pos2pair(self, dst, src, T):
        a = self.a
        a(f"v_and_b32 v{T}, 15, v{src}\nv_bfe_u32 v{T+1}, v{src}, 4, 1\nv_lshlrev_b32 v{T}, 2, v{T}\nv_lshl_add_u32 v{T}, v{T+1}, 1, v{T}")
        a(f"v_bfe_u32 v{T+1}, v{src}, 5, 1\nv_and_b32 v{dst}, 0xffc0, v{src}\nv_add3_u32 v{dst}, v{dst}, v{T}, v{T+1}")

    def tag(self):
        self.a(f"s_waitcnt lgkmcnt(0)\ns_mul_i32 s{sT}, s{sT}, 1664525\ns_add_u32 s{sT}, s{sT}, 1013904223")

    def pair_index(self, dst, T):
        self.a(f"v_lshrrev_b32 v{T}, 4, v1\nv_mul_u32_u24 v{T}, 10, v{T}\nv_and_b32 v{dst}, 15, v1\nv_add_u32 v{dst}, v{dst}, v{T}")

    def sum8(self, G):
        for n in (16, 8, 4):
            for i in range(0, n, 2): self.a(f"v_add_f32 v{G+i}, v{G+i}, v{G+n+i}")
        self.a(f"v_cvt_pk_bf16_f32 v{G}, v{G}, v{G+2}")

    def gather8(self, G, VO, sbase, gstride, T, sleep=1):
        a = self.a
        for g in range(8): a(f"s_add_u32 s{sWGT+g}, s{sbase}, {g*gstride}")
        def loads():
            for g in range(8): a(f"buffer_load_dwordx4 {vr(G+4*g,4)}, v{VO}, {srd(SW)}, s{sWGT+g} offen sc1")
        self.poll(loads, lambda: self.inv_tags([G + 2 * i + 1 for i in range(16)], T), sleep=sleep)
        self.sum8(G)

    def h0(self):
        a = self.a
        T, MK, D, VA, AE, AO, W, G = 2, 8, 12, 16, 17, 18, 24, 104
        A0, PB = G + 8, G + 16
        a("L_h0:")
        if self.dbg & 4: a("s_branch L_h0_none")
        sPASS = 9
        if self.smod:
            a(f"s_mov_b32 s{sPASS}, 0\ns_cmp_lt_u32 s{sR}, 10\ns_cbranch_scc1 L_h0_tile\ns_bitcmp1_b32 s2, 0\ns_cbranch_scc1 L_h0_none")
            a(f"s_add_u32 s{sR}, s{sR}, 8")
            a("L_h0_rest:")
            a(f"s_lshr_b32 s13, s{sX}, 1\ns_mul_i32 s13, s13, 40\ns_add_u32 s13, s13, s{sR}\ns_and_b32 s{sX}, s13, 7\ns_lshr_b32 s{sR}, s13, 3\ns_add_u32 s{sR}, s{sR}, 10")
        else:
            a(f"s_mov_b32 s{sPASS}, 0\ns_cmp_ge_u32 s{sR}, {10 if self.dynm else 30}\ns_cbranch_scc1 L_h0_none")
        a("L_h0_tile:")
        self.mksrd(SA, P_WM, 640 * 7680); self.mksrd(SB, P_C, 1280)
        self.pair_index(AE, T)
        a(f"v_lshlrev_b32 v{AE}, 2, v{AE}\ns_mul_i32 s13, s{sX}, 160\nv_lshlrev_b32 v{VA}, 4, v1")
        a(f"buffer_load_dword v{AE}, v{AE}, {srd(SB)}, s13 offen")
        a(f"s_mul_i32 s12, s{sX}, {80*7680}\ns_lshl_b32 s13, s{sR}, 8\ns_add_u32 s12, s12, s13")
        a(f"v_lshrrev_b32 v{T}, 4, v1\nv_mul_u32_u24 v{T}, {20*7680}, v{T}\nv_and_b32 v{T+1}, 15, v1\nv_lshl_add_u32 v{T}, v{T+1}, 4, v{T}")
        if self.HT0:
            a(f"s_cmp_lt_u32 s2, 80\ns_cbranch_scc1 L_h0_fast\ns_barrier")
            for t in range(20):
                if t >= self.HT0: a(f"s_waitcnt vmcnt({self.HT0-1})")
                a(f"buffer_load_dwordx4 {vr(W+4*t,4)}, v{T}, {srd(SA)}, s12 offen nt")
                if t < 19: a(f"s_add_u32 s12, s12, 7680")
                if t == 11: a(f"v_mov_b32 v{T+2}, 0\ns_waitcnt lgkmcnt(0)\nds_write_b32 v{T+2}, v{T+2} offset:{F0L}")
            a("s_branch L_h0_nb")
            a("L_h0_fast:")
        for t in range(20):
            a(f"buffer_load_dwordx4 {vr(W+4*t,4)}, v{T}, {srd(SA)}, s12 offen nt")
            if t < 19: a(f"s_add_u32 s12, s12, 7680")
        if self.dynm or self.smod: a(f"s_cmp_lg_u32 s{sPASS}, 0\ns_cbranch_scc1 L_h0_p2")
        if self.dbg & 16: a("s_branch L_h0_np")
        self.jitter(1, 255, 11)
        a(f"s_cmp_ge_u32 s2, 80\ns_cbranch_scc1 L_h0_np")
        for i in range(4): a(f"v_mov_b32 v{PB+i}, -1")
        a(f"s_mul_i32 s13, s2, 3072\ns_add_u32 s13, s13, {PZ}")
        for i in range(3): a(f"buffer_store_dwordx4 {vr(PB,4)}, v{VA}, {srd(SW)}, s13 offen offset:{1024*i} sc1")
        a("L_h0_np:")
        if not self.eb: a("s_barrier")
        a("L_h0_nb:")
        self.tag()
        a("L_h0_p2:")
        self.masks(MK, T)
        for i in range(4): a(f"v_mov_b32 v{D+i}, 0")
        a(f"s_mul_i32 s15, s{sX}, {3840*8}\ns_lshl_b32 s13, s{sR}, 10\ns_add_u32 s15, s15, s13\ns_add_u32 s15, s15, {MP}")
        a("s_waitcnt vmcnt(20)")
        a(f"v_and_b32 v{AO}, s{sHIMASK}, v{AE}\nv_lshlrev_b32 v{AE}, 16, v{AE}")
        self.silu(AE, AE, T); self.silu(AO, AO, T + 1)
        a(f"v_cvt_pk_bf16_f32 v{AE}, v{AE}, v{AE}\nv_cvt_pk_bf16_f32 v{AO}, v{AO}, v{AO}")
        self.tile_mfma(W, AE, AO, MK, A0, D, PB + 4, True)
        if not (self.dbg & 8): self.tile_publish(D, PB + 4, VA, 15)
        self.stamp(1)
        if self.dynm: a(f"s_cmp_lg_u32 s{sPASS}, 0\ns_cbranch_scc1 L_hend")
        if self.smod: a(f"s_cmp_lg_u32 s{sPASS}, 0\ns_cbranch_scc1 L_h3_cont")
        a("s_waitcnt vmcnt(0)")
        a("s_branch L_h0_flag")
        a("L_h0_none:")
        if not self.eb: a("s_barrier")
        self.tag()
        if self.dynm or self.smod: self.lds_wait(PG1, 1, T, sleep=4)
        a("L_h0_flag:")
        a(f"v_mov_b32 v{T}, 0\nds_write_b32 v{T}, v{T} offset:{F0L}")
        if self.dynm:
            a("s_load_dwordx2 s[12:13], s[0:1], 96")
            self.lds_wait(PG1, 8, T, sleep=4)
            if self.msides == 2: a("s_bfe_u32 s15, s2, 0x10002\ns_lshl_b32 s11, s15, 7")
            else: a("s_mov_b32 s15, 0\ns_mov_b32 s11, 0")
            a("s_mov_b32 s14, 1\ns_atomic_add s14, s[12:13], s11 glc\ns_waitcnt lgkmcnt(0)")
            a(f"s_cmp_ge_u32 s14, {160 // self.msides}\ns_cbranch_scc1 L_hend")
            a(f"s_mul_i32 s15, s15, 80\ns_add_u32 s14, s14, s15\ns_and_b32 s{sX}, s14, 7\ns_lshr_b32 s{sR}, s14, 3\ns_add_u32 s{sR}, s{sR}, 10\ns_mov_b32 s{sPASS}, 1")
            a("s_branch L_h0_tile")
        a("s_branch L_hend")

    def h1(self):
        a = self.a
        T, MK, D, VA, AE, AO, VG, VG2, RO, C16, W, G = 2, 8, 12, 16, 17, 18, 19, 20, 21, 22, 24, 104
        A0, PB, XS = G + 8, G + 16, G
        a("L_h1:")
        if self.dbg & 4:
            if not self.eb: a("s_barrier")
            self.tag()
            a(f"v_lshlrev_b32 v{VG2}, 2, v1\nv_mov_b32 v{W}, 0\nds_write_b32 v{VG2}, v{W} offset:{QL}\ns_branch L_hend")
        self.mksrd(SA, P_WQ, 640 * 8192); self.mksrd(SC, P_X, 1280)
        a(f"s_and_b32 s14, s2, 7\ns_mul_i32 s13, s14, 40")
        self.pair_index(VG, T)
        a(f"v_add_u32 v{VG}, s13, v{VG}")
        self.pos2pair(RO, VG, T)
        a(f"v_lshlrev_b32 v{AE}, 2, v{RO}\nv_lshlrev_b32 v{RO}, 14, v{RO}\nv_lshlrev_b32 v{T+2}, 2, v1")
        a(f"v_and_b32 v{C16}, 15, v1\nv_lshlrev_b32 v{C16}, 4, v{C16}")
        a(f"buffer_load_dword v{AE}, v{AE}, {srd(SC)}, 0 offen")
        for i in range(5): a(f"buffer_load_dword v{XS+i}, v{T+2}, {srd(SC)}, 0 offen offset:{256*i}")
        a(f"s_lshr_b32 s12, s2, 3\ns_lshl_b32 s12, s12, 8\ns_add_u32 s13, s12, 8192")
        if self.HT1: a("s_barrier")
        for n in range(10):
            a(f"v_add_u32_dpp v{T+n%2}, v{RO}, v{C16} row_newbcast:{n} row_mask:0xf bank_mask:0xf")
            if self.HT1 and 2 * n >= self.HT1: a(f"s_waitcnt vmcnt({self.HT1-2})")
            a(f"buffer_load_dwordx4 {vr(W+8*n,4)}, v{T+n%2}, {srd(SA)}, s12 offen nt")
            a(f"buffer_load_dwordx4 {vr(W+8*n+4,4)}, v{T+n%2}, {srd(SA)}, s13 offen nt")
        if not self.eb and not self.HT1: a("s_barrier")
        self.masks(MK, T)
        for i in range(4): a(f"v_mov_b32 v{D+i}, 0")
        a(f"v_lshlrev_b32 v{VA}, 4, v1")
        self.tag()
        a("s_waitcnt vmcnt(20)")
        S1, S2 = XS + 6, XS + 7
        a(f"v_mov_b32 v{S1}, 0\nv_mov_b32 v{S2}, 0")
        for i in range(5):
            a(f"v_lshlrev_b32 v{T}, 16, v{XS+i}\nv_and_b32 v{T+1}, s{sHIMASK}, v{XS+i}")
            a(f"v_add_f32 v{S1}, v{S1}, v{T}\nv_fmac_f32 v{S2}, v{T}, v{T}\nv_add_f32 v{S1}, v{S1}, v{T+1}\nv_fmac_f32 v{S2}, v{T+1}, v{T+1}")
        self.dpp_red("v_add_f32", [S1, S2], [self.X1, self.X2, self.R4, self.R8])
        self.allred_rows("v_add_f32", [S1, S2], [T, T + 1])
        self.ln_scalars(S1, S2, T)
        a(f"v_and_b32 v{AO}, s{sHIMASK}, v{AE}\nv_lshlrev_b32 v{AE}, 16, v{AE}")
        for r in (AE, AO):
            a(f"v_sub_f32 v{r}, v{r}, v{S1}"); self.rbf(r, r)
            a(f"v_mul_f32 v{r}, v{r}, v{S2}"); self.rbf(r, r)
        a(f"v_lshlrev_b32 v{VG}, 4, v{VG}\nv_add_u32 v{VG2}, 5120, v{VG}")
        for g in range(8): a(f"s_mov_b32 s{sWGT+g}, {MP+g*3840*8}")
        a(f"s_lshl_b32 s15, s2, 10\ns_add_u32 s15, s15, {QP}")
        if self.dbg & 8:
            a(f"v_lshlrev_b32 v{VG2}, 2, v1\nv_mov_b32 v{T}, 0\nds_write_b32 v{VG2}, v{T} offset:{QL}\ns_waitcnt vmcnt(0)\ns_branch L_hend")
        self.lds_wait(F0L, 2, T)
        a("s_mov_b32 exec_lo, 0x03ff03ff\ns_mov_b32 exec_hi, 0x03ff03ff")
        def loads():
            for g in range(8):
                a(f"buffer_load_dwordx4 {vr(G+4*g,4)}, v{VG}, {srd(SW)}, s{sWGT+g} offen sc1")
                a(f"buffer_load_dwordx4 {vr(G+32+4*g,4)}, v{VG2}, {srd(SW)}, s{sWGT+g} offen sc1")
        for k in range(self.pre1 // 100): a("s_sleep 100")
        if self.pre1 % 100: a(f"s_sleep {self.pre1 % 100}")
        if self.dbg & 32: a("s_waitcnt vmcnt(0)")
        else: self.poll(loads, lambda: self.inv_tags([G + 2 * i + 1 for i in range(32)], T), sleep=8)
        self.stamp(2)
        self.sum8(G); self.sum8(G + 32)
        a(f"v_lshlrev_b32 v{T}, 16, v{G+32}\nv_and_b32 v{T+1}, s{sHIMASK}, v{G+32}")
        a(f"v_add_f32 v{T}, 1.0, v{T}\nv_add_f32 v{T+1}, 1.0, v{T+1}\nv_cvt_pk_bf16_f32 v{T+2}, v{T}, v{T+1}")
        a(f"v_lshlrev_b32 v{T}, 16, v{T+2}\nv_and_b32 v{T+1}, s{sHIMASK}, v{T+2}")
        a(f"v_mul_f32 v{T}, v{AE}, v{T}\nv_mul_f32 v{T+1}, v{AO}, v{T+1}\nv_cvt_pk_bf16_f32 v{T+2}, v{T}, v{T+1}")
        a(f"v_lshlrev_b32 v{T}, 16, v{T+2}\nv_and_b32 v{T+1}, s{sHIMASK}, v{T+2}")
        a(f"v_lshlrev_b32 v{AE}, 16, v{G}\nv_and_b32 v{AO}, s{sHIMASK}, v{G}")
        a(f"v_add_f32 v{AE}, v{AE}, v{T}\nv_add_f32 v{AO}, v{AO}, v{T+1}")
        a(f"v_cvt_pk_bf16_f32 v{AE}, v{AE}, v{AE}\nv_cvt_pk_bf16_f32 v{AO}, v{AO}, v{AO}")
        a("s_mov_b64 exec, -1")
        self.tile_mfma(W, AE, AO, MK, A0, D, PB, False)
        self.tile_publish(D, PB, VA, 15)
        a(f"s_lshr_b32 s15, s{sCI}, 3\ns_lshl_b32 s15, s15, 13\ns_add_u32 s15, s15, {QP}")
        self.pos2pair(VG2, 1, T)
        a(f"v_lshlrev_b32 v{VG2}, 2, v{VG2}")
        a("s_waitcnt vmcnt(0)")
        for k in range(self.pre2 // 100): a("s_sleep 100")
        if self.pre2 % 100: a(f"s_sleep {self.pre2 % 100}")
        if not (self.dbg & 64): self.gather8(W, VA, 15, 1024, T, sleep=8)
        a(f"v_min_u32 v{W}, 0xfffffffe, v{W}")
        a(f"ds_write_b32 v{VG2}, v{W} offset:{QL}")
        self.stamp(3)
        a("s_branch L_hend")

    def h2(self):
        a = self.a
        T, G = 2, 8
        OCT = [self.X1, self.X2, self.HM]
        a("L_h2:")
        if self.eb: a("s_waitcnt lgkmcnt(0)")
        else:
            a("v_mov_b32 v4, -1\nv_mov_b32 v5, -1\nv_lshlrev_b32 v2, 3, v1")
            a(f"ds_write_b64 v2, v[4:5] offset:0")
            a("s_waitcnt lgkmcnt(0)\ns_barrier")
        self.common_setup()
        if self.dynr:
            a(f"s_getpc_b64 s[12:13]\nL_pc2:\ns_bfe_u32 s14, s2, 0x10002\ns_lshl_b32 s15, s14, 9\ns_add_u32 s15, s15, ord_tbl-L_pc2\nv_lshl_add_u32 v2, v1, 2, s15")
            a("global_load_dword v160, v2, s[12:13]\nglobal_load_dword v161, v2, s[12:13] offset:256")
            a(f"s_and_b32 s{sWSTR}, s{sR}, {self.sh-1}\ns_mul_i32 s14, s14, {self.sh}\ns_add_u32 s14, s14, s{sWSTR}\ns_mul_i32 s{sWSTR}, s{sWSTR}, {128//self.sh}")
            a(f"s_lshl_b32 s{sWOFF}, s14, 7\ns_add_u32 s{sWOFF}, s{sWOFF}, {RC}")
        if self.dry:
            for v in range(2, 20): a(f"v_mov_b32 v{v}, 0")
            a("s_waitcnt lgkmcnt(0)")
            if self.dynr: a(f"s_mov_b32 s{sTY}, 1\ns_mov_b32 s{sRA}, 0\ns_mov_b32 s{sRB}, 0")
            else: self.role_decode()
            for v in list(range(44, 56)) + list(range(68, 90)): a(f"v_mov_b32 v{v}, 0")
            a(f"s_mov_b32 s{sTW}, 0\ns_mov_b64 {FULL}, 0\ns_mov_b64 exec, 0\ns_branch L_tail")
            a("L_dry_ret:")
            if self.dynr:
                a(f"s_bitcmp1_b32 s2, 2\ns_cbranch_scc1 L_dry_end\ns_add_u32 s{sTY}, s{sTY}, 1\ns_cmp_lt_u32 s{sTY}, 4\ns_cbranch_scc1 L_tail")
                a("L_dry_end:")
            self.jitter(5, 15, 5)
            a("s_mov_b64 exec, -1")
        MW, LW, PB = G, G + 1, G + 2
        a(f"v_and_b32 v{T}, 7, v1\nv_lshlrev_b32 v{T+1}, 3, v{T}")
        a(f"s_mul_i32 s12, s{sCI}, {REC}\ns_add_u32 s12, s12, {OA}")
        self.poll(lambda: a(f"ds_read_b64 {vr(MW,2)}, v{T+1} offset:{MLW}"), lambda: self.inv_poison([MW], T + 2), sleep=4, lds=True)
        claim = f"s_mov_b32 s14, 1\ns_atomic_add s14, s[{P_WS}:{P_WS+1}], s{sWOFF} glc"
        if self.omode >= 5: claim = f"s_and_b32 s13, s{sROLE}, 3\ns_cmp_eq_u32 s13, 3\ns_cbranch_scc1 L_noclaim\n" + claim + "\nL_noclaim:"
        if self.dynr and not self.trig: a(claim)
        a(f"v_mov_b32 v{PB}, v{MW}")
        self.dpp_red("v_max_f32", [PB], OCT)
        a(f"v_sub_f32 v{T+2}, v{MW}, v{PB}\nv_mul_f32 v{T+2}, {LOG2E}, v{T+2}\nv_exp_f32 v{T+2}, v{T+2}")
        a(f"v_mul_f32 v{PB+1}, v{T+2}, v{LW}")
        self.dpp_red("v_add_f32", [PB + 1], OCT)
        a(f"v_min_u32 v{PB}, 0xfffffffe, v{PB}\nv_min_u32 v{PB+1}, 0xfffffffe, v{PB+1}\nv_mov_b32 v{T+2}, 0")
        a("s_mov_b64 exec, 1")
        a(f"buffer_store_dwordx2 {vr(PB,2)}, v{T+2}, {srd(SW)}, s12 offen offset:512 sc1")
        a("s_mov_b64 exec, -1")
        a(f"v_mov_b32 v{T+4}, 0\nv_mov_b32 v{T+5}, 0")
        if self.dynr:
            if self.trig:
                self.lds_wait(ISS, 8, T, sleep=2)
                a(claim)
            if self.omode >= 5: a(f"s_and_b32 s{sROLE}, s{sROLE}, 0xffffff\ns_cmp_eq_u32 s13, 3\ns_cbranch_scc1 L_rolset")
            a(f"s_waitcnt lgkmcnt(0) vmcnt(1)\ns_add_u32 s14, s14, 1\ns_min_u32 s14, s14, {128//self.sh-1}\ns_add_u32 s14, s14, s{sWSTR}\ns_and_b32 s15, s14, 63")
            a(f"v_readlane_b32 s{sROLE}, v160, s15\nv_readlane_b32 s13, v161, s15")
            a(f"s_bitcmp1_b32 s14, 6\ns_cselect_b32 s{sROLE}, s13, s{sROLE}\ns_cmp_lt_u32 s14, 128\ns_cselect_b32 s{sROLE}, s{sROLE}, 0")
            a("L_rolset:")
            a(f"v_mov_b32 v{T+2}, s{sROLE}\nds_write_b32 v{T+4}, v{T+2} offset:{ROL}")
        if self.dynr or not self.dry: self.role_decode()
        a(f"s_cmp_eq_u32 s{sTY}, 0\ns_cbranch_scc1 L_end")
        if self.near:
            a(f"s_mov_b32 s12, {SG}")
            self.poll(lambda: a(f"buffer_load_dword v{T+5}, v{T+4}, {srd(SW)}, s12 offen sc1"), lambda: self.inv_poison([T + 5], T + 2), sleep=8)
        a(f"s_cmp_lg_u32 s{sTY}, 2\ns_cbranch_scc1 L_h2_sel")
        self.mksrd(SA, P_X, 1280)
        a(f"v_lshlrev_b32 v{T}, 2, v1\ns_mov_b32 s12, {MG}")
        for k in range(5): a(f"buffer_load_dword v{40+15+k}, v{T}, {srd(SA)}, 0 offen offset:{256*k}")
        def loads():
            for k in range(15): a(f"buffer_load_dword v{40+k}, v{T}, {srd(SW)}, s12 offen offset:{256*k} sc1")
        self.poll(loads, lambda: self.inv_poison(range(40, 55), T + 2), sleep=8)
        for k in range(20): a(f"ds_write_b32 v{T}, v{40+k} offset:{MGL+256*k}")
        a("L_h2_sel:")
        a(f"ds_write_b32 v{T+4}, v{T+5} offset:{SEL}")
        a("s_endpgm")

    def h3(self):
        a = self.a
        T, G = 2, 40
        a("L_h3:")
        self.jitter(2, 7, 3)
        if self.l2pre:
            a(f"s_getpc_b64 s[12:13]\nL_pc3:\ns_sub_u32 s12, s12, L_pc3-{NAME}_kernel\ns_subb_u32 s13, s13, 0")
            a(f"s_lshl_b32 s14, s{sR}, 10\ns_cmp_ge_u32 s14, role_tbl-{NAME}_kernel\ns_cbranch_scc1 L_h3_np")
            a(f"v_lshl_add_u32 v10, v1, 4, s14")
            a(f"global_load_dwordx4 v[164:167], v10, s[12:13]")
            a("L_h3_np:")
        if not self.eb: a("s_barrier")
        if self.tlb:
            a("s_mov_b64 exec, 1")
            a(f"s_lshl_b32 s12, s2, 18\nv_mov_b32 v10, s12\nv_mov_b32 v11, 0\nv_mov_b32 v12, 0x200000\nv_mov_b32 v13, 0x400000")
            a(f"global_load_dword v20, v10, s[{P_V}:{P_V+1}] nt")
            if self.tlb > 1:
                for p, n in ((P_WO, 3), (P_WG, 2), (P_WU, 2), (P_WD, 2), (P_OUT, 1), (P_WS, 1)):
                    for k in range(n): a(f"global_load_dword v21, v{11+k}, s[{p}:{p+1}] offset:{1024 if p != P_OUT else 0} nt")
            a("s_mov_b64 exec, -1\ns_waitcnt vmcnt(0)")
        self.tag()
        a(f"v_mov_b32 v2, 0\nds_write_b32 v2, v2 offset:{F0L+4}")
        if self.smod:
            a(f"s_bitcmp1_b32 s2, 0\ns_cbranch_scc1 L_h3_cont\ns_cmp_ge_u32 s{sR}, 18\ns_cbranch_scc1 L_h3_cont\ns_mov_b32 s9, 1\ns_branch L_h0_rest")
            a("L_h3_cont:")
        if self.near:
            t = role_table(self.roles, self.GW)
            dec = [b for b in range(256) if (t[b] >> 24) == 255 and (b & 7) in self.near_x][0]
            a(f"s_cmp_lg_u32 s2, {dec}\ns_cbranch_scc1 L_nodec")
            a(f"s_add_u32 s12, s{P_WS}, 0x100000\ns_addc_u32 s13, s{P_WS+1}, 0\ns_mov_b32 s14, 0")
            if self.near == 1:
                for k in range(8):
                    ph = (k ^ (k >> 1)) & 1
                    a(f"s_memtime s[{sWGT}:{sWGT+1}]\ns_waitcnt lgkmcnt(0)")
                    for j in range(4): a(f"s_load_dword s{SA+j}, s[12:13], {ph*8192 + (k//2)*16384 + j*1024 + (j%2)*4096}")
                    a(f"s_waitcnt lgkmcnt(3)\ns_memtime s[{sWGT+2}:{sWGT+3}]\ns_waitcnt lgkmcnt(0)")
                    a(f"s_sub_u32 s15, s{sWGT+2}, s{sWGT}\ns_min_u32 s15, s15, 4000")
                    a("s_add_u32 s14, s14, s15" if ph else "s_sub_u32 s14, s14, s15")
                a("s_cmp_gt_i32 s14, 0\ns_cselect_b32 s14, 0, 8192")
            else: a(f"s_mov_b32 s14, {(self.near - 2) * 8192}")
            self.lds_wait(QL, 1, T, sleep=8)
            a(f"v_mov_b32 v2, 0\nv_mov_b32 v3, s14\ns_mov_b32 s12, {SG}\ns_mov_b64 exec, 1")
            a(f"buffer_store_dword v3, v2, {srd(SW)}, s12 offen sc1")
            if self.stamps == 7:
                a("s_load_dwordx2 s[12:13], s[0:1], 96\ns_waitcnt lgkmcnt(0)\nglobal_store_dword v2, v3, s[12:13]")
            a("s_endpgm")
            a("L_nodec:")
        if self.dbg & (12 | 128): a("s_endpgm")
        a(f"s_lshr_b32 s14, s{sROLE}, 24\ns_cmp_eq_u32 s14, 255\ns_cbranch_scc1 L_end")
        self.lds_wait(QL, 1, T, sleep=8)
        a(f"s_lshl_b32 s15, s14, 10\ns_add_u32 s15, s15, {MP+1280*8}")
        a(f"v_lshlrev_b32 v8, 4, v1")
        self.pos2pair(9, 1, T)
        a("v_lshlrev_b32 v9, 2, v9")
        self.gather8(G, 8, 15, 3840 * 8, T, sleep=8)
        a(f"v_min_u32 v{G}, 0xfffffffe, v{G}\ns_lshl_b32 s15, s14, 8\ns_add_u32 s15, s15, {MG}")
        a(f"buffer_store_dword v{G}, v9, {srd(SW)}, s15 offen sc1")
        a("s_endpgm")
        a("L_hend:")
        if self.stamps:
            a(f"s_cmp_eq_u32 s{sWAVE}, 1\ns_cbranch_scc1 L_hend1")
            self.store_stamps((0, 1), 0); a("s_endpgm")
            a("L_hend1:")
            self.store_stamps((0, 2, 3), 1)
        a("s_endpgm")

    def done_wait(self, t, zero):
        self.poll(lambda: self.a(f"ds_read_b32 v{t}, v{zero} offset:{DONE}"), lambda: self.inv_poison([t], t + 1), sleep=2, lds=True, tail=True)
    def jitter(self, bit, m, v):
        if not (self.jit >> bit) & 1: return
        L = self.a.label("L_jit")
        self.a(f"s_and_b32 s11, s2, {m}\ns_cmp_lg_u32 s11, {v}\ns_cbranch_scc1 {L}")
        for k in range(10): self.a("s_sleep 127")
        self.a(f"{L}:")
    def yrow(self, dst, g, tmp):
        self.a(f"s_mul_i32 s{tmp}, s{g}, 11\ns_lshr_b32 s{tmp}, s{tmp}, 5\ns_mul_i32 s{tmp}, s{tmp}, 8704\ns_mul_i32 s{dst}, s{g}, 2560\ns_add_u32 s{dst}, s{dst}, s{tmp}\ns_add_u32 s{dst}, s{dst}, {YB}")
    def mask(self, m):
        self.a(f"s_and_b32 exec_lo, s{sFULL}, {hex(m & 0xffffffff)}\ns_and_b32 exec_hi, s{sFULL}, {hex(m >> 32)}")
    def unmask(self): self.a(f"s_mov_b64 exec, {FULL}")
    def barrier(self):
        L = self.a.label("L_nb")
        self.a(f"s_waitcnt lgkmcnt(0)\ns_cbranch_execz {L}\ns_barrier\n{L}:")
    def mem(self, txt):
        L = self.a.label("L_nm")
        self.a(f"s_cbranch_execz {L}\n{txt}\n{L}:")
    def preperm4(self, W, npairs, free, before=None, after=None):
        a = self.a
        PP = []
        for p in range(npairs):
            if before: before(p)
            if self.w4:
                R = W + 4 * p
                for d in range(2): a(f"v_mov_b32_dpp v{94+d}, v{R+d} row_ror:8 row_mask:0xf bank_mask:0xf")
                for d in range(2): a(f"v_mov_b32_dpp v{R+d}, v{R+2+d} row_ror:8 row_mask:0xf bank_mask:0xc")
                for d in range(2): a(f"v_mov_b32_dpp v{R+2+d}, v{94+d} quad_perm:[0,1,2,3] row_mask:0xf bank_mask:0x3")
            P = []
            for d in range(2):
                E, O = W + 4 * p + d, W + 4 * p + 2 + d
                a(f"v_perm_b32 v{free}, v{O}, v{E}, s{sPERMLO}\nv_perm_b32 v{O}, v{O}, v{E}, s{sPERMHI}")
                P += [free, O]; free = E
            PP.append(P)
            if after: after(p, P)
        return PP
    def reduce4(self, acc):
        a = self.a
        a(f"v_permlane32_swap_b32 v{acc[0]}, v{acc[2]}\nv_permlane32_swap_b32 v{acc[1]}, v{acc[3]}")
        a(f"v_add_f32 v{acc[0]}, v{acc[0]}, v{acc[2]}\nv_add_f32 v{acc[1]}, v{acc[1]}, v{acc[3]}")
        a(f"v_permlane16_swap_b32 v{acc[0]}, v{acc[1]}\nv_add_f32 v{acc[0]}, v{acc[0]}, v{acc[1]}")
    def sum_parts(self, G, VA, st):
        a = self.a
        for k in range(4):
            if st == 256: a(f"ds_read2st64_b32 {vr(G+2*k,2)}, v{VA} offset0:{2*k} offset1:{2*k+1}")
            else: a(f"ds_read2_b32 {vr(G+2*k,2)}, v{VA} offset0:{2*k*st//4} offset1:{(2*k+1)*st//4}")
        for k in range(4):
            a(f"s_waitcnt lgkmcnt({0 if self.stamps else 3-k})\nv_add_f32 v{G+2*k}, v{G+2*k}, v{G+2*k+1}")
            if k % 2: a(f"v_add_f32 v{G+2*k-2}, v{G+2*k-2}, v{G+2*k}")
        a(f"v_add_f32 v{G}, v{G}, v{G+4}")
    def unpack(self, lo, hi, src):
        self.a(f"v_lshlrev_b32 v{lo}, 16, v{src}\nv_and_b32 v{hi}, s{sHIMASK}, v{src}")

    def tail(self):
        a = self.a
        GW = self.GW
        TL, LN, N16, T, ACC, G, FREE, W = 1, 2, 3, 4, 20, 28, 92, WREG
        VP, VR_ = T + 12, T + 13
        a("L_tail:")
        self.jitter(4, 15, 2)
        self.stamp(5)
        a(f"s_cmp_eq_u32 s{sTY}, 0\ns_cbranch_scc1 L_fin")
        a(f"v_subrev_u32 v{TL}, 256, v0\nv_and_b32 v{LN}, 63, v0\nv_and_b32 v{N16}, 15, v0")
        for j in range(8): a(f"v_mov_b32 v{ACC+j}, 0")
        sSEL = 9
        a(f"v_mov_b32 v{G+52}, v30")
        self.poll(lambda: a(f"ds_read_b32 v{T+3}, v{ACC} offset:{SEL}"), lambda: self.inv_poison([T + 3], T + 4), sleep=2, lds=True, tail=True)
        a(f"v_readfirstlane_b32 s{sSEL}, v{T+3}\ns_and_b32 s{sSEL}, s{sSEL}, 8192")
        if self.gdone: a(f"s_cmp_eq_u32 s{sTY}, 2\ns_cbranch_scc1 L_nodone")
        if self.dnd: a(f"s_cmp_eq_u32 s{sTY}, 3\ns_cbranch_scc1 L_dn")
        self.done_wait(T + 3, ACC)
        a("L_nodone:")
        a(f"s_cmp_eq_u32 s{sTY}, 3\ns_cbranch_scc1 L_dn")
        if self.w4:
            a(f"v_lshrrev_b32 v{VP}, 4, v{LN}\nv_and_b32 v{VR_}, 7, v{N16}\nv_lshl_add_u32 v{VP}, v{VR_}, 3, v{VP}\nv_lshrrev_b32 v{VR_}, 3, v{N16}\nv_lshl_add_u32 v{VP}, v{VR_}, 2, v{VP}")
            a(f"s_lshl_b32 s11, s{sTW}, 8\ns_add_u32 s11, s11, {PW}")
        else:
            a(f"v_lshrrev_b32 v{VP}, 4, v{LN}\nv_lshl_add_u32 v{VP}, v{N16}, 2, v{VP}\ns_lshl_b32 s11, s{sTW}, 8\ns_add_u32 s11, s11, {PW}")
        a(f"v_lshl_add_u32 v{VP}, v{VP}, 2, s11\nv_lshlrev_b32 v{VR_}, 2, v{LN}\nv_add_u32 v{T+14}, {PW}, v{VR_}")
        a(f"s_cmp_eq_u32 s{sTY}, 2\ns_cbranch_scc1 L_gu")
        NP = 4096 // GW // 64; NS = NP // 2; HPT = 32 // GW
        lg = NP.bit_length() - 1
        steps = [self.R4, self.R8] if NP == 4 else [self.R8]
        ML, F = G + 16, T + 4
        a(f"s_lshr_b32 s12, s{sTW}, {3 - (HPT.bit_length() - 1)}\ns_mul_i32 s13, s{sRB}, {HPT}\ns_add_u32 s12, s12, s13\ns_mul_i32 s12, s12, {8*REC}\ns_add_u32 s12, s12, {OA}")
        self.yrow(15, sRB, 13)
        a(f"s_lshl_b32 s13, s{sRA}, 8\ns_add_u32 s15, s15, s13\ns_add_u32 s15, s15, s{sSEL}")
        a(f"v_lshrrev_b32 v{T+1}, {lg}, v{N16}\nv_mul_u32_u24 v{T+1}, {NS*REC}, v{T+1}")
        a(f"v_bfe_u32 v{T}, v{TL}, 4, {(32 // HPT).bit_length() - 1}\nv_lshlrev_b32 v{T}, {lg+3}, v{T}\nv_and_b32 v{T+2}, {NP-1}, v{N16}")
        a(f"v_lshl_add_u32 v{T}, v{T+2}, 3, v{T}\nv_add_u32 v{T}, v{T}, v{T+1}")
        PW_ = []
        def loads_oa():
            for k in range(NS): a(f"buffer_load_dwordx2 {vr(G+2*k,2)}, v{T}, {srd(SW)}, s12 offen offset:{REC*k} sc1")
        def loads():
            for k in range(NS): a(f"buffer_load_dwordx2 {vr(ML+2*k,2)}, v{T+1}, {srd(SW)}, s12 offen offset:{512+REC*k} sc1")
            loads_oa()
        wprog = bool(self.w4 and self.WCH and not self.wgu and not self.stamps)
        self.poll_pre(loads, 2 * NS, lambda: PW_.extend(self.preperm4(W, NP, FREE, before=(lambda p: a(f"s_waitcnt vmcnt({2*NS + NP - 1 - p})")) if wprog else None)),
                      lambda: self.inv_poison(range(ML, ML + 2 * NS), T + 2), sleep=2, prog=wprog)
        a(f"v_max_f32 v{T+2}, v{ML}, v{ML+2}")
        if NS == 4: a(f"v_max3_f32 v{T+2}, v{T+2}, v{ML+4}, v{ML+6}")
        self.dpp_red("v_max_f32", [T + 2], steps)
        for k in range(NS): a(f"v_sub_f32 v{F+k}, v{ML+2*k}, v{T+2}")
        for k in range(NS): a(f"v_mul_f32 v{F+k}, {LOG2E}, v{F+k}")
        for k in range(NS): a(f"v_exp_f32 v{F+k}, v{F+k}")
        a(f"v_mul_f32 v{T+2}, v{F}, v{ML+1}")
        for k in range(1, NS): a(f"v_fmac_f32 v{T+2}, v{F+k}, v{ML+2*k+1}")
        self.dpp_red("v_add_f32", [T + 2], steps)
        a(f"v_rcp_f32 v{T+2}, v{T+2}")
        for k in range(NS): a(f"v_mul_f32 v{F+k}, v{F+k}, v{T+2}")
        self.inv_poison(range(G, G + 2 * NS), T + 2)
        a("s_cbranch_vccz L_oa_ok")
        self.poll(loads_oa, lambda: self.inv_poison(range(G, G + 2 * NS), T + 2), sleep=self.ps, tail=True)
        a("L_oa_ok:")
        self.stamp(8)
        a(f"v_mul_f32 v{T+2}, v{F}, v{G}\nv_mul_f32 v{T+3}, v{F}, v{G+1}")
        for k in range(1, NS): a(f"v_fmac_f32 v{T+2}, v{F+k}, v{G+2*k}\nv_fmac_f32 v{T+3}, v{F+k}, v{G+2*k+1}")
        self.dpp_red("v_add_f32", [T + 2, T + 3], steps)
        a(f"v_cvt_pk_bf16_f32 v{T+2}, v{T+2}, v{T+3}")
        for p in range(NP):
            for j in range(4): a(f"v_dot2c_f32_bf16_dpp v{ACC+j}, v{T+2}, v{PW_[p][j]} row_newbcast:{p} row_mask:0xf bank_mask:0xf")
        self.reduce4(list(range(ACC, ACC + 4)))
        a(f"ds_write_b32 v{VP}, v{ACC}")
        self.barrier()
        a(f"s_cmp_lg_u32 s{sTW}, 0\ns_cbranch_scc1 L_fin")
        self.sum_parts(G, T + 14, 256)
        a(f"v_min_u32 v{G}, 0xfffffffe, v{G}")
        self.mem(f"buffer_store_dword v{G}, v{VR_}, {srd(SW)}, s15 offen sc1")
        self.stamp(9)
        a("s_branch L_fin")
        a("L_gu:")
        GA, SBv, CB1, XV, S1, S2 = T + 2, T + 4, T + 6, T + 8, T + 10, T + 11
        U = G + 40
        a(f"v_lshrrev_b32 v{T}, 4, v{TL}\nv_mul_u32_u24 v{T}, 10, v{T}\nv_add_u32 v{T}, v{T}, v{N16}\nv_lshlrev_b32 v{T+1}, 2, v{T}\nv_lshlrev_b32 v{T}, 3, v{T}")
        a(f"v_mov_b32 v{S1}, 0\nv_mov_b32 v{S2}, 0")
        a(f"v_and_b32 v{U+4}, 32, v{LN}\ns_lshl_b32 s11, s{sTW}, 2\nv_add_u32 v{U+4}, s11, v{U+4}\nv_lshlrev_b32 v{U+5}, 2, v{N16}")
        a(f"s_lshl_b32 s15, s{sRA}, 7\ns_add_u32 s15, s15, {GUP}\ns_mov_b32 s12, {MG}")
        a(f"v_mov_b32 v{U+6}, {f32(1/640)}")
        PG_ = []
        self.mask(0x03ff03ff03ff03ff)
        for k in range(4): a(f"ds_read_b32 v{G+k}, v{T+1} offset:{MGL+1280*k}")
        a("s_waitcnt lgkmcnt(0)")
        for dst, s in ((GA, G), (SBv, G + 1), (CB1, G + 2), (XV, G + 3)): self.unpack(dst, dst + 1, s)
        a(f"v_add_f32 v{CB1}, 1.0, v{CB1}\nv_add_f32 v{CB1+1}, 1.0, v{CB1+1}\nv_cvt_pk_bf16_f32 v{U}, v{CB1}, v{CB1+1}")
        self.unpack(CB1, CB1 + 1, U)
        if self.lin:
            a(f"v_mov_b32 v{U+14}, v{U}\nv_mov_b32 v{U+15}, v{G+1}\nv_add_f32 v{S1}, v{XV}, v{XV+1}")
            self.unmask()
            self.dpp_red("v_add_f32", [S1], [self.X1, self.X2, self.R4, self.R8])
            self.allred_rows("v_add_f32", [S1], [S2])
            a(f"v_mul_f32 v{U+13}, {f32(1/80)}, v{S1}")
            a(f"v_mul_f32 v{U+16}, v{U+13}, v{CB1}\nv_mul_f32 v{U+17}, v{U+13}, v{CB1+1}")
            a(f"v_mov_b32 v{S1}, 0\nv_mov_b32 v{S2}, 0")
        assert GW == 8
        self.unmask()
        self.yrow(14, sTW, 13)
        a(f"s_add_u32 s14, s14, s{sSEL}\ns_add_u32 s15, s15, s{sSEL}")
        a(f"v_lshlrev_b32 v{U+7}, 4, v{LN}\ns_mul_i32 s13, s{sTW}, 2560\ns_add_u32 s13, s13, {VL}")
        a(f"v_add_u32 v{U+8}, s13, v{U+7}\nv_add_u32 v{T}, {VL}, v{T}")
        a(f"v_mov_b32 v{U+9}, 0x7fffffff\nv_cmp_gt_u32 vcc, 32, v{LN}\nv_cndmask_b32 v{U+9}, v{U+9}, v{U+7}, vcc")
        def loads():
            a(f"buffer_load_dwordx4 {vr(G,4)}, v{U+7}, {srd(SW)}, s14 offen sc1")
            a(f"buffer_load_dwordx4 {vr(G+4,4)}, v{U+7}, {srd(SW)}, s14 offen offset:1024 sc1")
            a(f"buffer_load_dwordx4 {vr(G+8,4)}, v{U+9}, {srd(SW)}, s14 offen offset:2048 sc1")
        if self.gdone:
            self.done_wait(U + 10, ACC)
            a(f"s_cbranch_execz L_wdone")
            self.wissued = 0; self.wmax = 20
            self.wloads(20, U + 12)
            a("L_wdone:")
        CBP, SBP, MC, AS, BS = U + 14, U + 15, U + 16, U + 18, U + 19
        def pre():
            X = G + 16
            for j in range(4): a(f"v_mov_b32 v{X+j}, 0")
            def after(p, P):
                if not self.lin: return
                for j in range(4): a(f"v_dot2c_f32_bf16_dpp v{X+j}, v{CBP}, v{P[j]} row_newbcast:{p} row_mask:0xf bank_mask:0xf")
                for j in range(4): a(f"v_dot2c_f32_bf16_dpp v{ACC+4+j}, v{SBP}, v{P[j]} row_newbcast:{p} row_mask:0xf bank_mask:0xf")
            PG_.extend(self.preperm4(W, 10, FREE, before=lambda p: a(f"s_waitcnt vmcnt({3 + 9 - p if self.w4 else 3 + 18 - 2*p})"), after=after))
            if not self.lin: return
            for j in range(4): a(f"v_mul_f32 v{ACC+j}, v{U+13}, v{X+j}")
            self.reduce4(list(range(X, X + 4))); self.reduce4(list(range(ACC + 4, ACC + 8)))
            a(f"ds_write_b32 v{VP}, v{X} offset:2048\nds_write_b32 v{VP}, v{ACC+4} offset:4096")
            self.barrier()
            a(f"v_add_u32 v{X+8}, 2048, v{T+14}\nv_add_u32 v{X+9}, 4096, v{T+14}")
            self.sum_parts(X, X + 8, 256); a(f"v_mov_b32 v{AS}, v{X}")
            self.sum_parts(X, X + 9, 256); a(f"v_mov_b32 v{BS}, v{X}")
        self.poll_pre(loads, 3, pre, lambda: self.inv_poison(range(G, G + 12), U), sleep=self.ps, prog=True)
        a(f"ds_write_b128 v{U+8}, {vr(G,4)}\nds_write_b128 v{U+8}, {vr(G+4,4)} offset:1024")
        self.mask(0xffffffff)
        a(f"ds_write_b128 v{U+8}, {vr(G+8,4)} offset:2048")
        self.unmask()
        self.barrier()
        self.stamp(2)
        self.mask(0x03ff03ff03ff03ff)
        for k in range(4): a(f"ds_read2st64_b64 {vr(G+4*k,4)}, v{T} offset0:{10*k} offset1:{10*k+5}")
        for k in range(4):
            a(f"s_waitcnt lgkmcnt({0 if self.stamps else 3-k})\nv_pk_add_f32 {vr(G+4*k,2)}, {vr(G+4*k,2)}, {vr(G+4*k+2,2)}")
            if k % 2: a(f"v_pk_add_f32 {vr(G+4*k-4,2)}, {vr(G+4*k-4,2)}, {vr(G+4*k,2)}")
        a(f"v_pk_add_f32 {vr(G,2)}, {vr(G,2)}, {vr(G+8,2)}")
        def rb2():
            a(f"v_cvt_pk_bf16_f32 v{U}, v{G}, v{G+1}"); self.unpack(G, G + 1, U)
        rb2()
        a(f"v_pk_mul_f32 {vr(G,2)}, {vr(G,2)}, {vr(GA,2)}"); rb2()
        a(f"v_pk_add_f32 {vr(G,2)}, {vr(G,2)}, {vr(XV,2)}"); rb2()
        if self.lin:
            a(f"v_pk_fma_f32 {vr(G+2,2)}, {vr(G,2)}, {vr(CB1,2)}, {vr(MC,2)} neg_lo:[0,0,1] neg_hi:[0,0,1]")
            a(f"v_add_f32 v{S1}, v{G}, v{G+1}\nv_cvt_pk_bf16_f32 v{U}, v{G+2}, v{G+3}\nv_mul_f32 v{S2}, v{G}, v{G}\nv_fmac_f32 v{S2}, v{G+1}, v{G+1}")
            self.unmask()
            side = [f"v_permlane32_swap_b32 v{S1}, v{S2}", f"v_add_f32 v{S1}, v{S1}, v{S2}", f"v_mov_b32 v{S2}, v{S1}", f"v_permlane16_swap_b32 v{S2}, v{S1}",
                    f"v_add_f32 v{S1}, v{S1}, v{S2}"] + [f"v_add_f32_dpp v{S1}, v{S1}, v{S1} {s} row_mask:0xf bank_mask:0xf" for s in (self.R8, self.R4, self.X2, self.X1)] + \
                   [f"ds_write_b32 v{U+4}, v{S1} offset:{STL}"]
            for p in range(10):
                for j in range(4): a(f"v_dot2c_f32_bf16_dpp v{ACC+j}, v{U}, v{PG_[p][j]} row_newbcast:{p} row_mask:0xf bank_mask:0xf")
                a(side[p])
            self.reduce4(list(range(ACC, ACC + 4)))
            a(f"ds_write_b32 v{VP}, v{ACC}")
            a(f"v_lshlrev_b32 v{T}, 1, v{LN}")
            self.barrier()
            a(f"s_cmp_lg_u32 s{sTW}, 0\ns_cbranch_scc1 L_fin")
            a(f"ds_read_b32 v{U+1}, v{U+5} offset:{STL}")
            for k in range(4): a(f"ds_read2st64_b32 {vr(G+2*k,2)}, v{T+14} offset0:{2*k} offset1:{2*k+1}")
            a(f"s_waitcnt lgkmcnt({0 if self.stamps else 4})")
            a(f"v_add_f32_dpp v{U+1}, v{U+1}, v{U+1} {self.X1} row_mask:0xf bank_mask:0xf")
            a(f"s_waitcnt lgkmcnt(2)\nv_add_f32 v{G}, v{G}, v{G+1}")
            a(f"v_add_f32_dpp v{U+1}, v{U+1}, v{U+1} {self.X2} row_mask:0xf bank_mask:0xf")
            a(f"v_add_f32 v{G+2}, v{G+2}, v{G+3}\ns_waitcnt lgkmcnt(0)")
            a(f"v_add_f32_dpp v{U+1}, v{U+1}, v{U+1} {self.HM} row_mask:0xf bank_mask:0xf")
            a(f"v_add_f32 v{G+4}, v{G+4}, v{G+5}\nv_add_f32 v{G+6}, v{G+6}, v{G+7}")
            a(f"v_mul_f32_dpp v{S1}, v{U+1}, v{U+6} row_newbcast:0 row_mask:0xf bank_mask:0xf")
            a(f"v_mul_f32_dpp v{S2}, v{U+1}, v{U+6} row_newbcast:8 row_mask:0xf bank_mask:0xf")
            a(f"v_fma_f32 v{S2}, -v{S1}, v{S1}, v{S2}\nv_max_f32 v{S2}, 0, v{S2}")
            a(f"v_cvt_pk_bf16_f32 v{U}, v{S1}, v{S2}")
            a(f"v_and_b32 v{S2}, s{sHIMASK}, v{U}\nv_lshlrev_b32 v{S1}, 16, v{U}")
            a(f"v_add_f32 v{S2}, {f32(1e-5)}, v{S2}")
            a(f"v_cvt_pk_bf16_f32 v{S2}, v{S2}, v{S2}\nv_and_b32 v{S2}, s{sHIMASK}, v{S2}")
            a(f"v_sqrt_f32 v{S2}, v{S2}\nv_add_f32 v{G}, v{G}, v{G+2}")
            a(f"v_cvt_pk_bf16_f32 v{S2}, v{S2}, v{S2}\nv_add_f32 v{G+4}, v{G+4}, v{G+6}\nv_and_b32 v{S2}, s{sHIMASK}, v{S2}")
            a(f"v_rcp_f32 v{S2}, v{S2}\nv_add_f32 v{G}, v{G}, v{G+4}")
            a(f"v_fma_f32 v{G}, -v{S1}, v{AS}, v{G}\nv_fma_f32 v{G}, v{G}, v{S2}, v{BS}")
        else:
            a(f"v_add_f32 v{S1}, v{G}, v{G+1}\nv_mul_f32 v{S2}, v{G}, v{G}\nv_fmac_f32 v{S2}, v{G+1}, v{G+1}")
            self.unmask()
            a(f"v_permlane32_swap_b32 v{S1}, v{S2}\nv_add_f32 v{S1}, v{S1}, v{S2}")
            a(f"v_mov_b32 v{S2}, v{S1}\nv_permlane16_swap_b32 v{S2}, v{S1}\nv_add_f32 v{S1}, v{S1}, v{S2}")
            self.dpp_red("v_add_f32", [S1], [self.R8, self.R4, self.X2, self.X1])
            self.mask(0x0000000100000001)
            a(f"ds_write_b32 v{U+4}, v{S1} offset:{STL}")
            self.unmask()
            self.barrier()
            a(f"ds_read_b32 v{U+1}, v{U+5} offset:{STL}\ns_waitcnt lgkmcnt(0)")
            self.dpp_red("v_add_f32", [U + 1], [self.X1, self.X2, self.HM])
            a(f"v_mul_f32_dpp v{S1}, v{U+1}, v{U+6} row_newbcast:0 row_mask:0xf bank_mask:0xf")
            a(f"v_mul_f32_dpp v{S2}, v{U+1}, v{U+6} row_newbcast:8 row_mask:0xf bank_mask:0xf")
            a(f"v_fma_f32 v{S2}, -v{S1}, v{S1}, v{S2}\nv_max_f32 v{S2}, 0, v{S2}")
            a(f"v_cvt_pk_bf16_f32 v{U}, v{S1}, v{S2}")
            a(f"v_and_b32 v{S2}, s{sHIMASK}, v{U}\nv_lshlrev_b32 v{S1}, 16, v{U}")
            a(f"v_add_f32 v{S2}, {f32(1e-5)}, v{S2}\nv_sub_f32 v{G}, v{G}, v{S1}")
            a(f"v_cvt_pk_bf16_f32 v{S2}, v{S2}, v{S2}\nv_sub_f32 v{G+1}, v{G+1}, v{S1}\nv_and_b32 v{S2}, s{sHIMASK}, v{S2}")
            a(f"v_sqrt_f32 v{S2}, v{S2}\nv_cvt_pk_bf16_f32 v{U}, v{G}, v{G+1}")
            a(f"v_cvt_pk_bf16_f32 v{S2}, v{S2}, v{S2}\nv_lshlrev_b32 v{G}, 16, v{U}\nv_and_b32 v{S2}, s{sHIMASK}, v{S2}")
            a(f"v_rcp_f32 v{S2}, v{S2}\nv_and_b32 v{G+1}, s{sHIMASK}, v{U}")
            a(f"v_mul_f32 v{G}, v{G}, v{S2}\nv_mul_f32 v{G+1}, v{G+1}, v{S2}"); rb2()
            a(f"v_pk_mul_f32 {vr(G,2)}, {vr(G,2)}, {vr(CB1,2)}"); rb2()
            a(f"v_pk_add_f32 {vr(G,2)}, {vr(G,2)}, {vr(SBv,2)}")
            a(f"v_cvt_pk_bf16_f32 v{U}, v{G}, v{G+1}")
            for p in range(10):
                for j in range(4): a(f"v_dot2c_f32_bf16_dpp v{ACC+j}, v{U}, v{PG_[p][j]} row_newbcast:{p} row_mask:0xf bank_mask:0xf")
            self.reduce4(list(range(ACC, ACC + 4)))
            a(f"ds_write_b32 v{VP}, v{ACC}")
            a(f"v_lshlrev_b32 v{T}, 1, v{LN}")
            self.barrier()
            a(f"s_cmp_lg_u32 s{sTW}, 0\ns_cbranch_scc1 L_fin")
            self.sum_parts(G, T + 14, 256)
        a(f"s_cmp_ge_u32 s{sRA}, 27\ns_cbranch_scc1 L_gu_up")
        self.rbf(G, G)
        self.silu(G, G, G + 1)
        a("L_gu_up:")
        a(f"v_mov_b32_dpp v{G+1}, v{G} {self.X1} row_mask:0xf bank_mask:0xf")
        a(f"v_cvt_pk_bf16_f32 v{G}, v{G}, v{G+1}\nv_min_u32 v{G}, 0xfffffffe, v{G}")
        self.mask(0x5555555555555555)
        self.mem(f"buffer_store_dword v{G}, v{T}, {srd(SW)}, s15 offen sc1")
        self.stamp(3)
        a("s_branch L_fin")
        a("L_dn:")
        GA, GB, XV, R = T + 8, T + 9, T + 10, T + 11
        self.mksrd(SA, P_WD, 0 if self.dbg & 1024 else 1728 * 1280)
        a(f"s_lshl_b32 s12, s{sRA}, 5\ns_add_u32 s13, s12, 5120")
        a(f"v_lshrrev_b32 v{T}, 1, v{TL}\nv_mul_u32_u24 v{T}, {8*1280}, v{T}\nv_and_b32 v{T+1}, 1, v{TL}\nv_lshl_add_u32 v{T}, v{T+1}, 4, v{T}")
        i0_ = self.din if self.dback >= 0 else 0
        if i0_ < 8: self.mem("\n".join(f"buffer_load_dwordx4 {vr(W+4*i,4)}, v{T}, {srd(SA)}, s{12+i//4} offen offset:{1280*(i%4)}{self.dpol}" for i in range(i0_, 8)))
        a(f"v_lshrrev_b32 v{VP}, 3, v{LN}\nv_lshl_add_u32 v{VP}, v{T+1}, 3, v{VP}\ns_lshl_b32 s11, s{sTW}, 6\ns_add_u32 s11, s11, {PW}")
        a(f"v_lshl_add_u32 v{VP}, v{VP}, 2, s11\nv_lshlrev_b32 v{VR_}, 2, v{LN}\nv_add_u32 v{VR_}, {PW}, v{VR_}")
        a(f"s_cmp_lg_u32 s{sTW}, 0\ns_cbranch_scc1 L_dn_x1done")
        self.mksrd(SB, P_X, 1280)
        a(f"v_lshrrev_b32 v{T}, 1, v{N16}\nv_lshlrev_b32 v{T}, 2, v{T}")
        a(f"s_add_u32 s13, s12, {MG}\ns_lshl_b32 s15, s{sRA}, 6\ns_add_u32 s15, s15, {YB}\ns_add_u32 s15, s15, s{sSEL}")
        self.mem(f"buffer_load_dword v{G+2}, v{T}, {srd(SB)}, s12 offen")
        def loads():
            a(f"buffer_load_dword v{G}, v{T}, {srd(SW)}, s13 offen sc1")
            a(f"buffer_load_dword v{G+1}, v{T}, {srd(SW)}, s13 offen offset:{3*1280} sc1")
        self.poll(loads, lambda: self.inv_poison([G, G + 1], T + 4), sleep=8, tail=True)
        a(f"v_cmp_eq_u32 vcc, 1, v{T+1}")
        for dst, s in ((GA, G), (GB, G + 1), (XV, G + 2)):
            self.unpack(T + 2, T + 3, s); a(f"v_cndmask_b32 v{dst}, v{T+2}, v{T+3}, vcc")
        for k in range(2):
            a(f"v_lshrrev_b32 v{T+2}, 4, v{LN}\nv_add_u32 v{T+2}, {4*k}, v{T+2}\nv_mul_u32_u24 v{T+3}, 11, v{T+2}\nv_lshrrev_b32 v{T+3}, 5, v{T+3}")
            a(f"v_mul_u32_u24 v{T+3}, 8704, v{T+3}\nv_mul_u32_u24 v{T+2}, 2560, v{T+2}\nv_add_u32 v{T+2}, v{T+2}, v{T+3}\nv_lshl_add_u32 v{T+6+k}, v{N16}, 2, v{T+2}")
        def loads():
            for k in range(2): a(f"buffer_load_dword v{G+k}, v{T+6+k}, {srd(SW)}, s15 offen sc1")
        self.poll(loads, lambda: self.inv_poison(range(G, G + 2), T + 2), sleep=2, tail=True)
        for k in range(1, GW // 4): a(f"v_add_f32 v{G}, v{G}, v{G+k}")
        self.allred_rows("v_add_f32", [G], [T])
        self.rbf(G, G)
        a(f"v_mul_f32 v{G}, v{GA}, v{G}")
        self.rbf(G, G)
        a(f"v_add_f32 v{XV}, v{XV}, v{G}")
        self.rbf(XV, XV)
        a(f"s_cmp_lg_u32 s{sRA}, 0\ns_cbranch_scc1 L_dn_x1done")
        a(f"s_mul_i32 s{sT}, s{sT}, 1664525\ns_add_u32 s{sT}, s{sT}, 1013904223")
        self.mask(1)
        a(f"v_mov_b32 v{G+1}, s{sT}\nv_mov_b32 v{T}, 0")
        self.mem(f"buffer_store_dword v{G+1}, v{T}, {srd(SW)}, 0 offen sc1")
        self.unmask()
        a("L_dn_x1done:")
        self.mksrd(SB, P_OUT, 1280)
        PD_ = []
        for i in range(4): a(f"v_mov_b32 v{G+i}, 0")
        a(f"v_lshlrev_b32 v{T}, 3, v{TL}\ns_add_u32 s13, s{sSEL}, {GUP}\nv_lshlrev_b32 v{T+5}, 1, v{LN}")
        def loads():
            a(f"buffer_load_dwordx2 {vr(G,2)}, v{T}, {srd(SW)}, s13 offen sc1")
            a(f"buffer_load_dwordx2 {vr(G+2,2)}, v{T}, {srd(SW)}, s13 offen offset:3456 sc1")
        self.poll_pre(loads, 2, lambda: PD_.extend(self.preperm(W, 4, FREE)), lambda: self.inv_poison(range(G, G + 4), T + 2), sleep=self.ps,
                      narrow=lambda: a(f"v_cmp_gt_u32 vcc, 432, v{TL}\ns_mov_b64 exec, vcc"))
        self.stamp(10)
        for i in range(4): self.unpack(G + 4 + 2 * i, G + 5 + 2 * i, G + i)
        a(f"v_pk_mul_f32 {vr(G+4,2)}, {vr(G+4,2)}, {vr(G+8,2)}\nv_pk_mul_f32 {vr(G+6,2)}, {vr(G+6,2)}, {vr(G+10,2)}")
        a(f"v_cvt_pk_bf16_f32 v{G}, v{G+4}, v{G+5}\nv_cvt_pk_bf16_f32 v{G+1}, v{G+6}, v{G+7}")
        for p in range(4):
            qp = "quad_perm:[0,0,2,2]" if p < 2 else "quad_perm:[1,1,3,3]"
            for j in range(8): a(f"v_dot2c_f32_bf16_dpp v{ACC+j}, v{G+p%2}, v{PD_[p][j]} {qp} row_mask:0xf bank_mask:0xf")
        self.reduce8(list(range(ACC, ACC + 8)), R)
        a(f"v_add_f32_dpp v{R}, v{R}, v{R} row_shl:4 row_mask:0xf bank_mask:0x5")
        self.dpp_red("v_add_f32", [R], [self.X2])
        self.mask(0x0303030303030303)
        a(f"ds_write_b32 v{VP}, v{R}")
        self.unmask()
        self.barrier()
        a(f"s_cmp_lg_u32 s{sTW}, 0\ns_cbranch_scc1 L_fin")
        self.mask(0xffff)
        self.sum_parts(G, VR_, 64)
        self.rbf(G, G)
        a(f"v_mul_f32 v{G}, v{GB}, v{G}")
        self.rbf(G, G)
        a(f"v_add_f32 v{G}, v{XV}, v{G}\nv_cvt_pk_bf16_f32 v{G}, v{G}, v{G}")
        self.mem(f"buffer_store_short v{G}, v{T+5}, {srd(SB)}, s12 offen{self.opol}")
        a("L_fin:")
        if self.dry: a("s_cbranch_execz L_dry_ret")
        if self.stamps:
            self.stamp(11)
            a(f"s_cmp_lg_u32 s{sTW}, 0\ns_cbranch_scc1 L_end")
            self.store_stamps((2, 3, 4, 5, 8, 9, 10, 11), 0)
        a("L_end:")
        a("s_endpgm")

    def build(self):
        a = self.a
        for l in HEADER.strip("\n").split("\n"): a.raw("; " + l if l else ";")
        a.raw(f"; @launch grid=(256,1,1) block=(768,1,1) lds={VL + 8 * 1024 * self.NL}")
        a.raw('.amdgcn_target "amdgcn-amd-amdhsa--gfx950"')
        a.raw(f".text\n.globl {NAME}_kernel\n.p2align 8\n.type {NAME}_kernel,@function\n{NAME}_kernel:")
        if self.stamps:
            for i in range(2, 24): a(f"s_mov_b32 s{STAMP0+i}, 0")
        self.stamp(0)
        VO, Q, MK, A0, D, T, S, RING = 1, 2, 6, 10, 18, 22, 31, 40
        a("s_load_dwordx16 s[16:31], s[0:1], 0\ns_load_dwordx8 s[32:39], s[0:1], 64\ns_load_dwordx2 s[42:43], s[0:1], 104")
        a(f"v_lshrrev_b32 v2, 6, v0\nv_and_b32 v1, 63, v0\nv_readfirstlane_b32 s{sWAVE}, v2")
        a("s_cmp_ge_u32 s2, 256\ns_cbranch_scc1 L_end")
        self.jitter(0, 63, 37)
        if self.amap == 1: a(f"s_and_b32 s{sCI}, s2, 7\ns_lshl_b32 s{sCI}, s{sCI}, 5\ns_lshr_b32 s11, s2, 3\ns_or_b32 s{sCI}, s{sCI}, s11")
        elif self.amap == 2:
            a(f"s_bfe_u32 s{sCI}, s2, 0x20001\ns_lshl_b32 s{sCI}, s{sCI}, 6\ns_lshr_b32 s11, s2, 5\ns_lshl_b32 s11, s11, 3\ns_or_b32 s{sCI}, s{sCI}, s11")
            a(f"s_and_b32 s11, s2, 1\ns_lshl_b32 s11, s11, 2\ns_or_b32 s{sCI}, s{sCI}, s11\ns_bfe_u32 s11, s2, 0x20003\ns_or_b32 s{sCI}, s{sCI}, s11")
        else: a(f"s_mov_b32 s{sCI}, s2")
        a(f"s_cmp_lt_u32 s{sWAVE}, 4\ns_cbranch_scc1 {'L_help0' if self.eb else 'L_help'}")
        a(f"s_sub_u32 s10, s{sWAVE}, 4\ns_lshl_b32 s9, s{sCI}, 18\ns_lshl_b32 s14, s10, 12\nv_lshl_add_u32 v{VO}, v1, 4, s9")
        if self.gx == 1: a("s_and_b32 s11, s2, 7\ns_lshl_b32 s11, s11, 15\ns_or_b32 s14, s14, s11")
        if self.gx == 2: a("s_bfe_u32 s11, s2, 0x30003\ns_lshl_b32 s11, s11, 15\ns_or_b32 s14, s14, s11")
        if self.gx == 3: a("s_lshr_b32 s11, s2, 3\ns_add_u32 s11, s11, s2\ns_and_b32 s11, s11, 7\ns_lshl_b32 s11, s11, 15\ns_or_b32 s14, s14, s11")
        if self.gx == 4: a("s_lshl_b32 s11, s10, 15\ns_or_b32 s14, s14, s11")
        a(f"s_mov_b32 s{SA+2}, 0x4000000\ns_mov_b32 s{SA+3}, 0x20000")
        a("s_waitcnt lgkmcnt(0)")
        a(f"s_mov_b32 s{SA}, s{P_K}\ns_and_b32 s{SA+1}, s{P_K+1}, 0xffff")
        for t in range(4):
            if self.early == t: a("s_barrier")
            a(f"buffer_load_dwordx4 {vr(RING+4*t,4)}, v{VO}, {srd(SA)}, s14 offen offset:{t*1024} nt")
        if self.early == 4: a("s_barrier")
        if self.eb:
            a("s_branch L_b2")
            a("L_help0:")
            a("v_lshlrev_b32 v2, 1, v0\nv_mov_b32 v3, -1\nds_write_b16 v2, v3\ns_waitcnt lgkmcnt(0)\ns_barrier\ns_branch L_help")
            a("L_b2:")
        self.mksrd(SB, P_V, 0x4000000)
        a(f"s_xor_b32 s15, s14, 8192\ns_mul_i32 s13, s10, {1024*self.NL}\ns_add_u32 s13, s13, {VL}")
        self.common_setup()
        self.masks(MK, T)
        for i in range(4): a(f"v_mov_b32 v{D+i}, 0")
        a(f"v_lshlrev_b32 v{T+1}, 4, v{T+1}")
        a(f"v_and_b32 v{T+7}, 63, v0\nv_lshl_add_u32 v{T+7}, v{T+7}, 4, s13")
        if self.early == 5: a("s_barrier")
        self.bulk(); self.tail()
        a("L_help:")
        a(f"s_setprio 3\ns_and_b32 s{sX}, s2, 7\ns_lshr_b32 s{sR}, s2, 3")
        a(f"s_cmp_eq_u32 s{sWAVE}, 2\ns_cbranch_scc1 L_h2")
        a("s_waitcnt lgkmcnt(0)")
        self.common_setup()
        a(f"s_cmp_eq_u32 s{sWAVE}, 1\ns_cbranch_scc1 L_h1\ns_cmp_eq_u32 s{sWAVE}, 3\ns_cbranch_scc1 L_h3")
        self.h0(); self.h1(); self.h2(); self.h3()
        a.raw(".p2align 6\n.type role_tbl,@object\nrole_tbl:")
        t = role_table(self.roles, self.GW)
        for i in range(0, 256, 8): a.raw("    .long " + ", ".join("0x%08x" % v for v in t[i:i+8]))
        a.raw(".size role_tbl, 1024")
        if self.dynr:
            a.raw(".type ord_tbl,@object\nord_tbl:")
            t = order_table(self.omode, self.sh)
            for i in range(0, 256, 8): a.raw("    .long " + ", ".join("0x%08x" % v for v in t[i:i+8]))
            a.raw(".size ord_tbl, 1024")
        a.raw('.section .rodata,"a"\n.p2align 6')
        a.raw(f".amdhsa_kernel {NAME}_kernel")
        a.raw("  .amdhsa_next_free_vgpr 168\n  .amdhsa_next_free_sgpr 102\n  .amdhsa_accum_offset 168\n  .amdhsa_group_segment_fixed_size 0")
        a.raw("  .amdhsa_kernarg_size 112\n  .amdhsa_user_sgpr_count 2\n  .amdhsa_user_sgpr_kernarg_segment_ptr 1\n  .amdhsa_system_sgpr_workgroup_id_x 1")
        a.raw("  .amdhsa_float_denorm_mode_32 3")
        a.raw(".end_amdhsa_kernel")
        return a.text()

if __name__ == "__main__":
    for spec in sys.argv[1:]:
        name, _, kw = spec.partition(":")
        kw = dict((k, int(v)) for k, v in (p.split("=") for p in kw.split(",") if p))
        open(f"work/{name}.s", "w").write(Gen(**kw).build())
        import numpy as np
        np.save(f"work/{name}.roles.npy", np.array(role_table(kw.get("roles", 6), kw.get("GW", 8)), dtype=np.uint32))
```
